```python
import torch

def _softmax(x, axis=-1):
    return torch.softmax(x, dim=axis)
def _gelu(x):
    return torch.nn.functional.gelu(x, approximate="tanh")
def _silu(x):
    return torch.nn.functional.silu(x)
def _sigmoid(x):
    return torch.sigmoid(x)
def _layernorm(x, axis=-1, eps=1e-5):
    m = x.mean(dim=axis, keepdim=True)
    v = x.var(dim=axis, keepdim=True, unbiased=False)
    return (x - m) / torch.sqrt(v + eps)
def _scatter_add(tgt, idx, src, axis=0):
    return tgt.clone().index_add_(axis, idx, src)
def _segment_sum(src, seg, n):
    out = torch.zeros((n,) + src.shape[1:], dtype=src.dtype)
    return out.index_add_(0, seg, src)
def _pad(x, pw):
    flat = tuple(v for pair in reversed(pw) for v in pair)
    return torch.nn.functional.pad(x, flat)

kernel_name = 'concat_heads__ssm_conv_h3__sliding_local_dilated__prompt'

def setup_inputs():

    _w = (lambda a: (lambda t: t.to(torch.bfloat16) if t.is_floating_point() else t)(torch.as_tensor(a)))
    def _A_setup():
        B, S, D = 1, 2048, 1024
        ks = 4
        return {
            "q": _w((lambda *s: torch.randn(*s, dtype=torch.bfloat16) * 0.05)(B, S, D)),
            "k": _w((lambda *s: torch.randn(*s, dtype=torch.bfloat16) * 1.6)(B, S, D)),
            "v": _w((lambda *s: torch.randn(*s, dtype=torch.bfloat16) * 0.8)(B, S, D)),
            "shift_k": _w((lambda *s: torch.randn(*s, dtype=torch.bfloat16) * 1.6)(D, ks) * 0.5),
            "ssm_k": _w((lambda *s: torch.randn(*s, dtype=torch.bfloat16) * 1.6)(D, S) * (1.0 / S ** 0.5)),
            "ssm_D": _w((lambda *s: torch.randn(*s, dtype=torch.bfloat16) * 0.8)(D)),
        }
    _A_in = _A_setup()

    def _B_setup():
        B, S, D = 1, 2048, 1024
        return {
            "x": _w((lambda *s: torch.randn(*s, dtype=torch.bfloat16) * 0.2)(B, S, D)),
            "wqkv": _w((lambda *s: torch.randn(*s, dtype=torch.bfloat16) * 0.2)(D, 3 * D)),
            "wo": _w((lambda *s: torch.randn(*s, dtype=torch.bfloat16) * 0.05)(D, D)),
        }
    _B_in = _B_setup()

    return {
        "A_q": _A_in["q"],
        "A_k": _A_in["k"],
        "A_v": _A_in["v"],
        "A_shift_k": _A_in["shift_k"],
        "A_ssm_k": _A_in["ssm_k"],
        "A_ssm_D": _A_in["ssm_D"],
        "B_x": _B_in["x"],
        "B_wqkv": _B_in["wqkv"],
        "B_wo": _B_in["wo"],
    }

def reference(A_q, A_k, A_v, A_shift_k, A_ssm_k, A_ssm_D, B_x, B_wqkv, B_wo):
    def _A_ref(q, k, v, shift_k, ssm_k, ssm_D):
        B, S, D = q.shape
        ks = shift_k.shape[-1]
        k_pad = _pad(k, ((0, 0), (ks - 1, 0), (0, 0)))
        k_shift = torch.zeros_like(k)
        for t in range(ks):
            k_shift = k_shift + k_pad[:, t:t + S, :] * shift_k[:, ks - 1 - t][None, None, :]
        kv = k_shift * v
        L = 2 * S
        kv_pad = _pad(kv, ((0, 0), (0, S), (0, 0)))
        kf_pad = _pad(ssm_k, ((0, 0), (0, S)))
        kv_f = (lambda x, axes=(-2,-1): torch.fft.rfft2(x.float(), dim=axes))(kv_pad[:, None, :, :], axes=(1, 2))
        kf_f = (lambda x, axes=(-2,-1): torch.fft.rfft2(x.float(), dim=axes))(kf_pad[:, None, :], axes=(1, 2))
        kf_f = (lambda x, *d: x.permute(*d))(kf_f, 1, 2, 0)
        y_f = kv_f * kf_f[None, :, :, :]
        y = (lambda x, s, axes=(-2,-1): torch.fft.irfft2(x, s=s, dim=axes).to(torch.bfloat16))(y_f, (1, L), axes=(1, 2))[:, 0, :S, :]
        y = y + kv * ssm_D[None, None, :]
        return q * y

    def _B_ref(x, wqkv, wo):
        B, S, D = x.shape
        H = 32; Dh = D // H
        W, dil = 8, 2
        qkv = (lambda x, *d: x.permute(*d))((x @ wqkv).reshape(B, S, 3, H, Dh), 2, 0, 3, 1, 4)
        q, k, v = qkv[0], qkv[1], qkv[2]
        scale = Dh ** -0.5
        pos = torch.arange(S)
        off = torch.arange(W) * dil
        idx = pos[:, None] - off[None, :]
        mask = idx >= 0
        idx_c = torch.where(mask, idx, 0).reshape(-1)
        kg = k[:, :, idx_c, :].reshape(B, H, S, W, Dh)
        vg = v[:, :, idx_c, :].reshape(B, H, S, W, Dh)
        logits = torch.einsum("bhsd,bhswd->bhsw", q, kg) * scale
        logits = torch.where(mask[None, None, :, :], logits, -1e9)
        attn = _softmax(logits, axis=-1)
        o = torch.einsum("bhsw,bhswd->bhsd", attn, vg)
        return (lambda x, *d: x.permute(*d))(o, 0, 2, 1, 3).reshape(B, S, D) @ wo

    a = _A_ref(A_q, A_k, A_v, A_shift_k, A_ssm_k, A_ssm_D)
    b = _B_ref(B_x, B_wqkv, B_wo)
    return torch.concatenate([a, b], axis=-1)
```

```python
import re

def v(n, c=1):
    return f"v{n}" if c == 1 else f"v[{n}:{n+c-1}]"
def s(n, c=1):
    return f"s{n}" if c == 1 else f"s[{n}:{n+c-1}]"

_REG = re.compile(r"^-?\|?(?:abs\()?([vsa])(?:(\d+)|\[(\d+):(\d+)\])\)?\|?$")
def regs_of(tok):
    tok = tok.strip()
    if tok in ("vcc", "exec", "m0", "scc"):
        return {tok}
    if tok in ("vcc_lo", "vcc_hi"): return {"vcc"}
    if tok in ("exec_lo", "exec_hi"): return {"exec"}
    m = _REG.match(tok)
    if not m: return set()
    k = m.group(1)
    if m.group(2) is not None: return {k + m.group(2)}
    return {k + str(i) for i in range(int(m.group(3)), int(m.group(4)) + 1)}

TRANS = ("v_exp_f32", "v_log_f32", "v_rcp_f32", "v_rsq_f32", "v_sqrt_f32", "v_sin_f32", "v_cos_f32")

class Ins:
    __slots__ = ("text", "op", "kind", "rd", "wr", "tag", "ops", "srcc", "srcab", "wide", "meta")
    def __init__(self, text, tag=None):
        self.text = text.strip(); self.tag = tag; self.meta = None
        t = self.text.split(";")[0].strip()
        self.rd = set(); self.wr = set(); self.srcc = set(); self.srcab = set(); self.wide = set()
        if t.endswith(":"):
            self.op = t; self.kind = "label"; self.ops = []; return
        parts = t.split(None, 1)
        op = self.op = parts[0]
        rest = parts[1] if len(parts) > 1 else ""
        ops = [x.strip() for x in rest.split(",")] if rest else []
        mods = []
        if ops:
            last = ops[-1].split()
            if last:
                ops[-1] = last[0]; mods = last[1:]
        self.ops = ops
        R = [regs_of(x) for x in ops]
        allr = lambda a: set().union(*R[a:]) if R[a:] else set()
        if op.startswith("v_mfma"):
            self.kind = "mfma"; self.wr = R[0]; self.rd = allr(1); self.srcc = R[3]; self.srcab = R[1] | R[2]
        elif op.startswith("ds_read") or op.startswith("ds_bpermute") or op.startswith("ds_swizzle") or "_rtn" in op:
            self.kind = "ds"; self.wr = R[0]; self.rd = allr(1)
        elif op.startswith("ds_"):
            self.kind = "ds"; self.rd = allr(0)
        elif op.startswith("buffer_load") or op.startswith("global_load"):
            self.kind = "vm"
            if "lds" in mods: self.rd = allr(0) | {"m0"}
            else: self.wr = R[0]; self.rd = allr(1)
        elif op.startswith("buffer_store") or op.startswith("global_store") or op.startswith("buffer_atomic"):
            self.kind = "vm"; self.rd = allr(0)
            if op.endswith("x4") or op.endswith("x3"):
                self.wide = R[0] if op.startswith("buffer") else R[1]
            if op.startswith("buffer_atomic") and "sc0" in mods: self.wr = R[0]
        elif op.startswith("s_load") or op.startswith("s_memtime") or op.startswith("s_memrealtime"):
            self.kind = "smem"; self.wr = R[0]; self.rd = allr(1)
        elif op == "s_waitcnt": self.kind = "wait"
        elif op == "s_barrier": self.kind = "barrier"
        elif op == "s_nop": self.kind = "nop"
        elif op.startswith("s_cbranch") or op == "s_branch" or op == "s_endpgm": self.kind = "branch"
        elif op in ("s_setprio", "s_sleep"): self.kind = "other"
        elif op.startswith("s_cmp") or op.startswith("s_bitcmp"):
            self.kind = "salu"; self.rd = allr(0); self.wr = {"scc"}
        elif op.startswith("s_"):
            self.kind = "salu"; self.wr = R[0] | {"scc"}; self.rd = allr(1)
            if "saveexec" in op: self.wr |= {"exec"}
        elif op.startswith("v_"):
            self.kind = "valu"
            self.wr = set(R[0]); self.rd = allr(1)
            if op.startswith("v_permlane") and "swap" in op:
                self.wr = R[0] | R[1]; self.rd = R[0] | R[1]
            if op.startswith("v_fmac") or op.startswith("v_dot2c") or "_dpp" in op or op.startswith("v_writelane"):
                self.rd |= R[0]
            if "_co_" in op: self.wr |= R[1]
        else:
            raise ValueError("unknown instruction: " + text)
    def is_trans(self):
        return any(self.op.startswith(x) for x in TRANS)
    def states(self):
        if self.kind == "nop": return int(self.ops[0], 0) + 1
        if self.kind == "label": return 0
        return 1

class Pseudo:
    def __init__(self, what, tag=None): self.what = what; self.tag = tag; self.kind = "pseudo"

class Prog:
    def __init__(self): self.L = []
    def __call__(self, text, tag=None):
        if isinstance(text, (Ins, Pseudo)): self.L.append(text); return
        if isinstance(text, (list, tuple)):
            for x in text: self(x, tag)
            return
        for line in text.split("\n"):
            if line.strip(): self.L.append(Ins(line, tag))
    def wait_vm(self, tag): self.L.append(Pseudo("wait_vm", tag))
    def wait_ds(self, tag): self.L.append(Pseudo("wait_ds", tag))

    def finalize(self, verbose=False):
        out = []
        vmq = []; dsq = []; smem = []
        nwait = 0
        def emit_wait(vm=None, lg=None):
            nonlocal vmq, dsq, smem, nwait
            parts = []
            if vm is not None:
                vm = min(vm, 62); parts.append(f"vmcnt({vm})"); vmq = vmq[len(vmq) - vm:] if vm < len(vmq) else vmq
                if vm == 0: vmq = []
            if lg is not None:
                if smem: lg = 0
                lg = min(lg, 14); parts.append(f"lgkmcnt({lg})"); dsq = dsq[len(dsq) - lg:] if lg < len(dsq) else dsq
                if lg == 0: dsq = []; smem = []
            out.append(Ins("s_waitcnt " + " ".join(parts))); nwait += 1
        def last_idx(q, pred):
            for i in range(len(q) - 1, -1, -1):
                if pred(q[i]): return i
            return None
        for x in self.L:
            if x.kind == "pseudo":
                q = vmq if x.what == "wait_vm" else dsq
                i = last_idx(q, lambda y: y.tag == x.tag)
                if i is not None:
                    n = len(q) - 1 - i
                    emit_wait(vm=n) if x.what == "wait_vm" else emit_wait(lg=n)
                continue
            if x.kind == "wait":
                m = re.search(r"vmcnt\((\d+)\)", x.text)
                if m:
                    n = int(m.group(1)); vmq = vmq[len(vmq) - n:] if 0 < n < len(vmq) else ([] if n == 0 else vmq)
                m = re.search(r"lgkmcnt\((\d+)\)", x.text)
                if m:
                    n = int(m.group(1))
                    if n == 0: dsq = []; smem = []
                    elif not smem and n < len(dsq): dsq = dsq[len(dsq) - n:]
                out.append(x); continue
            touch = x.rd | x.wr
            vm = lg = None
            i = last_idx(vmq, lambda y: y.wr & touch)
            if i is not None and not (x.kind == "vm" and not (vmq[i].wr & x.rd)): vm = len(vmq) - 1 - i
            i = last_idx(dsq, lambda y: y.wr & touch)
            if i is not None and not (x.kind == "ds" and not (dsq[i].wr & x.rd)): lg = len(dsq) - 1 - i
            if any(y.wr & touch for y in smem): lg = 0
            if vm is not None or lg is not None: emit_wait(vm, lg)
            out.append(x)
            if x.kind == "vm": vmq.append(x)
            elif x.kind == "ds": dsq.append(x)
            elif x.kind == "smem": smem.append(x)
        res = []; nnop = 0
        def need(prev, cur):
            isv = lambda S: {r for r in S if r[0] in "va" and r != "vcc"}
            iss = lambda S: {r for r in S if (r[0] == "s" and r != "scc") or r == "vcc"}
            n = 0
            if prev.kind == "valu":
                w = isv(prev.wr)
                if cur.kind == "mfma" and w & cur.rd: n = max(n, 2)
                if cur.kind == "valu":
                    if (cur.op.startswith("v_permlane") or "_dpp" in cur.op) and w & cur.rd: n = max(n, 2)
                    if cur.op.startswith("v_readlane") or cur.op.startswith("v_readfirstlane"):
                        if w & cur.rd: n = max(n, 1)
                    if prev.is_trans() and w & cur.rd: n = max(n, 1)
                ws = iss(prev.wr)
                if ws & cur.rd:
                    if cur.kind == "valu": n = max(n, 4 if cur.op.startswith(("v_readlane", "v_writelane")) else 2)
                    if cur.kind == "vm": n = max(n, 5)
                    if cur.kind == "salu": n = max(n, 1)
            if prev.kind == "mfma":
                big = "32x32" in prev.op
                d = prev.wr
                if cur.kind == "mfma":
                    if d & cur.srcab: n = max(n, 12 if big else 8)
                    if d & cur.srcc and not (d == cur.srcc and prev.op == cur.op): n = max(n, 10 if big else 6)
                    if d & cur.wr and not (d & cur.srcc): n = max(n, 12 if big else 8)
                elif cur.kind in ("valu", "vm", "ds"):
                    if d & (cur.rd | cur.wr): n = max(n, 12 if big else 8)
                    if cur.kind == "valu" and prev.srcc & cur.wr: n = max(n, 7 if big else 3)
            if prev.kind == "salu" and "m0" in prev.wr and cur.kind == "vm" and "m0" in cur.rd: n = max(n, 1)
            if prev.kind == "vm" and prev.wide and (prev.wide & cur.wr): n = max(n, 2)
            return n
        for x in out:
            dist = 0; pad = 0
            for p in reversed(res):
                if dist >= 12: break
                pad = max(pad, need(p, x) - dist)
                dist += p.states()
            if pad > 0:
                res.append(Ins(f"s_nop {pad-1}")); nnop += 1
            res.append(x)
        if verbose: print(f"; {len(res)} instrs, {nwait} auto waits, {nnop} nops")
        self.out = res
        return "\n".join(("" if y.kind == "label" else "    ") + y.text for y in res)

def weave(main, fill, per_gap=2, start=0):
    out = []; f = 0
    for i, m in enumerate(main):
        out.append(m)
        if i >= start:
            for _ in range(per_gap):
                if f < len(fill): out.append(fill[f]); f += 1
    out.extend(fill[f:])
    return out

def spread(main, fill, start=0, end=None):
    end = len(main) if end is None else end
    n = end - start; out = []; f = 0
    for i, m in enumerate(main):
        out.append(m)
        if start <= i < end:
            tgt = ((i - start + 1) * len(fill) + n - 1) // n
            while f < tgt: out.append(fill[f]); f += 1
    out.extend(fill[f:])
    return out
```

```python
import sys, math, struct
from asmlib import *

NAME = "concat_heads__ssm_conv_h3__sliding_local_dilated__prompt"

class Cfg:
    diag = False
    nt_in = "nt"
    pol_x = ""
    pol_w = ""
    pol_wo = ""
    pol_out = ""
    prioB = 2
    spin = 200000
    codepf = True
    probe = 0
    probe_ptr = 16
    probe_pol = ""

WR = 0; XR = 73728; XS = 18432; HB = 129024; HS = 8320; CNT = 162304
XIMG = XR + XS; EXCH = XR + 2 * XS; WO22 = EXCH + 10240
LDS_BYTES = 163840
S1, S2, S3, S4 = 0, 8, 12, 16
def wo_loc(st):
    if st < 22: return 4096 * st
    if st < 24: return WO22 + 4096 * (st - 22)
    return HB + ((st - 24) >> 1) * HS + 4096 * (st & 1)
WS_KV = 0; WS_Y = 4 << 20; WS_O = 8 << 20; WS_F = 12 << 20; WS_DBG = 13 << 20
F_KV = WS_F; F_Y = WS_F + 4096; F_O = WS_F + 4096 + 16384
pQ, pK, pV, pSH, pH, pD, pX, pW, pWO, pOUT, pDBG, pWS = 4, 6, 8, 10, 12, 14, 16, 18, 20, 22, 24, 26
rX, rW, rK, rV, rSH, rH, rWS, rQ, rOUT, rWO, rDBG = 28, 32, 36, 40, 44, 48, 52, 56, 60, 64, 68
sWV = 3; sRB, sHG, sCT, sM, sRB4, sCB = 72, 73, 74, 75, 76, 77
sT = 78
sSTAMP = 84

def srd(p, r, ptr, nbytes):
    p(f"s_mov_b32 {s(r)}, {s(ptr)}\ns_mov_b32 {s(r+1)}, {s(ptr+1)}\ns_mov_b32 {s(r+2)}, {hex(nbytes)}\ns_mov_b32 {s(r+3)}, 0x20000")

def f2u(x): return struct.unpack("<I", struct.pack("<f", x))[0]

class Stamper:
    def __init__(self, cfg, vreg): self.cfg = cfg; self.n = 0; self.vreg = vreg; self.names = []
    def __call__(self, p, name, real=False):
        if not self.cfg.diag: return
        p(f"{'s_memrealtime' if real else 's_memtime'} {s(sSTAMP,2)}\ns_waitcnt lgkmcnt(0)\nv_writelane_b32 {v(self.vreg)}, {s(sSTAMP)}, {self.n}")
        self.names.append(name); self.n += 1
    def dump(self, p, vtmp, role):
        if not self.cfg.diag: return
        p(f"s_lshl_b32 {s(sT)}, s2, 3\ns_add_u32 {s(sT)}, {s(sT)}, {s(sWV)}\ns_add_u32 {s(sT)}, {s(sT)}, {4*role}\ns_lshl_b32 {s(sT)}, {s(sT)}, 8\ns_add_u32 {s(sT)}, {s(sT)}, {hex(WS_DBG)}")
        p(f"v_lshlrev_b32 {v(vtmp)}, 2, v0\nbuffer_store_dword {v(self.vreg)}, {v(vtmp)}, {s(rWS,4)}, {s(sT)} offen")

def lds_wait(p, name, vcnt, off, target, vt, extra=None):
    p(f"{name}:")
    p(f"ds_read_b32 {v(vt)}, {v(vcnt)} offset:{off}")
    if extra: p(extra)
    p(f"s_waitcnt lgkmcnt(0)\nv_readfirstlane_b32 {s(sT)}, {v(vt)}\ns_nop 0\ns_cmp_ge_u32 {s(sT)}, {target}\ns_cbranch_scc0 {name}")

def lds_arrive(p, vcnt, off, vone):
    p(f"s_mov_b64 exec, 1\nds_add_u32 {v(vcnt)}, {v(vone)} offset:{off}\ns_mov_b64 exec, -1")

def gpoll(p, cfg, name, srdr, vaddr, soff, want, vt, sleep=2):
    p(f"s_mov_b32 {s(sT+1)}, 0")
    p(f"{name}:")
    p(f"buffer_load_dword {v(vt)}, {v(vaddr)}, {s(srdr,4)}, {soff} offen sc1")
    p(f"s_add_u32 {s(sT+1)}, {s(sT+1)}, 1\ns_cmp_gt_u32 {s(sT+1)}, {cfg.spin}\ns_cbranch_scc1 {name}_x")
    p(f"s_waitcnt vmcnt(0)\nv_cmp_{'gt' if want > 1 else 'ne'}_u32 vcc, {want}, {v(vt)}\ns_cbranch_vccz {name}_x")
    p(f"s_sleep {sleep}\ns_branch {name}")
    p(f"{name}_x:\ns_waitcnt vmcnt(0)")

def gen_common(cfg):
    p = Prog()
    p("s_cmp_ge_u32 s2, 256\ns_cbranch_scc1 L_end")
    p(f"s_load_dwordx4 {s(pX,4)}, s[0:1], 48")
    p(f"s_load_dwordx8 {s(pQ,8)}, s[0:1], 0\ns_load_dwordx4 {s(pH,4)}, s[0:1], 32\ns_load_dwordx8 {s(pWO,8)}, s[0:1], 64")
    p(f"v_lshrrev_b32 v1, 6, v0\nv_and_b32 v0, 63, v0\nv_readfirstlane_b32 {s(sWV)}, v1")
    x, j = sT, sT + 1
    p(f"s_and_b32 {s(x)}, s2, 7\ns_lshr_b32 {s(j)}, s2, 3")
    a, b = sT + 2, sT + 3
    p(f"s_and_b32 {s(a)}, {s(x)}, 1\ns_lshl_b32 {s(a)}, {s(a)}, 3")
    p(f"s_lshr_b32 {s(b)}, {s(x)}, 1\ns_lshl_b32 {s(b)}, {s(b)}, 2")
    p(f"s_and_b32 {s(sRB)}, {s(j)}, 7\ns_add_u32 {s(sRB)}, {s(sRB)}, {s(a)}")
    p(f"s_lshr_b32 {s(sHG)}, {s(j)}, 3\ns_add_u32 {s(sHG)}, {s(sHG)}, {s(b)}")
    p(f"s_and_b32 {s(sRB4)}, {s(j)}, 3\ns_add_u32 {s(sRB4)}, {s(sRB4)}, {s(b)}")
    p(f"s_lshr_b32 {s(sCB)}, {s(j)}, 2\ns_add_u32 {s(sCB)}, {s(sCB)}, {s(a)}")
    p(f"s_lshr_b32 {s(sCT)}, {s(j)}, 4\ns_lshl_b32 {s(x)}, {s(x)}, 1\ns_add_u32 {s(sCT)}, {s(sCT)}, {s(x)}")
    p(f"s_and_b32 {s(sM)}, {s(j)}, 15")
    if cfg.probe:
        p("s_waitcnt lgkmcnt(0)")
        srd(p, rDBG, cfg.probe_ptr, 2 << 20)
        p(f"s_lshl_b32 {s(sT)}, s2, 13\nv_mov_b32 v2, {s(sT)}\ns_mov_b32 {s(sT)}, 0\nL_probe:")
        p(f"buffer_load_dword v3, v2, {s(rDBG,4)}, 0 offen {cfg.probe_pol}\nv_add_u32 v2, 128, v2\ns_waitcnt vmcnt(0)")
        p(f"s_add_u32 {s(sT)}, {s(sT)}, 1\ns_cmp_lt_u32 {s(sT)}, {cfg.probe}\ns_cbranch_scc1 L_probe")
    p(f"s_cmp_ge_u32 {s(sWV)}, 4\ns_cbranch_scc1 L_B")
    return p

def gen_A(cfg):
    p = Prog(); st = Stamper(cfg, 255)
    wa = sWV
    vX, vH, vW = 2, 3, 4
    t0, t1, t2, t3 = 5, 6, 7, 8
    sMW, sMX, sMH, sSO = 86, 87, 88, 89
    st(p, "A.real0", real=True); st(p, "A.start")
    p(f"v_lshrrev_b32 {v(t0)}, 3, v0\nv_and_b32 {v(t1)}, 7, v0\nv_lshrrev_b32 {v(t2)}, 4, v0")
    p(f"s_and_b32 {s(sT)}, {s(wa)}, 1\ns_lshl_b32 {s(sT)}, {s(sT)}, 2")
    p(f"s_lshl_b32 {s(sT+1)}, {s(sRB)}, 7\ns_lshl_b32 {s(sT+2)}, {s(wa)}, 3\ns_add_u32 {s(sT+3)}, {s(sT+1)}, {s(sT+2)}")
    p(f"v_add_u32 {v(t3)}, {s(sT)}, {v(t2)}\nv_xor_b32 {v(t3)}, {v(t3)}, {v(t1)}\nv_lshlrev_b32 {v(t3)}, 4, {v(t3)}")
    p(f"v_add_u32 {v(vX)}, {s(sT+3)}, {v(t0)}\nv_lshl_add_u32 {v(vX)}, {v(vX)}, 11, {v(t3)}")
    p(f"v_and_b32 {v(t3)}, 1, {v(t2)}\nv_lshl_or_b32 {v(t3)}, {v(t3)}, 1, {s(sT)}\nv_xor_b32 {v(t3)}, {v(t3)}, {v(t1)}\nv_lshlrev_b32 {v(t3)}, 4, {v(t3)}")
    p(f"v_add_u32 {v(vW)}, {s(sT+2)}, {v(t0)}\nv_mul_u32_u24 {v(vW)}, 6144, {v(vW)}\ns_lshl_b32 {s(sT+4)}, {s(sHG)}, 7\nv_add3_u32 {v(vW)}, {v(vW)}, {v(t3)}, {s(sT+4)}")
    p(f"s_lshl_b32 {s(sT)}, {s(wa)}, 1\ns_lshl_b32 {s(sT+2)}, {s(wa)}, 2\ns_add_u32 {s(sT+1)}, {s(sT+1)}, {s(sT+2)}\ns_sub_u32 {s(sT+1)}, {s(sT+1)}, 16")
    p(f"v_add_u32 {v(t3)}, {s(sT)}, {v(t2)}\nv_xor_b32 {v(t3)}, {v(t3)}, {v(t1)}\nv_and_b32 {v(t3)}, 7, {v(t3)}\nv_lshlrev_b32 {v(t3)}, 4, {v(t3)}")
    p(f"v_add_u32 {v(vH)}, {s(sT+1)}, {v(t0)}\nv_lshl_add_u32 {v(vH)}, {v(vH)}, 11, {v(t3)}")
    p(f"s_lshl_b32 {s(sMW)}, {s(wa)}, 10\ns_add_u32 {s(sMX)}, {s(sMW)}, {XR+2048}\ns_lshl_b32 {s(sMH)}, {s(wa)}, 9\ns_add_u32 {s(sMH)}, {s(sMH)}, {XR}")
    p("s_waitcnt lgkmcnt(0)")
    srd(p, rX, pX, 4 << 20); srd(p, rW, pW, 6 << 20)

    def dma(m0base, m0off, vaddr, srdr, soff, pol, tag, imm=0):
        L = [f"s_add_u32 m0, {s(m0base)}, {m0off}"]
        if isinstance(soff, int): L.append(f"s_mov_b32 {s(sSO)}, {soff}")
        else: L.append(f"s_add_u32 {s(sSO)}, {s(soff[0])}, {soff[1]}")
        L.append(Ins(f"buffer_load_dwordx4 {v(vaddr)}, {s(srdr,4)}, {s(sSO)} offen {f'offset:{imm} ' if imm else ''}{pol} lds", tag))
        return L
    def chunk(c):
        sl = c % 3; tag = f"ch{c}"; L = []
        xs = [dma(sMX, sl * XS + n * 4096, vX, rX, c * 128 + n * 65536, cfg.pol_x, tag) for n in range(4)]
        ws = [dma(sMW, part * 24576 + sl * 8192 + n * 4096, vW, rW, (64 * c + 32 * n) * 6144 + part * 2048, cfg.pol_w, tag)
              for n in range(2) for part in range(3)]
        hl = ["s_mov_b64 exec, 0xffffffff"] + dma(sMH, sl * XS, vH, rX, c * 128, cfg.pol_x, tag) + ["s_mov_b64 exec, -1"]
        order = [xs[0], ws[0], ws[1], xs[1], ws[2], xs[2], ws[3], ws[4], xs[3], ws[5], hl]
        for o in order: L += o
        return L
    for c in range(3): p(chunk(c))
    st(p, "A.iss012")
    srd(p, rK, pK, 4 << 20); srd(p, rV, pV, 4 << 20); srd(p, rSH, pSH, 8192); srd(p, rH, pH, 4 << 20)
    srd(p, rWS, pWS, 16 << 20); srd(p, rQ, pQ, 4 << 20); srd(p, rOUT, pOUT, 8 << 20); srd(p, rWO, pWO, 2 << 20)
    vKV, vKM, vSHa, vST, vOUT, vXI, vL16, vL16o, vWO, vCNT, vONE, vEP = 9, 10, 11, 12, 13, 14, 15, 16, 17, 18, 19, 20
    vAB = 21
    vBB = 25
    sCH, sGRP, sD, sH0, sHBW, sWA16, s4096 = 90, 91, 92, 93, 94, 95, 96
    p(f"v_bfe_u32 {v(t0)}, v0, 3, 2\nv_lshrrev_b32 {v(t1)}, 5, v0\nv_and_b32 {v(t2)}, 7, v0")
    p(f"s_lshl_b32 {s(sT)}, {s(sM)}, 7\ns_lshl_b32 {s(sT+1)}, {s(wa)}, 5\ns_add_u32 {s(sT)}, {s(sT)}, {s(sT+1)}")
    p(f"v_lshlrev_b32 {v(t3)}, 3, {v(t0)}\nv_lshl_add_u32 {v(t3)}, {v(t1)}, 2, {v(t3)}\nv_add_u32 {v(t3)}, {s(sT)}, {v(t3)}")
    p(f"s_lshl_b32 {s(sT+1)}, {s(sCT)}, 7\nv_lshl_add_u32 {v(vSHa)}, {v(t2)}, 4, {s(sT+1)}")
    p(f"v_lshl_add_u32 {v(vKV)}, {v(t3)}, 11, {v(vSHa)}\nv_lshl_add_u32 {v(vOUT)}, {v(t3)}, 12, {v(vSHa)}")
    p(f"v_subrev_u32 {v(vKM)}, 6144, {v(vKV)}\nv_lshlrev_b32 {v(vSHa)}, 2, {v(vSHa)}")
    p(f"v_bfe_u32 {v(t3)}, v0, 2, 1\nv_lshlrev_b32 {v(t3)}, 1, {v(t3)}\nv_add_u32 {v(t3)}, {v(t3)}, {v(t1)}\nv_lshlrev_b32 {v(t3)}, 16, {v(t3)}")
    p(f"v_lshl_add_u32 {v(t3)}, {v(t0)}, 6, {v(t3)}\nv_and_b32 {v(t2)}, 3, v0\nv_lshl_add_u32 {v(t3)}, {v(t2)}, 4, {v(t3)}")
    p(f"s_lshl_b32 {s(sT)}, {s(sT)}, 3\ns_lshl_b32 {s(sT+1)}, {s(sCT)}, 18\ns_add_u32 {s(sT)}, {s(sT)}, {s(sT+1)}\nv_add_u32 {v(vST)}, {s(sT)}, {v(t3)}")
    p(f"s_lshl_b32 {s(sGRP)}, {s(sCT)}, 4\ns_add_u32 {s(sGRP)}, {s(sGRP)}, {s(sM)}")
    p(f"s_lshr_b32 {s(sT)}, {s(sGRP)}, 3\ns_lshl_b32 {s(sT)}, {s(sT)}, 5\ns_and_b32 {s(sT+1)}, {s(sGRP)}, 7\ns_add_u32 {s(sT)}, {s(sT)}, {s(sT+1)}")
    p(f"s_lshl_b32 {s(sT+1)}, {s(wa)}, 3\ns_add_u32 {s(sCH)}, {s(sT)}, {s(sT+1)}\ns_lshl_b32 {s(sGRP)}, {s(sGRP)}, 14")
    p(f"s_lshr_b32 {s(sT)}, {s(sCH)}, 1\ns_lshl_b32 {s(sT)}, {s(sT)}, 2\ns_lshl_b32 {s(sT+1)}, {s(sCH)}, 12")
    p(f"s_load_dword {s(sD)}, {s(pD,2)}, {s(sT)}\ns_load_dword {s(sH0)}, {s(pH,2)}, {s(sT+1)}")
    p(f"s_mul_i32 {s(sHBW)}, {s(wa)}, {HS}\ns_add_u32 {s(sHBW)}, {s(sHBW)}, {HB}\ns_lshl_b32 {s(sWA16)}, {s(wa)}, 14\ns_mov_b32 {s(s4096)}, 4096")
    p(f"v_bfe_u32 {v(t0)}, v0, 2, 2\nv_lshlrev_b32 {v(t0)}, 1, {v(t0)}\nv_lshl_add_u32 {v(t0)}, {v(t1)}, 3, {v(t0)}\nv_bfe_u32 {v(t3)}, v0, 4, 1\nv_add_u32 {v(t0)}, {v(t0)}, {v(t3)}")
    p(f"s_and_b32 {s(sT)}, {s(wa)}, 1\ns_lshl_b32 {s(sT)}, {s(sT)}, 1\nv_add_u32 {v(t3)}, {s(sT)}, {v(t1)}\nv_xor_b32 {v(t3)}, {v(t3)}, {v(t2)}\nv_lshlrev_b32 {v(t3)}, 4, {v(t3)}")
    p(f"v_lshl_add_u32 {v(t0)}, {v(t0)}, 6, {v(t3)}\nv_add_u32 {v(vXI)}, {s(sMW)}, {v(t0)}")
    p(f"v_lshlrev_b32 {v(vL16)}, 4, v0\nv_add_u32 {v(vL16o)}, 2, {v(vL16)}")
    p(f"v_lshrrev_b32 {v(t0)}, 4, v0\nv_lshlrev_b32 {v(t0)}, 1, {v(t0)}\nv_and_b32 {v(t3)}, 7, v0\nv_xor_b32 {v(t0)}, {v(t0)}, {v(t3)}\nv_lshlrev_b32 {v(t0)}, 4, {v(t0)}")
    p(f"v_lshrrev_b32 {v(t3)}, 3, v0\nv_lshl_add_u32 {v(t0)}, {v(t3)}, 11, {v(t0)}\ns_lshl_b32 {s(sT)}, {s(sCB)}, 7\nv_add_u32 {v(vWO)}, {s(sT)}, {v(t0)}")
    p(f"v_mov_b32 {v(vCNT)}, {CNT}\nv_mov_b32 {v(vONE)}, 1")

    def addr_setup():
        L = []
        L += f"v_and_b32 {v(t0)}, 15, v0\nv_lshrrev_b32 {v(t1)}, 4, v0\nv_add_u32 {v(t2)}, 9, {v(t0)}\nv_and_b32 {v(t3)}, 1, {v(t2)}\nv_mul_u32_u24 {v(t3)}, 4160, {v(t3)}".split("\n")
        L += f"v_lshrrev_b32 {v(t2)}, 1, {v(t2)}\nv_lshl_add_u32 {v(t3)}, {v(t2)}, 2, {v(t3)}\nv_lshlrev_b32 {v(t2)}, 4, {v(t1)}\nv_sub_u32 {v(t3)}, {v(t3)}, {v(t2)}".split("\n")
        L += [f"s_add_u32 {s(sT)}, {s(sHBW)}, 32", f"v_add_u32 {v(vAB)}, {s(sT)}, {v(t3)}"]
        L += [f"v_add_u32 {v(vAB+k)}, {1024*k}, {v(vAB)}" for k in range(1, 4)]
        def ximg(dst):
            return f"""v_lshrrev_b32 {v(t3)}, 3, {v(t2)}
v_and_b32 {v(dst)}, 3, {v(t3)}
v_xor_b32 {v(dst)}, {s(wa)}, {v(dst)}
v_lshl_add_u32 {v(dst)}, {v(t3)}, 5, {v(dst)}
v_and_b32 {v(t3)}, 1, {v(t2)}
v_lshl_add_u32 {v(dst)}, {v(t3)}, 4, {v(dst)}
v_bfe_u32 {v(t3)}, {v(t2)}, 1, 2
v_lshl_add_u32 {v(dst)}, {v(t3)}, 2, {v(dst)}
v_lshlrev_b32 {v(dst)}, 4, {v(dst)}
v_add_u32 {v(dst)}, {XIMG}, {v(dst)}""".split("\n")
        for n in range(8):
            L += [f"v_lshl_add_u32 {v(t2)}, {v(t0)}, 1, {v(t1)}", f"v_add_u32 {v(t2)}, {30-4*n}, {v(t2)}"] + ximg(vBB + n)
        L += [f"v_lshrrev_b32 {v(t2)}, 1, {v(t1)}", f"v_lshl_add_u32 {v(t2)}, {v(t0)}, 1, {v(t2)}", f"v_add_u32 {v(t2)}, 32, {v(t2)}"] + ximg(vEP)
        L += [f"v_and_b32 {v(t3)}, 1, {v(t1)}", f"v_xor_b32 {v(t3)}, 1, {v(t3)}", f"v_lshl_add_u32 {v(vEP)}, {v(t3)}, 3, {v(vEP)}"]
        return L

    Kr, Vr, SHr, G = 40, 68, 84, 100
    Ku, Vu, Wu, Ac = 116, 123, 127, 131
    def p1_loads():
        L = []
        for i in range(4): L.append(Ins(f"buffer_load_dwordx4 {v(SHr+4*i,4)}, {v(vSHa)}, {s(rSH,4)}, 0 offen offset:{16*i}", "p1ld"))
        for j in range(7):
            base, jj = (vKM, j) if j < 3 else (vKV, j - 3)
            L.append(Ins(f"buffer_load_dwordx4 {v(Kr+4*j,4)}, {v(base)}, {s(rK,4)}, {s(s4096) if jj >= 2 else 0} offen offset:{2048*(jj&1)} {cfg.nt_in}", "p1ld"))
        for j in range(4):
            L.append(Ins(f"buffer_load_dwordx4 {v(Vr+4*j,4)}, {v(vKV)}, {s(rV,4)}, {s(s4096) if j >= 2 else 0} offen offset:{2048*(j&1)} {cfg.nt_in}", "p1ld"))
        return L
    def unp(dst, src, hi):
        return f"v_and_b32 {v(dst)}, 0xffff0000, {v(src)}" if hi else f"v_lshlrev_b32 {v(dst)}, 16, {v(src)}"
    def p1_chan(c):
        L = []; d, hi = c >> 1, c & 1
        for j in range(7): L.append(unp(Ku + j, Kr + 4 * j + d, hi))
        for t in range(4): L.append(unp(Wu + t, SHr + 2 * c + (t >> 1), t & 1))
        for j in range(4): L.append(unp(Vu + j, Vr + 4 * j + d, hi))
        for j in range(4): L.append(f"v_mul_f32 {v(Ac+j)}, {v(Ku+j)}, {v(Wu+3)}")
        for t in (2, 1, 0):
            for j in range(4): L.append(f"v_fmac_f32 {v(Ac+j)}, {v(Ku+j+3-t)}, {v(Wu+t)}")
        for j in range(4): L.append(f"v_mul_f32 {v(Ac+j)}, {v(Ac+j)}, {v(Vu+j)}")
        dst = G + 4 * (c & 3) + (2 if c < 4 else 0)
        L.append(f"v_cvt_pk_bf16_f32 {v(dst)}, {v(Ac+3)}, {v(Ac+2)}")
        L.append(f"v_cvt_pk_bf16_f32 {v(dst+1)}, {v(Ac+1)}, {v(Ac+0)}")
        return L
    def swaps():
        return [f"v_permlane32_swap_b32 {v(G+4*c+2+d)}, {v(G+4*c+d)}" for c in range(4) for d in range(2)]
    def p1_store():
        L = swaps()
        for c in range(4):
            L.append(f"s_mov_b32 {s(sSO)}, {WS_KV + c*16384}")
            L.append(Ins(f"buffer_store_dwordx4 {v(G+4*c,4)}, {v(vST)}, {s(rWS,4)}, {s(sSO)} offen sc1", "kvst"))
        return L
    def h_dma(odd):
        L = [f"s_add_u32 m0, {s(sHBW)}, {32 + 4160*odd}", f"s_lshl_b32 {s(sSO)}, {s(sCH)}, 12"]
        for n in range(4):
            L.append(Ins(f"buffer_load_dwordx4 {v(vL16o if odd else vL16)}, {s(rH,4)}, {s(sSO)} offen offset:{1024*n} {'' if odd == 0 else cfg.nt_in} lds", "hld"))
        return L
    def h_pad():
        return f"""s_waitcnt lgkmcnt(0)
s_lshl_b32 {s(sH0)}, {s(sH0)}, 16
s_and_b32 {s(sT)}, {s(sD)}, 0xffff0000
s_lshl_b32 {s(sD)}, {s(sD)}, 16
s_bitcmp1_b32 {s(sCH)}, 0
s_cselect_b32 {s(sD)}, {s(sT)}, {s(sD)}
v_lshrrev_b32 {v(t0)}, 3, v0
v_mul_u32_u24 {v(t0)}, 4160, {v(t0)}
v_and_b32 {v(t1)}, 7, v0
v_lshl_add_u32 {v(t0)}, {v(t1)}, 2, {v(t0)}
v_add_u32 {v(t0)}, {s(sHBW)}, {v(t0)}
v_mov_b32 {v(t1)}, 0
v_writelane_b32 {v(t1)}, {s(sH0)}, 15
s_mov_b64 exec, 0xffff
ds_write_b32 {v(t0)}, {v(t1)}
s_mov_b64 exec, -1""".split("\n")

    side = {c: [] for c in range(16)}
    side[0] = p1_loads() + addr_setup()
    side[1] = h_pad()
    for i, c in enumerate(range(3, 7)): side[c] = p1_chan(2 * i) + p1_chan(2 * i + 1)
    side[6] += p1_store()
    side[7] = h_dma(0); side[8] = h_dma(1)
    KVFLAG_BAR = 9
    for c in range(16):
        p.wait_vm(f"ch{c}")
        if c == KVFLAG_BAR: p.wait_vm("kvst")
        p("s_barrier")
        if c in (0, 1, 4, 8, 12, 15): st(p, f"A.bar{c}")
        if c >= 1 and c + 2 <= 15: p(chunk(c + 2))
        if c == 14:
            for nn in range(4):
                p(dma(sMW, XIMG + 2048 + nn * 4096, vXI, rWS, (sGRP, WS_KV + nn * 4096), "sc1", "xi"))
            p(f"v_lshlrev_b32 {v(t0)}, 3, v0\ns_add_u32 {s(sT)}, {s(sMH)}, {XS}\nv_add_u32 {v(t0)}, {s(sT)}, {v(t0)}\nv_mov_b32 {v(t1)}, 0\nv_mov_b32 {v(t2)}, 0")
            p(f"ds_write_b64 {v(t0)}, {v(t1,2)}")
        p(side[c])
    p("s_waitcnt vmcnt(0) lgkmcnt(0)\ns_barrier")
    st(p, "A.bar15b")
    ACC = 36; FA = [68, 132]; FB = [100, 164]
    def conv_reads(n):
        k = n & 1; L = []
        def ra(nu):
            o = 16 * n + 128 * (nu & 1)
            return [f"ds_read2_b32 {v(FA[k]+4*nu,2)}, {v(vAB+(nu>>1))} offset0:{o} offset1:{o+1}",
                    f"ds_read2_b32 {v(FA[k]+4*nu+2,2)}, {v(vAB+(nu>>1))} offset0:{o+2} offset1:{o+3}"]
        def rb(ka): return [f"ds_read_b128 {v(FB[k]+4*ka,4)}, {v(vBB+n)} offset:{2048*ka}"]
        for i in range(8): L += ra(i) + rb(i)
        return L
    def conv_mfma(n):
        k = n & 1; L = []
        for nu in range(8):
            for ka in range(8 - nu):
                a = v(ACC + 4 * (nu + ka), 4)
                c = "0" if (n == 0 and nu == 0) else a
                L.append(f"v_mfma_f32_16x16x32_bf16 {a}, {v(FA[k]+4*nu,4)}, {v(FB[k]+4*ka,4)}, {c}")
        return L
    wo1 = []
    for stp in range(24): wo1 += dma(sMW, wo_loc(stp), vWO, rWO, (sWA16, stp * 65536), cfg.pol_wo, "wo1")
    p(conv_reads(0)); p(wo1)
    KVr = 196
    for n in range(8):
        p("s_waitcnt lgkmcnt(0)")
        if n < 7: fill = conv_reads(n + 1)
        else:
            fill = [f"s_lshl_b32 {s(sT+2)}, {s(wa)}, 17"]
            for o in range(8): fill += dma(sHBW, o * 1024, vWO, rWO, (sT + 2, (768 + 8 * o) * 2048), cfg.pol_wo, "wo2")
            fill += [f"ds_read_b64 {v(KVr+2*t,2)}, {v(vEP)} offset:{2048*t}" for t in range(8)]
        p(weave(conv_mfma(n), fill, per_gap=1))
        if n == 4:
            p.wait_vm("wo1"); lds_arrive(p, vCNT, S2, vONE)
    st(p, "A.convend")
    U = 68
    for t in range(8):
        a = ACC + 4 * t; kq = KVr + 2 * t; u = U + 4 * (t & 1)
        p([unp(u + 3, kq, 0), unp(u + 2, kq, 1), unp(u + 1, kq + 1, 0), unp(u + 0, kq + 1, 1)])
        for r in range(4): p(f"v_fmac_f32 {v(a+r)}, {s(sD)}, {v(u+r)}")
        p(f"v_cvt_pk_bf16_f32 {v(kq)}, {v(a+3)}, {v(a+2)}\nv_cvt_pk_bf16_f32 {v(kq+1)}, {v(a+1)}, {v(a+0)}")
        p(f"ds_write_b64 {v(vEP)}, {v(kq,2)} offset:{2048*t}")
    lds_arrive(p, vCNT, S3, vONE)
    YR = 76
    p(f"s_add_u32 {s(sT+2)}, {s(sMW)}, {XIMG+2048}\nv_add_u32 {v(t0)}, {s(sT+2)}, {v(vL16)}")
    lds_wait(p, "LA_s3", vCNT, S3, 4, t1, extra=[f"ds_read_b128 {v(YR+4*nn,4)}, {v(t0)} offset:{4096*nn}" for nn in range(4)])
    for nn in range(4):
        p(f"s_add_u32 {s(sSO)}, {s(sGRP)}, {WS_Y + nn*4096}")
        p(f"buffer_store_dwordx4 {v(YR+4*nn,4)}, {v(vXI)}, {s(rWS,4)}, {s(sSO)} offen sc1", "yst")
    Qr, Qu = 116, 132
    for j in range(4):
        p(f"buffer_load_dwordx4 {v(Qr+4*j,4)}, {v(vKV)}, {s(rQ,4)}, {s(s4096) if j >= 2 else 0} offen offset:{2048*(j&1)} {cfg.nt_in}", "qld")
    st(p, "A.ystiss")
    p.wait_vm("wo2"); lds_arrive(p, vCNT, S4, vONE)
    p(f"s_lshl_b32 {s(sT+2)}, {s(sCT)}, 2\ns_add_u32 {s(sT+3)}, {s(sT+2)}, {s(wa)}\ns_lshl_b32 {s(sT+3)}, {s(sT+3)}, 8\ns_lshl_b32 {s(sT+4)}, {s(sM)}, 2\ns_add_u32 {s(sT+3)}, {s(sT+3)}, {s(sT+4)}\ns_add_u32 {s(sT+3)}, {s(sT+3)}, {F_Y}")
    p(f"s_and_b32 {s(sT+4)}, {s(sM)}, 3\ns_add_u32 {s(sT+2)}, {s(sT+2)}, {s(sT+4)}\ns_lshl_b32 {s(sT+2)}, {s(sT+2)}, 8\ns_add_u32 {s(sT+2)}, {s(sT+2)}, {F_Y}")
    p(f"v_mov_b32 {v(t0)}, 0\nv_and_b32 {v(t2)}, 15, v0\nv_lshlrev_b32 {v(t2)}, 2, {v(t2)}")
    p.wait_vm("yst")
    p(f"s_mov_b64 exec, 1\nbuffer_store_dword {v(vONE)}, {v(t0)}, {s(rWS,4)}, {s(sT+3)} offen sc1\ns_mov_b64 exec, -1")
    st(p, "A.yflag")
    for j in range(4):
        for c in range(8): p(unp(Qu + 8 * j + c, Qr + 4 * j + (c >> 1), c & 1))
    gpoll(p, cfg, "LA_py", rWS, t2, s(sT + 2), 1, t1)
    st(p, "A.ypoll")
    for c in range(4):
        p(f"s_mov_b32 {s(sSO)}, {WS_Y + c*16384}")
        p(f"buffer_load_dwordx4 {v(G+4*c,4)}, {v(vST)}, {s(rWS,4)}, {s(sSO)} offen sc1")
    p(swaps())
    OR = 36; T = 68
    for j in range(4):
        for c in range(8):
            src = G + 4 * (c & 3) + (2 if c < 4 else 0) + (0 if j >= 2 else 1)
            p(unp(T + c, src, 1 - (j & 1)))
        for c in range(8): p(f"v_mul_f32 {v(T+c)}, {v(T+c)}, {v(Qu+8*j+c)}")
        for d in range(4): p(f"v_cvt_pk_bf16_f32 {v(OR+4*j+d)}, {v(T+2*d)}, {v(T+2*d+1)}")
        p(f"s_mov_b32 {s(sSO)}, {4096*j}")
        p(f"buffer_store_dwordx4 {v(OR+4*j,4)}, {v(vOUT)}, {s(rOUT,4)}, {s(sSO)} offen {cfg.pol_out}")
    st(p, "A.outiss")
    if cfg.diag:
        p("s_waitcnt vmcnt(0)"); st(p, "A.end"); st(p, "A.real1", real=True); st.dump(p, t0, 0)
    p("s_endpgm")
    p.kvflag_bar = KVFLAG_BAR; p.names = st.names
    return p

def gen_B(cfg, kvflag_bar):
    p = Prog(); slow = Prog(); st = Stamper(cfg, 255)
    wb = sWV
    p("L_B:")
    p(f"s_setprio {cfg.prioB}\ns_and_b32 {s(wb)}, {s(wb)}, 3")
    st(p, "B.real0", real=True); st(p, "B.start")
    sTH, sHH = 86, 87
    mPar, mLe0, mLe1 = 88, 90, 92
    sOB, sSO, sFK = 94, 95, 96
    vXh, vXo, vWq, vWv = 2, 4, 6, 8
    vCNT, vONE, vL16 = 10, 11, 12
    t0, t1, t2 = 13, 14, 15
    ACC = 16
    accQ = lambda t, u: ACC + 8 * t + 4 * u
    accK = lambda t, u: ACC + 32 + 8 * t + 4 * u
    accV = lambda t, u: ACC + 64 + 8 * t + 4 * u
    accHK, accHV = ACC + 96, ACC + 100
    FS = [120, 164]
    fx = lambda k, t: FS[k] + 4 * t
    fw = lambda k, part, u: FS[k] + 20 + 8 * part + 4 * u
    SEL, NEG, vEh, vE3, vEr, vPO, vFA = 208, 212, 216, 217, 218, 220, 221
    t3, t4 = 222, 223
    p(f"s_lshr_b32 {s(sTH)}, {s(wb)}, 1\ns_and_b32 {s(sHH)}, {s(wb)}, 1")
    p(f"v_mov_b32 {v(vCNT)}, {CNT}\nv_mov_b32 {v(vONE)}, 1\nv_lshlrev_b32 {v(vL16)}, 4, v0")
    p(f"v_lshl_add_u32 {v(t0)}, v0, 2, {v(vCNT)}\nv_mov_b32 {v(t1)}, 0\nds_write_b32 {v(t0)}, {v(t1)}")
    p(f"s_lshl_b32 {s(sT)}, {s(sM)}, 2\ns_lshl_b32 {s(sFK)}, {s(sCT)}, 8\ns_add_u32 {s(sFK)}, {s(sFK)}, {F_KV}\ns_add_u32 {s(sT+1)}, {s(sFK)}, {s(sT)}")
    p(f"s_lshl_b32 {s(sT+2)}, {s(sCT)}, 2\ns_add_u32 {s(sT+2)}, {s(sT+2)}, {s(wb)}\ns_lshl_b32 {s(sT+2)}, {s(sT+2)}, 8\ns_add_u32 {s(sT+2)}, {s(sT+2)}, {s(sT)}\ns_add_u32 {s(sT+2)}, {s(sT+2)}, {F_Y}")
    p(f"s_lshl_b32 {s(sT+3)}, {s(sRB)}, 1\ns_add_u32 {s(sT+3)}, {s(sT+3)}, {s(sTH)}\ns_lshl_b32 {s(sT+3)}, {s(sT+3)}, 8")
    p(f"s_lshl_b32 {s(sT+4)}, {s(sHG)}, 1\ns_add_u32 {s(sT+4)}, {s(sT+4)}, {s(sHH)}")
    p(f"s_lshl_b32 {s(sT)}, {s(sT+4)}, 2\ns_add_u32 {s(sT+3)}, {s(sT+3)}, {s(sT)}\ns_add_u32 {s(sT+3)}, {s(sT+3)}, {F_O}")
    p(f"v_mov_b32 {v(vFA)}, {s(sT+1)}\nv_writelane_b32 {v(vFA)}, {s(sT+2)}, 1\nv_writelane_b32 {v(vFA)}, {s(sT+3)}, 2")
    p(f"s_lshl_b32 {s(sT)}, {s(sRB)}, 1\ns_add_u32 {s(sT)}, {s(sT)}, {s(sTH)}\ns_lshl_b32 {s(sT)}, {s(sT)}, 7\ns_add_u32 {s(sT)}, {s(sT)}, {s(sT+4)}\ns_lshl_b32 {s(sOB)}, {s(sT)}, 10\ns_add_u32 {s(sOB)}, {s(sOB)}, {WS_O}")
    p("s_waitcnt lgkmcnt(0)")
    srd(p, rWS, pWS, 16 << 20); srd(p, rDBG, pDBG, 256); srd(p, rOUT, pOUT, 8 << 20)
    p(f"s_mov_b64 exec, 7\nbuffer_store_dword {v(t1)}, {v(vFA)}, {s(rWS,4)}, 0 offen sc1\ns_mov_b64 exec, -1")
    if cfg.codepf:
        p(f"s_getpc_b64 {s(sT+2,2)}\nLB_pc:")
        p(f"s_sub_u32 {s(sT+2)}, {s(sT+2)}, LB_pc-{NAME}_kernel\ns_subb_u32 {s(sT+3)}, {s(sT+3)}, 0")
        p(f"s_lshr_b32 {s(sT)}, s2, 3\ns_and_b32 {s(sT)}, {s(sT)}, 7\ns_lshl_b32 {s(sT)}, {s(sT)}, 2\ns_add_u32 {s(sT)}, {s(sT)}, {s(wb)}")
        p(f"v_lshlrev_b32 {v(t0)}, 5, v0\nv_add_u32 {v(t0)}, {s(sT)}, {v(t0)}\nv_lshlrev_b32 {v(t0)}, 7, {v(t0)}")
        p(f"v_cmp_gt_u32 vcc, L_end-{NAME}_kernel, {v(t0)}\ns_and_saveexec_b64 {s(sT+4,2)}, vcc")
        p(f"global_load_dword {v(t3)}, {v(t0)}, {s(sT+2,2)}\ns_mov_b64 exec, -1")
    c_, g_ = t0, t1
    p(f"v_and_b32 {v(c_)}, 15, v0\nv_lshrrev_b32 {v(g_)}, 4, v0")
    p(f"v_lshrrev_b32 {v(t2)}, 1, {v(c_)}\nv_xor_b32 {v(t2)}, {v(t2)}, {v(g_)}\nv_lshlrev_b32 {v(t2)}, 4, {v(t2)}\nv_lshl_add_u32 {v(t2)}, {v(c_)}, 7, {v(t2)}")
    p(f"v_add_u32 {v(vXh)}, {XR}, {v(t2)}\nv_xor_b32 {v(vXh+1)}, 64, {v(vXh)}")
    p(f"s_lshl_b32 {s(sT)}, {s(sTH)}, 13\ns_add_u32 {s(sT)}, {s(sT)}, 2048\nv_add_u32 {v(vXo)}, {s(sT)}, {v(vXh)}\nv_add_u32 {v(vXo+1)}, {s(sT)}, {v(vXh+1)}")
    p(f"v_bfe_u32 {v(t2)}, v0, 3, 2")
    p(f"s_lshl_b32 {s(sT)}, {s(sHH)}, 1\ns_add_u32 {s(sT)}, {s(sT)}, {s(sTH)}\nv_xor_b32 {v(t2)}, {s(sT)}, {v(t2)}\nv_lshlrev_b32 {v(t2)}, 5, {v(t2)}")
    p(f"v_and_b32 {v(t4)}, 3, v0\nv_lshl_add_u32 {v(t2)}, {v(t4)}, 3, {v(t2)}\nv_bfe_u32 {v(t4)}, v0, 2, 2\nv_lshl_add_u32 {v(t2)}, {v(t4)}, 7, {v(t2)}")
    p(f"v_lshl_add_u32 {v(vWq)}, {v(g_)}, 10, {v(t2)}\nv_xor_b32 {v(vWq+1)}, 32, {v(vWq)}\nv_add_u32 {v(vWv)}, 49152, {v(vWq)}\nv_add_u32 {v(vWv+1)}, 49152, {v(vWq+1)}")
    p(f"v_and_b32 {v(t2)}, 1, {v(c_)}\nv_cmp_eq_u32 {s(mPar,2)}, 1, {v(t2)}")
    p(f"v_lshl_add_u32 {v(t2)}, {v(g_)}, 2, {v(t2)}\nv_cmp_le_u32 {s(mLe0,2)}, {v(t2)}, {v(c_)}\nv_add_u32 {v(t2)}, 2, {v(t2)}\nv_cmp_le_u32 {s(mLe1,2)}, {v(t2)}, {v(c_)}")
    p(f"v_mov_b32 {v(NEG)}, 0x0c0c0c0c")
    for j, m in ((0, mLe0), (1, mLe1)):
        lo = 0x0c0c0000 | ((2*j+1) << 8) | (2*j); hi = ((2*j+1) << 24) | ((2*j) << 16) | 0x0c0c
        p(f"v_mov_b32 {v(t2)}, {hex(lo)}\nv_mov_b32 {v(t4)}, {hex(hi)}\nv_cndmask_b32 {v(t2)}, {v(t2)}, {v(t4)}, {s(mPar,2)}")
        p(f"v_cndmask_b32 {v(SEL+j)}, {v(t2)}, {v(NEG)}, {s(m,2)}\nv_cndmask_b32 {v(SEL+2+j)}, {v(NEG)}, {v(t2)}, {s(m,2)}")
    p(f"s_or_b32 {s(sT)}, {s(sRB)}, {s(sTH)}\ns_cmp_eq_u32 {s(sT)}, 0\ns_cselect_b32 {s(sT)}, {hex(f2u(-1e30))}, 0")
    for r in range(4): p(f"v_mov_b32 {v(NEG+r)}, {s(sT)}")
    p(f"s_lshl_b32 {s(sT)}, {s(sHH)}, 12\ns_add_u32 {s(sT)}, {s(sT)}, {EXCH}\ns_lshl_b32 {s(sT+1)}, {s(sTH)}, 9\ns_add_u32 {s(sT+1)}, {s(sT+1)}, {s(sT)}")
    p(f"v_lshlrev_b32 {v(t2)}, 3, v0\nv_add_u32 {v(vEh)}, {s(sT+1)}, {v(t2)}")
    p(f"s_lshl_b32 {s(sT+2)}, {s(sTH)}, 11\nv_add_u32 {v(vEr)}, {s(sT+2)}, {v(vEh)}\nv_xor_b32 {v(vEr+1)}, 512, {v(vEr)}")
    p(f"s_add_u32 {s(sT)}, {s(sT)}, 2048\ns_cmp_eq_u32 {s(sTH)}, 0\ns_cselect_b32 {s(sT)}, {s(sT)}, {EXCH+8192}\nv_add_u32 {v(vE3)}, {s(sT)}, {v(t2)}")

    def reads(c, ks):
        k = ks; sl = c % 3; L = []
        X = [f"ds_read_b128 {v(fx(k,t),4)}, {v(vXo+ks)} offset:{sl*XS + 2048*t}" for t in range(4)]
        X.append(f"ds_read_b128 {v(fx(k,4),4)}, {v(vXh+ks)} offset:{sl*XS}")
        W = []
        for part in range(3):
            for u in range(2):
                for j in range(2):
                    base = (vWv if part == 2 else vWq) + u
                    off = (part & 1) * 24576 + sl * 8192 + ks * 4096 + j * 512
                    W.append(f"ds_read_b64_tr_b16 {v(fw(k,part,u)+2*j,2)}, {v(base)} offset:{off}")
        return X + W
    def mfmas(k, first, last=False):
        def mm(a, A, B): return f"v_mfma_f32_16x16x32_bf16 {v(a,4)}, {v(A,4)}, {v(B,4)}, {'0' if first else v(a,4)}"
        H = [mm(accHK, fw(k,1,0), fx(k,4)), mm(accHV, fx(k,4), fw(k,2,0))]
        Q = lambda t: [mm(accQ(t,u), fw(k,0,u), fx(k,t)) for u in range(2)]
        K = lambda t: [mm(accK(t,u), fw(k,1,u), fx(k,t)) for u in range(2)]
        V = lambda t: [mm(accV(t,u), fx(k,t), fw(k,2,u)) for u in range(2)]
        return H + K(3) + V(3) + Q(3) + K(2) + Q(2) + K(1) + Q(1) + K(0) + Q(0) + V(2) + V(1) + V(0)

    p("s_waitcnt lgkmcnt(0)\ns_barrier")
    st(p, "B.bar0")
    p(reads(0, 0))
    vP = t3
    for c in range(16):
        p("s_waitcnt lgkmcnt(0)")
        extra = []
        if c == 9:
            extra = [f"v_and_b32 {v(t4)}, 1, v0", f"v_lshlrev_b32 {v(t4)}, 7, {v(t4)}", f"buffer_load_dword {v(vP)}, {v(t4)}, {s(rDBG,4)}, 0 offen sc1"]
        if c == 12:
            extra = [f"v_and_b32 {v(t4)}, 15, v0", f"v_lshlrev_b32 {v(t4)}, 2, {v(t4)}", f"buffer_load_dword {v(vP)}, {v(t4)}, {s(rWS,4)}, {s(sFK)} offen sc1"]
        p(weave(mfmas(0, c == 0), reads(c, 1) + extra, per_gap=1))
        if c == 0: p("s_waitcnt vmcnt(0)")
        if c in (11, 13):
            want = 128 if c == 11 else 1
            p(f"s_waitcnt vmcnt(0)\nv_cmp_{'gt' if want > 1 else 'ne'}_u32 vcc, {want}, {v(vP)}\ns_cbranch_vccnz LB_slow{c}\nLB_back{c}:")
            slow(f"LB_slow{c}:")
            if c == 11: gpoll(slow, cfg, "LB_pc11", rDBG, t4, "0", 128, vP)
            else: gpoll(slow, cfg, "LB_pk13", rWS, t4, s(sFK), 1, vP)
            slow(f"s_branch LB_back{c}")
        p("s_waitcnt lgkmcnt(0)\ns_barrier")
        if c in (0, 3, 7, 11, 15): st(p, f"B.bar{c+1}")
        if c + 1 == 1 or c + 1 == kvflag_bar:
            lab = f"LB_sk{c+1}"
            p(f"s_cmp_lg_u32 {s(wb)}, 0\ns_cbranch_scc1 {lab}\ns_mov_b64 exec, 1")
            if c + 1 == 1:
                p(f"s_and_b32 {s(sT)}, s2, 1\ns_lshl_b32 {s(sT)}, {s(sT)}, 7\nv_mov_b32 {v(t4)}, {s(sT)}")
                p(f"buffer_atomic_add {v(vONE)}, {v(t4)}, {s(rDBG,4)}, 0 offen sc1")
            else:
                p(f"buffer_store_dword {v(vONE)}, {v(vFA)}, {s(rWS,4)}, 0 offen sc1")
            p(f"s_mov_b64 exec, -1\n{lab}:")
        if c < 15: p(weave(mfmas(1, False), reads(c + 1, 0), per_gap=1))
    Qp = lambda t: 120 + 4 * t
    Kp = lambda t: 136 + 4 * (t + 1)
    Vp = lambda u, t: 224 + 10 * u + 2 * (t + 1)
    Hp = 156
    def pk(dst, a): return [f"v_cvt_pk_bf16_f32 {v(dst)}, {v(a)}, {v(a+1)}", f"v_cvt_pk_bf16_f32 {v(dst+1)}, {v(a+2)}, {v(a+3)}"]
    M = mfmas(1, False)
    fill = pk(Hp, accHK) + pk(Hp + 2, accHV)
    for u in range(2): fill += pk(Kp(3) + 2 * u, accK(3, u))
    for u in range(2): fill += pk(Vp(u, 3), accV(3, u))
    fill += [f"ds_write_b64 {v(vEh)}, {v(Hp,2)}", f"ds_write_b64 {v(vEh)}, {v(Hp+2,2)} offset:1024"]
    for u in range(2):
        fill += [f"ds_write_b64 {v(vE3)}, {v(Kp(3)+2*u,2)} offset:{512*u}", f"ds_write_b64 {v(vE3)}, {v(Vp(u,3),2)} offset:{1024+512*u}"]
    p(f"s_lshl_b32 {s(sT)}, {s(sHH)}, 2\nv_add_u32 {v(t0)}, {s(sT)}, {v(vCNT)}")
    for t in (3,):
        for u in range(2): fill += pk(Qp(t) + 2 * u, accQ(t, u))
    for t in (2, 1):
        for u in range(2): fill += pk(Kp(t) + 2 * u, accK(t, u))
        for u in range(2): fill += pk(Qp(t) + 2 * u, accQ(t, u))
    p(weave(M, fill, per_gap=2, start=9))
    lds_arrive(p, t0, S1, vONE)
    st(p, "B.T0")
    for u in range(2): p(pk(Kp(0) + 2 * u, accK(0, u)))
    for u in range(2): p(pk(Qp(0) + 2 * u, accQ(0, u)))
    Sp = lambda t: ACC + 8 * t; Sc = lambda t: ACC + 8 * t + 4
    def smm(d, kt, qt, c="0"): return f"v_mfma_f32_16x16x32_bf16 {v(d,4)}, {v(Kp(kt),4)}, {v(Qp(qt),4)}, {c}"
    SM = [smm(Sc(3), 3, 3), smm(Sp(3), 2, 3), smm(Sc(2), 2, 2), smm(Sp(2), 1, 2), smm(Sc(1), 1, 1), smm(Sp(1), 0, 1), smm(Sc(0), 0, 0)]
    fill = []
    for t in (2, 1, 0):
        for u in range(2): fill += pk(Vp(u, t), accV(t, u))
    p(weave(SM, fill, per_gap=2))
    ex = [f"ds_read_b64 {v(Kp(-1)+2*u,2)}, {v(vEr+u)}" for u in range(2)] + [f"ds_read_b64 {v(Vp(u,-1),2)}, {v(vEr+u)} offset:1024" for u in range(2)]
    lds_wait(p, "LB_s1", t0, S1, 2, t1, extra=ex)
    p(smm(Sp(0), -1, 0, v(NEG, 4)))
    Xv = lambda t, j: ACC + 32 + 2 * t + j
    Mx = lambda t: ACC + 40 + t
    Tm = ACC + 44
    for t in (3, 2, 1, 0):
        for j, m in ((0, mLe0), (1, mLe1)):
            p(f"v_cndmask_b32 {v(Tm)}, {v(Sc(t)+2*j)}, {v(Sc(t)+2*j+1)}, {s(mPar,2)}")
            p(f"v_cndmask_b32 {v(Tm+1)}, {v(Sp(t)+2*j)}, {v(Sp(t)+2*j+1)}, {s(mPar,2)}")
            p(f"v_cndmask_b32 {v(Xv(t,j))}, {v(Tm+1)}, {v(Tm)}, {s(m,2)}")
        p(f"v_max_f32 {v(Mx(t))}, {v(Xv(t,0))}, {v(Xv(t,1))}")
    def allred(op, mid):
        m0, m1, m2, m3 = (Mx(t) for t in range(4))
        p(f"v_permlane32_swap_b32 {v(m2)}, {v(m3)}\nv_permlane32_swap_b32 {v(m0)}, {v(m1)}")
        p(f"{op} {v(m2)}, {v(m2)}, {v(m3)}\n{op} {v(m0)}, {v(m0)}, {v(m1)}")
        p(f"v_permlane16_swap_b32 {v(m0)}, {v(m2)}\n{op} {v(m0)}, {v(m0)}, {v(m2)}")
        p(mid(m0))
        p(f"v_mov_b32 {v(m2)}, {v(m0)}\nv_permlane16_swap_b32 {v(m0)}, {v(m2)}")
        p(f"v_mov_b32 {v(m1)}, {v(m0)}\nv_mov_b32 {v(m3)}, {v(m2)}")
        p(f"v_permlane32_swap_b32 {v(m0)}, {v(m1)}\nv_permlane32_swap_b32 {v(m2)}, {v(m3)}")
    cs = (32 ** -0.5) * math.log2(math.e)
    p(f"s_mov_b32 {s(sT+2)}, {hex(f2u(cs))}")
    allred("v_max_f32", lambda m: f"v_mul_f32 {v(m)}, {s(sT+2)}, {v(m)}")
    for t in range(4):
        for j in range(2): p(f"v_fma_f32 {v(Xv(t,j))}, {v(Xv(t,j))}, {s(sT+2)}, -{v(Mx(t))}")
    for t in range(4):
        for j in range(2): p(f"v_exp_f32 {v(Xv(t,j))}, {v(Xv(t,j))}")
    for t in range(4): p(f"v_add_f32 {v(Mx(t))}, {v(Xv(t,0))}, {v(Xv(t,1))}")
    allred("v_add_f32", lambda m: f"v_rcp_f32 {v(m)}, {v(m)}")
    Pf = lambda t: ACC + 48 + 4 * t
    Oa = lambda t, u: ACC + 8 * t + 4 * u
    Of = lambda t: ACC + 64 + 4 * t
    for t in range(4):
        for j in range(2): p(f"v_mul_f32 {v(Xv(t,j))}, {v(Xv(t,j))}, {v(Mx(t))}")
        p(f"v_cvt_pk_bf16_f32 {v(Xv(t,0))}, {v(Xv(t,0))}, {v(Xv(t,1))}")
        for k in range(4): p(f"v_perm_b32 {v(Pf(t)+k)}, {v(Xv(t,0))}, {v(Xv(t,0))}, {v(SEL+k)}")
        if t > 0:
            for u in range(2): p(f"v_mfma_f32_16x16x32_bf16 {v(Oa(t-1,u),4)}, {v(Vp(u,t-2),4)}, {v(Pf(t-1),4)}, 0")
    for u in range(2): p(f"v_mfma_f32_16x16x32_bf16 {v(Oa(3,u),4)}, {v(Vp(u,2),4)}, {v(Pf(3),4)}, 0")
    for t in range(4):
        for u in range(2): p(pk(Of(t) + 2 * u, Oa(t, u)))
        p(f"s_add_u32 {s(sSO)}, {s(sOB)}, {32768*t}")
        p(f"buffer_store_dwordx4 {v(Of(t),4)}, {v(vL16)}, {s(rWS,4)}, {s(sSO)} offen sc1", "ost")
    st(p, "B.ostiss")
    vWA = 2
    p(f"v_bfe_u32 {v(t1)}, v0, 3, 2\nv_lshlrev_b32 {v(t1)}, 5, {v(t1)}\nv_and_b32 {v(t2)}, 3, v0\nv_lshl_add_u32 {v(t1)}, {v(t2)}, 3, {v(t1)}")
    p(f"v_lshrrev_b32 {v(t2)}, 2, v0\nv_lshl_add_u32 {v(t1)}, {v(t2)}, 7, {v(t1)}\ns_lshl_b32 {s(sT)}, {s(sTH)}, 11\nv_add_u32 {v(t1)}, {s(sT)}, {v(t1)}")
    for j in range(2):
        for u in range(4): p(f"v_xor_b32 {v(vWA+4*j+u)}, {2048*j + 32*u}, {v(t1)}")
    p(f"v_and_b32 {v(t1)}, 15, v0\ns_lshl_b32 {s(sT)}, {s(sRB4)}, 2\ns_add_u32 {s(sT)}, {s(sT)}, {s(wb)}\ns_lshl_b32 {s(sT+1)}, {s(sT)}, 5\nv_add_u32 {v(t1)}, {s(sT+1)}, {v(t1)}\nv_lshlrev_b32 {v(t1)}, 12, {v(t1)}")
    p(f"v_bfe_u32 {v(t2)}, v0, 4, 1\nv_lshl_add_u32 {v(t1)}, {v(t2)}, 5, {v(t1)}\nv_lshrrev_b32 {v(t2)}, 5, v0\nv_lshl_add_u32 {v(t1)}, {v(t2)}, 4, {v(t1)}")
    p(f"s_lshl_b32 {s(sT+1)}, {s(sCB)}, 7\ns_add_u32 {s(sT+1)}, {s(sT+1)}, 2048\nv_add_u32 {v(t0)}, {s(sT+1)}, {v(t1)}")
    vOUT = t0
    sO0, sO1, sPF = 88, 89, 90
    p(f"s_lshl_b32 {s(sO0)}, {s(sT)}, 16\ns_add_u32 {s(sO0)}, {s(sO0)}, {WS_O}")
    p(f"s_lshl_b32 {s(sPF)}, {s(sRB4)}, 1\ns_add_u32 {s(sPF)}, {s(sPF)}, {s(sTH)}\ns_lshl_b32 {s(sPF)}, {s(sPF)}, 8\ns_add_u32 {s(sPF)}, {s(sPF)}, {F_O}")
    p(f"v_and_b32 {v(t2)}, 31, v0\nv_lshlrev_b32 {v(t2)}, 2, {v(t2)}")
    p.wait_vm("ost")
    p(f"s_mov_b64 exec, 4\nbuffer_store_dword {v(vONE)}, {v(vFA)}, {s(rWS,4)}, 0 offen sc1\ns_mov_b64 exec, -1")
    st(p, "B.oflag")
    A4 = 16; WF = [48, 64]; OF = 80; NR = 21
    def wreads(stp):
        k = stp & 1; loc = wo_loc(stp)
        base = 0 if stp < 16 else (65536 if stp < 24 else HB)
        return [f"ds_read_b64_tr_b16 {v(WF[k]+4*u+2*j,2)}, {v(vWA+4*j+u)} offset:{loc-base}" for u in range(4) for j in range(2)]
    def oload(stp):
        L = []
        for tt in range(2):
            r = OF + 8 * (stp % NR) + 4 * tt
            if stp % 4 == 0: L.append(f"s_add_u32 {s(sO1+2*tt)}, {s(sO0)}, {32768*tt + 1024*stp}")
            L.append(f"buffer_load_dwordx4 {v(r,4)}, {v(vL16)}, {s(rWS,4)}, {s(sO1+2*tt)} offen offset:{1024*(stp%4)} sc1")
        return L
    lds_wait(p, "LB_s2", vCNT, S2, 4, t1, extra=wreads(0))
    gpoll(p, cfg, "LB_po", rWS, t2, s(sPF), 1, t1)
    st(p, "B.opoll")
    for stp in range(NR): p(oload(stp))
    for stp in range(32):
        k = stp & 1
        p("s_waitcnt lgkmcnt(0)")
        if stp == 1: st(p, "B.p4s1")
        fill = []
        if stp + 1 in (16, 24):
            d = 65536 if stp + 1 == 16 else HB - 65536
            p([f"v_add_u32 {v(vWA+i)}, {d}, {v(vWA+i)}" for i in range(8)])
        if stp + 1 == 24: lds_wait(p, "LB_s4", vCNT, S4, 4, t1)
        if stp < 31: fill += wreads(stp + 1)
        if stp >= 1 and stp - 1 + NR < 32: fill += oload(stp - 1 + NR)
        M = [f"v_mfma_f32_16x16x32_bf16 {v(A4+16*tt+4*u,4)}, {v(WF[k]+4*u,4)}, {v(OF+8*(stp%NR)+4*tt,4)}, {'0' if stp == 0 else v(A4+16*tt+4*u,4)}" for tt in range(2) for u in range(4)]
        p(weave(M, fill, per_gap=2))
    st(p, "B.p4end")
    PK = 48
    for tt in range(2):
        for pr in range(2):
            d = PK + 8 * tt + 4 * pr
            p(pk(d, A4 + 16 * tt + 8 * pr) + pk(d + 2, A4 + 16 * tt + 8 * pr + 4))
            p(f"v_permlane16_swap_b32 {v(d)}, {v(d+2)}\nv_permlane16_swap_b32 {v(d+1)}, {v(d+3)}")
            p(f"s_mov_b32 {s(sSO)}, {65536*tt}")
            p(f"buffer_store_dwordx4 {v(d,4)}, {v(vOUT)}, {s(rOUT,4)}, {s(sSO)} offen offset:{64*pr} {cfg.pol_out}")
    st(p, "B.outiss")
    if cfg.diag:
        p("s_waitcnt vmcnt(0)"); st(p, "B.end"); st(p, "B.real1", real=True); st.dump(p, t1, 1)
    p("s_endpgm")
    p.names = st.names
    return p, slow

HEAD = open(__file__.rsplit("/", 1)[0] + "/head.txt").read() if "/" in __file__ else open("head.txt").read()

def generate(cfg, verbose=False):
    c = gen_common(cfg); a = gen_A(cfg); b, slow = gen_B(cfg, a.kvflag_bar)
    pa = Prog(); pa.L = c.L + a.L
    ta = pa.finalize(verbose)
    pb = Prog(); pb.L = c.L + b.L
    pb.finalize(verbose)
    i = next(k for k, y in enumerate(pb.out) if y.text == "L_B:")
    tb = "\n".join(("" if y.kind == "label" else "    ") + y.text for y in pb.out[i:])
    ts = slow.finalize()
    txt = HEAD + f"; @launch grid=(256,1,1) block=(512,1,1) lds={LDS_BYTES}\n"
    txt += f""".amdgcn_target "amdgcn-amd-amdhsa--gfx950"
.text
.globl {NAME}_kernel
.p2align 8
.type {NAME}_kernel,@function
{NAME}_kernel:
{ta}
{tb}
{ts}
L_end:
    s_endpgm
.section .rodata,"a"
.p2align 6
.amdhsa_kernel {NAME}_kernel
  .amdhsa_next_free_vgpr 256
  .amdhsa_next_free_sgpr 102
  .amdhsa_accum_offset 256
  .amdhsa_group_segment_fixed_size 0
  .amdhsa_kernarg_size 96
  .amdhsa_user_sgpr_count 2
  .amdhsa_user_sgpr_kernarg_segment_ptr 1
  .amdhsa_system_sgpr_workgroup_id_x 1
.end_amdhsa_kernel
"""
    return txt, (a.names, b.names)

if __name__ == "__main__":
    cfg = Cfg(); out = None
    for arg in sys.argv[1:]:
        if "=" in arg:
            k, val = arg.split("=", 1)
            cur = getattr(cfg, k)
            setattr(cfg, k, (val not in ("0", "False")) if isinstance(cur, bool) else type(cur)(val.replace("+", " ")))
        else: out = arg
    txt, names = generate(cfg, True)
    if cfg.diag: txt = txt.replace(".amdgcn_target", f"; stamps A {' '.join(names[0])}\n; stamps B {' '.join(names[1])}\n.amdgcn_target", 1)
    open(out or f"/code/{NAME}.s", "w").write(txt)
```

```python
import sys, math, struct
from asmlib import *

NAME = "concat_heads__ssm_conv_h3__sliding_local_dilated__prompt"

class Cfg:
    diag = False
    nt_in = "nt"
    pol_x = ""
    pol_w = ""
    pol_wo = ""
    pol_out = ""
    prioB = 2
    spin = 200000
    codepf = True
    probe = 0
    probe_ptr = 16
    probe_pol = ""
    enc = ""
    encwg = 37
    encbase = 10000
    dbgdump = ""

WR = 0; XR = 73728; XS = 18432; HB = 129024; HS = 8320; CNT = 162304
XIMG = XR + XS; EXCH = XR + 2 * XS; WO22 = EXCH + 10240
LDS_BYTES = 163840
S1, S2, S3, S4 = 0, 8, 12, 16
def wo_loc(st):
    if st < 22: return 4096 * st
    if st < 24: return WO22 + 4096 * (st - 22)
    return HB + ((st - 24) >> 1) * HS + 4096 * (st & 1)
WS_KV = 0; WS_Y = 4 << 20; WS_O = 8 << 20; WS_F = 12 << 20; WS_DBG = 13 << 20
F_KV = WS_F; F_Y = WS_F + 4096; F_O = WS_F + 4096 + 16384
pQ, pK, pV, pSH, pH, pD, pX, pW, pWO, pOUT, pDBG, pWS = 4, 6, 8, 10, 12, 14, 16, 18, 20, 22, 24, 26
rX, rW, rK, rV, rSH, rH, rWS, rQ, rOUT, rWO, rDBG = 28, 32, 36, 40, 44, 48, 52, 56, 60, 64, 68
sWV = 3; sRB, sHG, sCT, sM, sRB4, sCB = 72, 73, 74, 75, 76, 77
sT = 78
sSTAMP = 84

def srd(p, r, ptr, nbytes):
    p(f"s_mov_b32 {s(r)}, {s(ptr)}\ns_mov_b32 {s(r+1)}, {s(ptr+1)}\ns_mov_b32 {s(r+2)}, {hex(nbytes)}\ns_mov_b32 {s(r+3)}, 0x20000")

def f2u(x): return struct.unpack("<I", struct.pack("<f", x))[0]

class Stamper:
    def __init__(self, cfg, vreg): self.cfg = cfg; self.n = 0; self.vreg = vreg; self.names = []
    def __call__(self, p, name, real=False):
        if not self.cfg.diag: return
        p(f"{'s_memrealtime' if real else 's_memtime'} {s(sSTAMP,2)}\ns_waitcnt lgkmcnt(0)\nv_writelane_b32 {v(self.vreg)}, {s(sSTAMP)}, {self.n}")
        self.names.append(name); self.n += 1
    def dump(self, p, vtmp, role):
        if not self.cfg.diag: return
        cfg = self.cfg; rn = "AB"[role]
        if cfg.dbgdump == rn or cfg.enc.startswith(rn) or (cfg.enc == "zero" and role == 0):
            p(f"s_cmp_lg_u32 s2, {cfg.encwg}\ns_cbranch_scc1 L_noenc{rn}\ns_cmp_lg_u32 {s(sWV)}, 0\ns_cbranch_scc1 L_noenc{rn}")
            if cfg.dbgdump == rn:
                srd(p, rDBG, pDBG, 256)
                p(f"v_readlane_b32 {s(sT)}, {v(self.vreg)}, 1\ns_nop 3\nv_subrev_u32 v1, {s(sT)}, {v(self.vreg)}\nv_lshlrev_b32 {v(vtmp)}, 2, v0\nv_subrev_u32 {v(vtmp)}, 4, {v(vtmp)}")
                p(f"s_mov_b64 exec, 0x1fffc\nbuffer_store_dword v1, {v(vtmp)}, {s(rDBG,4)}, 0 offen\ns_mov_b64 exec, -1")
            if cfg.enc.startswith(rn) or (cfg.enc == "zero" and role == 0):
                p(f"v_readlane_b32 {s(sT)}, {v(self.vreg)}, 0")
                if cfg.enc != "zero":
                    a, b = cfg.enc.split("-")
                    p(f"v_readlane_b32 {s(sT+1)}, {v(self.vreg)}, {self.names.index(a)}\nv_readlane_b32 {s(sT+2)}, {v(self.vreg)}, {self.names.index(b)}\ns_nop 3")
                    p(f"s_sub_u32 {s(sT+1)}, {s(sT+1)}, {s(sT+2)}")
                    if "real" not in a: p(f"s_mul_i32 {s(sT+1)}, {s(sT+1)}, 6554\ns_lshr_b32 {s(sT+1)}, {s(sT+1)}, 16")
                    p(f"s_add_u32 {s(sT)}, {s(sT)}, {s(sT+1)}")
                p(f"s_nop 3\ns_add_u32 {s(sT)}, {s(sT)}, {cfg.encbase}\nL_enc{rn}:\ns_memrealtime {s(sSTAMP,2)}\ns_waitcnt lgkmcnt(0)\ns_sub_u32 {s(sT+1)}, {s(sSTAMP)}, {s(sT)}\ns_cmp_lt_i32 {s(sT+1)}, 0\ns_cbranch_scc1 L_enc{rn}")
            p(f"L_noenc{rn}:")
        p(f"s_lshl_b32 {s(sT)}, s2, 3\ns_add_u32 {s(sT)}, {s(sT)}, {s(sWV)}\ns_add_u32 {s(sT)}, {s(sT)}, {4*role}\ns_lshl_b32 {s(sT)}, {s(sT)}, 8\ns_add_u32 {s(sT)}, {s(sT)}, {hex(WS_DBG)}")
        p(f"v_lshlrev_b32 {v(vtmp)}, 2, v0\nbuffer_store_dword {v(self.vreg)}, {v(vtmp)}, {s(rWS,4)}, {s(sT)} offen")

def lds_wait(p, name, vcnt, off, target, vt, extra=None):
    p(f"{name}:")
    p(f"ds_read_b32 {v(vt)}, {v(vcnt)} offset:{off}")
    if extra: p(extra)
    p(f"s_waitcnt lgkmcnt(0)\nv_readfirstlane_b32 {s(sT)}, {v(vt)}\ns_nop 0\ns_cmp_ge_u32 {s(sT)}, {target}\ns_cbranch_scc0 {name}")

def lds_arrive(p, vcnt, off, vone):
    p(f"s_mov_b64 exec, 1\nds_add_u32 {v(vcnt)}, {v(vone)} offset:{off}\ns_mov_b64 exec, -1")

def gpoll(p, cfg, name, srdr, vaddr, soff, want, vt, sleep=2):
    p(f"s_mov_b32 {s(sT+1)}, 0")
    p(f"{name}:")
    p(f"buffer_load_dword {v(vt)}, {v(vaddr)}, {s(srdr,4)}, {soff} offen sc1")
    p(f"s_add_u32 {s(sT+1)}, {s(sT+1)}, 1\ns_cmp_gt_u32 {s(sT+1)}, {cfg.spin}\ns_cbranch_scc1 {name}_x")
    p(f"s_waitcnt vmcnt(0)\nv_cmp_{'gt' if want > 1 else 'ne'}_u32 vcc, {want}, {v(vt)}\ns_cbranch_vccz {name}_x")
    p(f"s_sleep {sleep}\ns_branch {name}")
    p(f"{name}_x:\ns_waitcnt vmcnt(0)")

def gen_common(cfg):
    p = Prog()
    p("s_cmp_ge_u32 s2, 256\ns_cbranch_scc1 L_end")
    p(f"s_load_dwordx4 {s(pX,4)}, s[0:1], 48")
    p(f"s_load_dwordx8 {s(pQ,8)}, s[0:1], 0\ns_load_dwordx4 {s(pH,4)}, s[0:1], 32\ns_load_dwordx8 {s(pWO,8)}, s[0:1], 64")
    p(f"v_lshrrev_b32 v1, 6, v0\nv_and_b32 v0, 63, v0\nv_readfirstlane_b32 {s(sWV)}, v1")
    x, j = sT, sT + 1
    p(f"s_and_b32 {s(x)}, s2, 7\ns_lshr_b32 {s(j)}, s2, 3")
    a, b = sT + 2, sT + 3
    p(f"s_and_b32 {s(a)}, {s(x)}, 1\ns_lshl_b32 {s(a)}, {s(a)}, 3")
    p(f"s_lshr_b32 {s(b)}, {s(x)}, 1\ns_lshl_b32 {s(b)}, {s(b)}, 2")
    p(f"s_and_b32 {s(sRB)}, {s(j)}, 7\ns_add_u32 {s(sRB)}, {s(sRB)}, {s(a)}")
    p(f"s_lshr_b32 {s(sHG)}, {s(j)}, 3\ns_add_u32 {s(sHG)}, {s(sHG)}, {s(b)}")
    p(f"s_and_b32 {s(sRB4)}, {s(j)}, 3\ns_add_u32 {s(sRB4)}, {s(sRB4)}, {s(b)}")
    p(f"s_lshr_b32 {s(sCB)}, {s(j)}, 2\ns_add_u32 {s(sCB)}, {s(sCB)}, {s(a)}")
    p(f"s_lshr_b32 {s(sCT)}, {s(j)}, 4\ns_lshl_b32 {s(x)}, {s(x)}, 1\ns_add_u32 {s(sCT)}, {s(sCT)}, {s(x)}")
    p(f"s_and_b32 {s(sM)}, {s(j)}, 15")
    if cfg.probe:
        p("s_waitcnt lgkmcnt(0)")
        srd(p, rDBG, cfg.probe_ptr, 4 << 20)
        p(f"s_lshl_b32 {s(sT)}, s2, 8\nv_mov_b32 v2, {s(sT)}\ns_mov_b32 {s(sT)}, 0\nL_probe:")
        p(f"buffer_load_dword v3, v2, {s(rDBG,4)}, 0 offen {cfg.probe_pol}\nv_add_u32 v2, 65536, v2\ns_waitcnt vmcnt(0)")
        p(f"s_add_u32 {s(sT)}, {s(sT)}, 1\ns_cmp_lt_u32 {s(sT)}, {cfg.probe}\ns_cbranch_scc1 L_probe")
    p(f"s_cmp_ge_u32 {s(sWV)}, 4\ns_cbranch_scc1 L_B")
    return p

def gen_A(cfg):
    p = Prog(); st = Stamper(cfg, 255)
    wa = sWV
    vX, vH, vW = 2, 3, 4
    t0, t1, t2, t3 = 5, 6, 7, 8
    sMW, sMX, sMH, sSO = 86, 87, 88, 89
    st(p, "A.real0", real=True); st(p, "A.start")
    p(f"v_lshrrev_b32 {v(t0)}, 3, v0\nv_and_b32 {v(t1)}, 7, v0\nv_lshrrev_b32 {v(t2)}, 4, v0")
    p(f"s_and_b32 {s(sT)}, {s(wa)}, 1\ns_lshl_b32 {s(sT)}, {s(sT)}, 2")
    p(f"s_lshl_b32 {s(sT+1)}, {s(sRB)}, 7\ns_lshl_b32 {s(sT+2)}, {s(wa)}, 3\ns_add_u32 {s(sT+3)}, {s(sT+1)}, {s(sT+2)}")
    p(f"v_add_u32 {v(t3)}, {s(sT)}, {v(t2)}\nv_xor_b32 {v(t3)}, {v(t3)}, {v(t1)}\nv_lshlrev_b32 {v(t3)}, 4, {v(t3)}")
    p(f"v_add_u32 {v(vX)}, {s(sT+3)}, {v(t0)}\nv_lshl_add_u32 {v(vX)}, {v(vX)}, 11, {v(t3)}")
    p(f"v_and_b32 {v(t3)}, 1, {v(t2)}\nv_lshl_or_b32 {v(t3)}, {v(t3)}, 1, {s(sT)}\nv_xor_b32 {v(t3)}, {v(t3)}, {v(t1)}\nv_lshlrev_b32 {v(t3)}, 4, {v(t3)}")
    p(f"v_add_u32 {v(vW)}, {s(sT+2)}, {v(t0)}\nv_mul_u32_u24 {v(vW)}, 6144, {v(vW)}\ns_lshl_b32 {s(sT+4)}, {s(sHG)}, 7\nv_add3_u32 {v(vW)}, {v(vW)}, {v(t3)}, {s(sT+4)}")
    p(f"s_lshl_b32 {s(sT)}, {s(wa)}, 1\ns_lshl_b32 {s(sT+2)}, {s(wa)}, 2\ns_add_u32 {s(sT+1)}, {s(sT+1)}, {s(sT+2)}\ns_sub_u32 {s(sT+1)}, {s(sT+1)}, 16")
    p(f"v_add_u32 {v(t3)}, {s(sT)}, {v(t2)}\nv_xor_b32 {v(t3)}, {v(t3)}, {v(t1)}\nv_and_b32 {v(t3)}, 7, {v(t3)}\nv_lshlrev_b32 {v(t3)}, 4, {v(t3)}")
    p(f"v_add_u32 {v(vH)}, {s(sT+1)}, {v(t0)}\nv_lshl_add_u32 {v(vH)}, {v(vH)}, 11, {v(t3)}")
    p(f"s_lshl_b32 {s(sMW)}, {s(wa)}, 10\ns_add_u32 {s(sMX)}, {s(sMW)}, {XR+2048}\ns_lshl_b32 {s(sMH)}, {s(wa)}, 9\ns_add_u32 {s(sMH)}, {s(sMH)}, {XR}")
    p("s_waitcnt lgkmcnt(0)")
    srd(p, rX, pX, 4 << 20); srd(p, rW, pW, 6 << 20)

    def dma(m0base, m0off, vaddr, srdr, soff, pol, tag, imm=0):
        L = [f"s_add_u32 m0, {s(m0base)}, {m0off}"]
        if isinstance(soff, int): L.append(f"s_mov_b32 {s(sSO)}, {soff}")
        else: L.append(f"s_add_u32 {s(sSO)}, {s(soff[0])}, {soff[1]}")
        L.append(Ins(f"buffer_load_dwordx4 {v(vaddr)}, {s(srdr,4)}, {s(sSO)} offen {f'offset:{imm} ' if imm else ''}{pol} lds", tag))
        return L
    def chunk(c):
        sl = c % 3; tag = f"ch{c}"; L = []
        xs = [dma(sMX, sl * XS + n * 4096, vX, rX, c * 128 + n * 65536, cfg.pol_x, tag) for n in range(4)]
        ws = [dma(sMW, part * 24576 + sl * 8192 + n * 4096, vW, rW, (64 * c + 32 * n) * 6144 + part * 2048, cfg.pol_w, tag)
              for n in range(2) for part in range(3)]
        hl = ["s_mov_b64 exec, 0xffffffff"] + dma(sMH, sl * XS, vH, rX, c * 128, cfg.pol_x, tag) + ["s_mov_b64 exec, -1"]
        order = [xs[0], ws[0], ws[1], xs[1], ws[2], xs[2], ws[3], ws[4], xs[3], ws[5], hl]
        for o in order: L += o
        return L
    for c in range(3): p(chunk(c))
    st(p, "A.iss012")
    srd(p, rK, pK, 4 << 20); srd(p, rV, pV, 4 << 20); srd(p, rSH, pSH, 8192); srd(p, rH, pH, 4 << 20)
    srd(p, rWS, pWS, 16 << 20); srd(p, rQ, pQ, 4 << 20); srd(p, rOUT, pOUT, 8 << 20); srd(p, rWO, pWO, 2 << 20)
    vKV, vKM, vSHa, vST, vOUT, vXI, vL16, vL16o, vWO, vCNT, vONE, vEP = 9, 10, 11, 12, 13, 14, 15, 16, 17, 18, 19, 20
    vAB = 21
    vBB = 25
    sCH, sGRP, sD, sH0, sHBW, sWA16, s4096 = 90, 91, 92, 93, 94, 95, 96
    p(f"v_bfe_u32 {v(t0)}, v0, 3, 2\nv_lshrrev_b32 {v(t1)}, 5, v0\nv_and_b32 {v(t2)}, 7, v0")
    p(f"s_lshl_b32 {s(sT)}, {s(sM)}, 7\ns_lshl_b32 {s(sT+1)}, {s(wa)}, 5\ns_add_u32 {s(sT)}, {s(sT)}, {s(sT+1)}")
    p(f"v_lshlrev_b32 {v(t3)}, 3, {v(t0)}\nv_lshl_add_u32 {v(t3)}, {v(t1)}, 2, {v(t3)}\nv_add_u32 {v(t3)}, {s(sT)}, {v(t3)}")
    p(f"s_lshl_b32 {s(sT+1)}, {s(sCT)}, 7\nv_lshl_add_u32 {v(vSHa)}, {v(t2)}, 4, {s(sT+1)}")
    p(f"v_lshl_add_u32 {v(vKV)}, {v(t3)}, 11, {v(vSHa)}\nv_lshl_add_u32 {v(vOUT)}, {v(t3)}, 12, {v(vSHa)}")
    p(f"v_subrev_u32 {v(vKM)}, 6144, {v(vKV)}\nv_lshlrev_b32 {v(vSHa)}, 2, {v(vSHa)}")
    p(f"v_bfe_u32 {v(t3)}, v0, 2, 1\nv_lshlrev_b32 {v(t3)}, 1, {v(t3)}\nv_add_u32 {v(t3)}, {v(t3)}, {v(t1)}\nv_lshlrev_b32 {v(t3)}, 16, {v(t3)}")
    p(f"v_lshl_add_u32 {v(t3)}, {v(t0)}, 6, {v(t3)}\nv_and_b32 {v(t2)}, 3, v0\nv_lshl_add_u32 {v(t3)}, {v(t2)}, 4, {v(t3)}")
    p(f"s_lshl_b32 {s(sT)}, {s(sT)}, 3\ns_lshl_b32 {s(sT+1)}, {s(sCT)}, 18\ns_add_u32 {s(sT)}, {s(sT)}, {s(sT+1)}\nv_add_u32 {v(vST)}, {s(sT)}, {v(t3)}")
    p(f"s_lshl_b32 {s(sGRP)}, {s(sCT)}, 4\ns_add_u32 {s(sGRP)}, {s(sGRP)}, {s(sM)}")
    p(f"s_lshr_b32 {s(sT)}, {s(sGRP)}, 3\ns_lshl_b32 {s(sT)}, {s(sT)}, 5\ns_and_b32 {s(sT+1)}, {s(sGRP)}, 7\ns_add_u32 {s(sT)}, {s(sT)}, {s(sT+1)}")
    p(f"s_lshl_b32 {s(sT+1)}, {s(wa)}, 3\ns_add_u32 {s(sCH)}, {s(sT)}, {s(sT+1)}\ns_lshl_b32 {s(sGRP)}, {s(sGRP)}, 14")
    p(f"s_lshr_b32 {s(sT)}, {s(sCH)}, 1\ns_lshl_b32 {s(sT)}, {s(sT)}, 2\ns_lshl_b32 {s(sT+1)}, {s(sCH)}, 12")
    p(f"s_load_dword {s(sD)}, {s(pD,2)}, {s(sT)}\ns_load_dword {s(sH0)}, {s(pH,2)}, {s(sT+1)}")
    p(f"s_mul_i32 {s(sHBW)}, {s(wa)}, {HS}\ns_add_u32 {s(sHBW)}, {s(sHBW)}, {HB}\ns_lshl_b32 {s(sWA16)}, {s(wa)}, 14\ns_mov_b32 {s(s4096)}, 4096")
    p(f"v_bfe_u32 {v(t0)}, v0, 2, 2\nv_lshlrev_b32 {v(t0)}, 1, {v(t0)}\nv_lshl_add_u32 {v(t0)}, {v(t1)}, 3, {v(t0)}\nv_bfe_u32 {v(t3)}, v0, 4, 1\nv_add_u32 {v(t0)}, {v(t0)}, {v(t3)}")
    p(f"s_and_b32 {s(sT)}, {s(wa)}, 1\ns_lshl_b32 {s(sT)}, {s(sT)}, 1\nv_add_u32 {v(t3)}, {s(sT)}, {v(t1)}\nv_xor_b32 {v(t3)}, {v(t3)}, {v(t2)}\nv_lshlrev_b32 {v(t3)}, 4, {v(t3)}")
    p(f"v_lshl_add_u32 {v(t0)}, {v(t0)}, 6, {v(t3)}\nv_add_u32 {v(vXI)}, {s(sMW)}, {v(t0)}")
    p(f"v_lshlrev_b32 {v(vL16)}, 4, v0\nv_add_u32 {v(vL16o)}, 2, {v(vL16)}")
    p(f"v_lshrrev_b32 {v(t0)}, 4, v0\nv_lshlrev_b32 {v(t0)}, 1, {v(t0)}\nv_and_b32 {v(t3)}, 7, v0\nv_xor_b32 {v(t0)}, {v(t0)}, {v(t3)}\nv_lshlrev_b32 {v(t0)}, 4, {v(t0)}")
    p(f"v_lshrrev_b32 {v(t3)}, 3, v0\nv_lshl_add_u32 {v(t0)}, {v(t3)}, 11, {v(t0)}\ns_lshl_b32 {s(sT)}, {s(sCB)}, 7\nv_add_u32 {v(vWO)}, {s(sT)}, {v(t0)}")
    p(f"v_mov_b32 {v(vCNT)}, {CNT}\nv_mov_b32 {v(vONE)}, 1")

    def addr_setup():
        L = []
        L += f"v_and_b32 {v(t0)}, 15, v0\nv_lshrrev_b32 {v(t1)}, 4, v0\nv_add_u32 {v(t2)}, 9, {v(t0)}\nv_and_b32 {v(t3)}, 1, {v(t2)}\nv_mul_u32_u24 {v(t3)}, 4160, {v(t3)}".split("\n")
        L += f"v_lshrrev_b32 {v(t2)}, 1, {v(t2)}\nv_lshl_add_u32 {v(t3)}, {v(t2)}, 2, {v(t3)}\nv_lshlrev_b32 {v(t2)}, 4, {v(t1)}\nv_sub_u32 {v(t3)}, {v(t3)}, {v(t2)}".split("\n")
        L += [f"s_add_u32 {s(sT)}, {s(sHBW)}, 32", f"v_add_u32 {v(vAB)}, {s(sT)}, {v(t3)}"]
        L += [f"v_add_u32 {v(vAB+k)}, {1024*k}, {v(vAB)}" for k in range(1, 4)]
        def ximg(dst):
            return f"""v_lshrrev_b32 {v(t3)}, 3, {v(t2)}
v_and_b32 {v(dst)}, 3, {v(t3)}
v_xor_b32 {v(dst)}, {s(wa)}, {v(dst)}
v_lshl_add_u32 {v(dst)}, {v(t3)}, 5, {v(dst)}
v_and_b32 {v(t3)}, 1, {v(t2)}
v_lshl_add_u32 {v(dst)}, {v(t3)}, 4, {v(dst)}
v_bfe_u32 {v(t3)}, {v(t2)}, 1, 2
v_lshl_add_u32 {v(dst)}, {v(t3)}, 2, {v(dst)}
v_lshlrev_b32 {v(dst)}, 4, {v(dst)}
v_add_u32 {v(dst)}, {XIMG}, {v(dst)}""".split("\n")
        for n in range(8):
            L += [f"v_lshl_add_u32 {v(t2)}, {v(t0)}, 1, {v(t1)}", f"v_add_u32 {v(t2)}, {30-4*n}, {v(t2)}"] + ximg(vBB + n)
        L += [f"v_lshrrev_b32 {v(t2)}, 1, {v(t1)}", f"v_lshl_add_u32 {v(t2)}, {v(t0)}, 1, {v(t2)}", f"v_add_u32 {v(t2)}, 32, {v(t2)}"] + ximg(vEP)
        L += [f"v_and_b32 {v(t3)}, 1, {v(t1)}", f"v_xor_b32 {v(t3)}, 1, {v(t3)}", f"v_lshl_add_u32 {v(vEP)}, {v(t3)}, 3, {v(vEP)}"]
        return L

    Kr, Vr, SHr, G = 40, 68, 84, 100
    Ku, Vu, Wu, Ac = 116, 123, 127, 131
    def p1_loads():
        L = []
        for i in range(4): L.append(Ins(f"buffer_load_dwordx4 {v(SHr+4*i,4)}, {v(vSHa)}, {s(rSH,4)}, 0 offen offset:{16*i}", "p1ld"))
        for j in range(7):
            base, jj = (vKM, j) if j < 3 else (vKV, j - 3)
            L.append(Ins(f"buffer_load_dwordx4 {v(Kr+4*j,4)}, {v(base)}, {s(rK,4)}, {s(s4096) if jj >= 2 else 0} offen offset:{2048*(jj&1)} {cfg.nt_in}", "p1ld"))
        for j in range(4):
            L.append(Ins(f"buffer_load_dwordx4 {v(Vr+4*j,4)}, {v(vKV)}, {s(rV,4)}, {s(s4096) if j >= 2 else 0} offen offset:{2048*(j&1)} {cfg.nt_in}", "p1ld"))
        return L
    def unp(dst, src, hi):
        return f"v_and_b32 {v(dst)}, 0xffff0000, {v(src)}" if hi else f"v_lshlrev_b32 {v(dst)}, 16, {v(src)}"
    def p1_chan(c):
        L = []; d, hi = c >> 1, c & 1
        for j in range(7): L.append(unp(Ku + j, Kr + 4 * j + d, hi))
        for t in range(4): L.append(unp(Wu + t, SHr + 2 * c + (t >> 1), t & 1))
        for j in range(4): L.append(unp(Vu + j, Vr + 4 * j + d, hi))
        for j in range(4): L.append(f"v_mul_f32 {v(Ac+j)}, {v(Ku+j)}, {v(Wu+3)}")
        for t in (2, 1, 0):
            for j in range(4): L.append(f"v_fmac_f32 {v(Ac+j)}, {v(Ku+j+3-t)}, {v(Wu+t)}")
        for j in range(4): L.append(f"v_mul_f32 {v(Ac+j)}, {v(Ac+j)}, {v(Vu+j)}")
        dst = G + 4 * (c & 3) + (2 if c < 4 else 0)
        L.append(f"v_cvt_pk_bf16_f32 {v(dst)}, {v(Ac+3)}, {v(Ac+2)}")
        L.append(f"v_cvt_pk_bf16_f32 {v(dst+1)}, {v(Ac+1)}, {v(Ac+0)}")
        return L
    def swaps():
        return [f"v_permlane32_swap_b32 {v(G+4*c+2+d)}, {v(G+4*c+d)}" for c in range(4) for d in range(2)]
    def p1_store():
        L = swaps()
        for c in range(4):
            L.append(f"s_mov_b32 {s(sSO)}, {WS_KV + c*16384}")
            L.append(Ins(f"buffer_store_dwordx4 {v(G+4*c,4)}, {v(vST)}, {s(rWS,4)}, {s(sSO)} offen sc1", "kvst"))
        return L
    def h_dma(odd):
        L = [f"s_add_u32 m0, {s(sHBW)}, {32 + 4160*odd}", f"s_lshl_b32 {s(sSO)}, {s(sCH)}, 12"]
        for n in range(4):
            L.append(Ins(f"buffer_load_dwordx4 {v(vL16o if odd else vL16)}, {s(rH,4)}, {s(sSO)} offen offset:{1024*n} {'' if odd == 0 else cfg.nt_in} lds", "hld"))
        return L
    def h_pad():
        return f"""s_waitcnt lgkmcnt(0)
s_lshl_b32 {s(sH0)}, {s(sH0)}, 16
s_and_b32 {s(sT)}, {s(sD)}, 0xffff0000
s_lshl_b32 {s(sD)}, {s(sD)}, 16
s_bitcmp1_b32 {s(sCH)}, 0
s_cselect_b32 {s(sD)}, {s(sT)}, {s(sD)}
v_lshrrev_b32 {v(t0)}, 3, v0
v_mul_u32_u24 {v(t0)}, 4160, {v(t0)}
v_and_b32 {v(t1)}, 7, v0
v_lshl_add_u32 {v(t0)}, {v(t1)}, 2, {v(t0)}
v_add_u32 {v(t0)}, {s(sHBW)}, {v(t0)}
v_mov_b32 {v(t1)}, 0
v_writelane_b32 {v(t1)}, {s(sH0)}, 15
s_mov_b64 exec, 0xffff
ds_write_b32 {v(t0)}, {v(t1)}
s_mov_b64 exec, -1""".split("\n")

    side = {c: [] for c in range(16)}
    side[0] = p1_loads() + addr_setup()
    side[1] = h_pad()
    for i, c in enumerate(range(3, 7)): side[c] = p1_chan(2 * i) + p1_chan(2 * i + 1)
    side[6] += p1_store()
    side[7] = h_dma(0); side[8] = h_dma(1)
    KVFLAG_BAR = 9
    for c in range(16):
        p.wait_vm(f"ch{c}")
        if c == KVFLAG_BAR: p.wait_vm("kvst")
        p("s_barrier")
        if c in (0, 1, 4, 8, 12, 15): st(p, f"A.bar{c}")
        if c >= 1 and c + 2 <= 15: p(chunk(c + 2))
        if c == 14:
            for nn in range(4):
                p(dma(sMW, XIMG + 2048 + nn * 4096, vXI, rWS, (sGRP, WS_KV + nn * 4096), "sc1", "xi"))
            p(f"v_lshlrev_b32 {v(t0)}, 3, v0\ns_add_u32 {s(sT)}, {s(sMH)}, {XS}\nv_add_u32 {v(t0)}, {s(sT)}, {v(t0)}\nv_mov_b32 {v(t1)}, 0\nv_mov_b32 {v(t2)}, 0")
            p(f"ds_write_b64 {v(t0)}, {v(t1,2)}")
        p(side[c])
    p("s_waitcnt vmcnt(0) lgkmcnt(0)\ns_barrier")
    st(p, "A.bar15b")
    ACC = 36; FA = [68, 132]; FB = [100, 164]
    def conv_reads(n):
        k = n & 1; L = []
        def ra(nu):
            o = 16 * n + 128 * (nu & 1)
            return [f"ds_read2_b32 {v(FA[k]+4*nu,2)}, {v(vAB+(nu>>1))} offset0:{o} offset1:{o+1}",
                    f"ds_read2_b32 {v(FA[k]+4*nu+2,2)}, {v(vAB+(nu>>1))} offset0:{o+2} offset1:{o+3}"]
        def rb(ka): return [f"ds_read_b128 {v(FB[k]+4*ka,4)}, {v(vBB+n)} offset:{2048*ka}"]
        for i in range(8): L += ra(i) + rb(i)
        return L
    def conv_mfma(n):
        k = n & 1; L = []
        for nu in range(8):
            for ka in range(8 - nu):
                a = v(ACC + 4 * (nu + ka), 4)
                c = "0" if (n == 0 and nu == 0) else a
                L.append(f"v_mfma_f32_16x16x32_bf16 {a}, {v(FA[k]+4*nu,4)}, {v(FB[k]+4*ka,4)}, {c}")
        return L
    wo1 = []
    for stp in range(24): wo1 += dma(sMW, wo_loc(stp), vWO, rWO, (sWA16, stp * 65536), cfg.pol_wo, "wo1")
    p(conv_reads(0)); p(wo1)
    KVr = 196
    for n in range(8):
        p("s_waitcnt lgkmcnt(0)")
        if n < 7: fill = conv_reads(n + 1)
        else:
            fill = [f"s_lshl_b32 {s(sT+2)}, {s(wa)}, 17"]
            for o in range(8): fill += dma(sHBW, o * 1024, vWO, rWO, (sT + 2, (768 + 8 * o) * 2048), cfg.pol_wo, "wo2")
            fill += [f"ds_read_b64 {v(KVr+2*t,2)}, {v(vEP)} offset:{2048*t}" for t in range(8)]
        p(weave(conv_mfma(n), fill, per_gap=1))
        if n == 4:
            p.wait_vm("wo1"); lds_arrive(p, vCNT, S2, vONE)
    st(p, "A.convend")
    U = 68
    for t in range(8):
        a = ACC + 4 * t; kq = KVr + 2 * t; u = U + 4 * (t & 1)
        p([unp(u + 3, kq, 0), unp(u + 2, kq, 1), unp(u + 1, kq + 1, 0), unp(u + 0, kq + 1, 1)])
        for r in range(4): p(f"v_fmac_f32 {v(a+r)}, {s(sD)}, {v(u+r)}")
        p(f"v_cvt_pk_bf16_f32 {v(kq)}, {v(a+3)}, {v(a+2)}\nv_cvt_pk_bf16_f32 {v(kq+1)}, {v(a+1)}, {v(a+0)}")
        p(f"ds_write_b64 {v(vEP)}, {v(kq,2)} offset:{2048*t}")
    lds_arrive(p, vCNT, S3, vONE)
    YR = 76
    p(f"s_add_u32 {s(sT+2)}, {s(sMW)}, {XIMG+2048}\nv_add_u32 {v(t0)}, {s(sT+2)}, {v(vL16)}")
    lds_wait(p, "LA_s3", vCNT, S3, 4, t1, extra=[f"ds_read_b128 {v(YR+4*nn,4)}, {v(t0)} offset:{4096*nn}" for nn in range(4)])
    for nn in range(4):
        p(f"s_add_u32 {s(sSO)}, {s(sGRP)}, {WS_Y + nn*4096}")
        p(f"buffer_store_dwordx4 {v(YR+4*nn,4)}, {v(vXI)}, {s(rWS,4)}, {s(sSO)} offen sc1", "yst")
    Qr, Qu = 116, 132
    for j in range(4):
        p(f"buffer_load_dwordx4 {v(Qr+4*j,4)}, {v(vKV)}, {s(rQ,4)}, {s(s4096) if j >= 2 else 0} offen offset:{2048*(j&1)} {cfg.nt_in}", "qld")
    st(p, "A.ystiss")
    p.wait_vm("wo2"); lds_arrive(p, vCNT, S4, vONE)
    p(f"s_lshl_b32 {s(sT+2)}, {s(sCT)}, 2\ns_add_u32 {s(sT+3)}, {s(sT+2)}, {s(wa)}\ns_lshl_b32 {s(sT+3)}, {s(sT+3)}, 8\ns_lshl_b32 {s(sT+4)}, {s(sM)}, 2\ns_add_u32 {s(sT+3)}, {s(sT+3)}, {s(sT+4)}\ns_add_u32 {s(sT+3)}, {s(sT+3)}, {F_Y}")
    p(f"s_and_b32 {s(sT+4)}, {s(sM)}, 3\ns_add_u32 {s(sT+2)}, {s(sT+2)}, {s(sT+4)}\ns_lshl_b32 {s(sT+2)}, {s(sT+2)}, 8\ns_add_u32 {s(sT+2)}, {s(sT+2)}, {F_Y}")
    p(f"v_mov_b32 {v(t0)}, 0\nv_and_b32 {v(t2)}, 15, v0\nv_lshlrev_b32 {v(t2)}, 2, {v(t2)}")
    p.wait_vm("yst")
    p(f"s_mov_b64 exec, 1\nbuffer_store_dword {v(vONE)}, {v(t0)}, {s(rWS,4)}, {s(sT+3)} offen sc1\ns_mov_b64 exec, -1")
    st(p, "A.yflag")
    for j in range(4):
        for c in range(8): p(unp(Qu + 8 * j + c, Qr + 4 * j + (c >> 1), c & 1))
    gpoll(p, cfg, "LA_py", rWS, t2, s(sT + 2), 1, t1)
    st(p, "A.ypoll")
    for c in range(4):
        p(f"s_mov_b32 {s(sSO)}, {WS_Y + c*16384}")
        p(f"buffer_load_dwordx4 {v(G+4*c,4)}, {v(vST)}, {s(rWS,4)}, {s(sSO)} offen sc1")
    p(swaps())
    OR = 36; T = 68
    for j in range(4):
        for c in range(8):
            src = G + 4 * (c & 3) + (2 if c < 4 else 0) + (0 if j >= 2 else 1)
            p(unp(T + c, src, 1 - (j & 1)))
        for c in range(8): p(f"v_mul_f32 {v(T+c)}, {v(T+c)}, {v(Qu+8*j+c)}")
        for d in range(4): p(f"v_cvt_pk_bf16_f32 {v(OR+4*j+d)}, {v(T+2*d)}, {v(T+2*d+1)}")
        p(f"s_mov_b32 {s(sSO)}, {4096*j}")
        p(f"buffer_store_dwordx4 {v(OR+4*j,4)}, {v(vOUT)}, {s(rOUT,4)}, {s(sSO)} offen {cfg.pol_out}")
    st(p, "A.outiss")
    if cfg.diag:
        p("s_waitcnt vmcnt(0)"); st(p, "A.end"); st(p, "A.real1", real=True); st.dump(p, t0, 0)
    p("s_endpgm")
    p.kvflag_bar = KVFLAG_BAR; p.names = st.names
    return p

def gen_B(cfg, kvflag_bar):
    p = Prog(); slow = Prog(); st = Stamper(cfg, 255)
    wb = sWV
    p("L_B:")
    p(f"s_setprio {cfg.prioB}\ns_and_b32 {s(wb)}, {s(wb)}, 3")
    st(p, "B.real0", real=True); st(p, "B.start")
    sTH, sHH = 86, 87
    mPar, mLe0, mLe1 = 88, 90, 92
    sOB, sSO, sFK = 94, 95, 96
    vXh, vXo, vWq, vWv = 2, 4, 6, 8
    vCNT, vONE, vL16 = 10, 11, 12
    t0, t1, t2 = 13, 14, 15
    ACC = 16
    accQ = lambda t, u: ACC + 8 * t + 4 * u
    accK = lambda t, u: ACC + 32 + 8 * t + 4 * u
    accV = lambda t, u: ACC + 64 + 8 * t + 4 * u
    accHK, accHV = ACC + 96, ACC + 100
    FS = [120, 164]
    fx = lambda k, t: FS[k] + 4 * t
    fw = lambda k, part, u: FS[k] + 20 + 8 * part + 4 * u
    SEL, NEG, vEh, vE3, vEr, vPO, vFA = 208, 212, 216, 217, 218, 220, 221
    t3, t4 = 222, 223
    p(f"s_lshr_b32 {s(sTH)}, {s(wb)}, 1\ns_and_b32 {s(sHH)}, {s(wb)}, 1")
    p(f"v_mov_b32 {v(vCNT)}, {CNT}\nv_mov_b32 {v(vONE)}, 1\nv_lshlrev_b32 {v(vL16)}, 4, v0")
    p(f"v_lshl_add_u32 {v(t0)}, v0, 2, {v(vCNT)}\nv_mov_b32 {v(t1)}, 0\nds_write_b32 {v(t0)}, {v(t1)}")
    p(f"s_lshl_b32 {s(sT)}, {s(sM)}, 2\ns_lshl_b32 {s(sFK)}, {s(sCT)}, 8\ns_add_u32 {s(sFK)}, {s(sFK)}, {F_KV}\ns_add_u32 {s(sT+1)}, {s(sFK)}, {s(sT)}")
    p(f"s_lshl_b32 {s(sT+2)}, {s(sCT)}, 2\ns_add_u32 {s(sT+2)}, {s(sT+2)}, {s(wb)}\ns_lshl_b32 {s(sT+2)}, {s(sT+2)}, 8\ns_add_u32 {s(sT+2)}, {s(sT+2)}, {s(sT)}\ns_add_u32 {s(sT+2)}, {s(sT+2)}, {F_Y}")
    p(f"s_lshl_b32 {s(sT+3)}, {s(sRB)}, 1\ns_add_u32 {s(sT+3)}, {s(sT+3)}, {s(sTH)}\ns_lshl_b32 {s(sT+3)}, {s(sT+3)}, 8")
    p(f"s_lshl_b32 {s(sT+4)}, {s(sHG)}, 1\ns_add_u32 {s(sT+4)}, {s(sT+4)}, {s(sHH)}")
    p(f"s_lshl_b32 {s(sT)}, {s(sT+4)}, 2\ns_add_u32 {s(sT+3)}, {s(sT+3)}, {s(sT)}\ns_add_u32 {s(sT+3)}, {s(sT+3)}, {F_O}")
    p(f"v_mov_b32 {v(vFA)}, {s(sT+1)}\nv_writelane_b32 {v(vFA)}, {s(sT+2)}, 1\nv_writelane_b32 {v(vFA)}, {s(sT+3)}, 2")
    p(f"s_lshl_b32 {s(sT)}, {s(sRB)}, 1\ns_add_u32 {s(sT)}, {s(sT)}, {s(sTH)}\ns_lshl_b32 {s(sT)}, {s(sT)}, 7\ns_add_u32 {s(sT)}, {s(sT)}, {s(sT+4)}\ns_lshl_b32 {s(sOB)}, {s(sT)}, 10\ns_add_u32 {s(sOB)}, {s(sOB)}, {WS_O}")
    p("s_waitcnt lgkmcnt(0)")
    srd(p, rWS, pWS, 16 << 20); srd(p, rDBG, pDBG, 256); srd(p, rOUT, pOUT, 8 << 20)
    p(f"s_mov_b64 exec, 7\nbuffer_store_dword {v(t1)}, {v(vFA)}, {s(rWS,4)}, 0 offen sc1\ns_mov_b64 exec, -1")
    if cfg.codepf:
        p(f"s_getpc_b64 {s(sT+2,2)}\nLB_pc:")
        p(f"s_sub_u32 {s(sT+2)}, {s(sT+2)}, LB_pc-{NAME}_kernel\ns_subb_u32 {s(sT+3)}, {s(sT+3)}, 0")
        p(f"s_lshr_b32 {s(sT)}, s2, 3\ns_and_b32 {s(sT)}, {s(sT)}, 7\ns_lshl_b32 {s(sT)}, {s(sT)}, 2\ns_add_u32 {s(sT)}, {s(sT)}, {s(wb)}")
        p(f"v_lshlrev_b32 {v(t0)}, 5, v0\nv_add_u32 {v(t0)}, {s(sT)}, {v(t0)}\nv_lshlrev_b32 {v(t0)}, 7, {v(t0)}")
        p(f"v_cmp_gt_u32 vcc, L_end-{NAME}_kernel, {v(t0)}\ns_and_saveexec_b64 {s(sT+4,2)}, vcc")
        p(f"global_load_dword {v(t3)}, {v(t0)}, {s(sT+2,2)}\ns_mov_b64 exec, -1")
    c_, g_ = t0, t1
    p(f"v_and_b32 {v(c_)}, 15, v0\nv_lshrrev_b32 {v(g_)}, 4, v0")
    p(f"v_lshrrev_b32 {v(t2)}, 1, {v(c_)}\nv_xor_b32 {v(t2)}, {v(t2)}, {v(g_)}\nv_lshlrev_b32 {v(t2)}, 4, {v(t2)}\nv_lshl_add_u32 {v(t2)}, {v(c_)}, 7, {v(t2)}")
    p(f"v_add_u32 {v(vXh)}, {XR}, {v(t2)}\nv_xor_b32 {v(vXh+1)}, 64, {v(vXh)}")
    p(f"s_lshl_b32 {s(sT)}, {s(sTH)}, 13\ns_add_u32 {s(sT)}, {s(sT)}, 2048\nv_add_u32 {v(vXo)}, {s(sT)}, {v(vXh)}\nv_add_u32 {v(vXo+1)}, {s(sT)}, {v(vXh+1)}")
    p(f"v_bfe_u32 {v(t2)}, v0, 3, 2")
    p(f"s_lshl_b32 {s(sT)}, {s(sHH)}, 1\ns_add_u32 {s(sT)}, {s(sT)}, {s(sTH)}\nv_xor_b32 {v(t2)}, {s(sT)}, {v(t2)}\nv_lshlrev_b32 {v(t2)}, 5, {v(t2)}")
    p(f"v_and_b32 {v(t4)}, 3, v0\nv_lshl_add_u32 {v(t2)}, {v(t4)}, 3, {v(t2)}\nv_bfe_u32 {v(t4)}, v0, 2, 2\nv_lshl_add_u32 {v(t2)}, {v(t4)}, 7, {v(t2)}")
    p(f"v_lshl_add_u32 {v(vWq)}, {v(g_)}, 10, {v(t2)}\nv_xor_b32 {v(vWq+1)}, 32, {v(vWq)}\nv_add_u32 {v(vWv)}, 49152, {v(vWq)}\nv_add_u32 {v(vWv+1)}, 49152, {v(vWq+1)}")
    p(f"v_and_b32 {v(t2)}, 1, {v(c_)}\nv_cmp_eq_u32 {s(mPar,2)}, 1, {v(t2)}")
    p(f"v_lshl_add_u32 {v(t2)}, {v(g_)}, 2, {v(t2)}\nv_cmp_le_u32 {s(mLe0,2)}, {v(t2)}, {v(c_)}\nv_add_u32 {v(t2)}, 2, {v(t2)}\nv_cmp_le_u32 {s(mLe1,2)}, {v(t2)}, {v(c_)}")
    p(f"v_mov_b32 {v(NEG)}, 0x0c0c0c0c")
    for j, m in ((0, mLe0), (1, mLe1)):
        lo = 0x0c0c0000 | ((2*j+1) << 8) | (2*j); hi = ((2*j+1) << 24) | ((2*j) << 16) | 0x0c0c
        p(f"v_mov_b32 {v(t2)}, {hex(lo)}\nv_mov_b32 {v(t4)}, {hex(hi)}\nv_cndmask_b32 {v(t2)}, {v(t2)}, {v(t4)}, {s(mPar,2)}")
        p(f"v_cndmask_b32 {v(SEL+j)}, {v(t2)}, {v(NEG)}, {s(m,2)}\nv_cndmask_b32 {v(SEL+2+j)}, {v(NEG)}, {v(t2)}, {s(m,2)}")
    p(f"s_or_b32 {s(sT)}, {s(sRB)}, {s(sTH)}\ns_cmp_eq_u32 {s(sT)}, 0\ns_cselect_b32 {s(sT)}, {hex(f2u(-1e30))}, 0")
    for r in range(4): p(f"v_mov_b32 {v(NEG+r)}, {s(sT)}")
    p(f"s_lshl_b32 {s(sT)}, {s(sHH)}, 12\ns_add_u32 {s(sT)}, {s(sT)}, {EXCH}\ns_lshl_b32 {s(sT+1)}, {s(sTH)}, 9\ns_add_u32 {s(sT+1)}, {s(sT+1)}, {s(sT)}")
    p(f"v_lshlrev_b32 {v(t2)}, 3, v0\nv_add_u32 {v(vEh)}, {s(sT+1)}, {v(t2)}")
    p(f"s_lshl_b32 {s(sT+2)}, {s(sTH)}, 11\nv_add_u32 {v(vEr)}, {s(sT+2)}, {v(vEh)}\nv_xor_b32 {v(vEr+1)}, 512, {v(vEr)}")
    p(f"s_add_u32 {s(sT)}, {s(sT)}, 2048\ns_cmp_eq_u32 {s(sTH)}, 0\ns_cselect_b32 {s(sT)}, {s(sT)}, {EXCH+8192}\nv_add_u32 {v(vE3)}, {s(sT)}, {v(t2)}")

    def reads(c, ks):
        k = ks; sl = c % 3; L = []
        X = [f"ds_read_b128 {v(fx(k,t),4)}, {v(vXo+ks)} offset:{sl*XS + 2048*t}" for t in range(4)]
        X.append(f"ds_read_b128 {v(fx(k,4),4)}, {v(vXh+ks)} offset:{sl*XS}")
        W = []
        for part in range(3):
            for u in range(2):
                for j in range(2):
                    base = (vWv if part == 2 else vWq) + u
                    off = (part & 1) * 24576 + sl * 8192 + ks * 4096 + j * 512
                    W.append(f"ds_read_b64_tr_b16 {v(fw(k,part,u)+2*j,2)}, {v(base)} offset:{off}")
        return X + W
    def mfmas(k, first, last=False):
        def mm(a, A, B): return f"v_mfma_f32_16x16x32_bf16 {v(a,4)}, {v(A,4)}, {v(B,4)}, {'0' if first else v(a,4)}"
        H = [mm(accHK, fw(k,1,0), fx(k,4)), mm(accHV, fx(k,4), fw(k,2,0))]
        Q = lambda t: [mm(accQ(t,u), fw(k,0,u), fx(k,t)) for u in range(2)]
        K = lambda t: [mm(accK(t,u), fw(k,1,u), fx(k,t)) for u in range(2)]
        V = lambda t: [mm(accV(t,u), fx(k,t), fw(k,2,u)) for u in range(2)]
        return H + K(3) + V(3) + Q(3) + K(2) + Q(2) + K(1) + Q(1) + K(0) + Q(0) + V(2) + V(1) + V(0)

    p("s_waitcnt lgkmcnt(0)\ns_barrier")
    st(p, "B.bar0")
    p(reads(0, 0))
    vP = t3
    for c in range(16):
        p("s_waitcnt lgkmcnt(0)")
        extra = []
        if c == 9:
            extra = [f"v_and_b32 {v(t4)}, 1, v0", f"v_lshlrev_b32 {v(t4)}, 7, {v(t4)}", f"buffer_load_dword {v(vP)}, {v(t4)}, {s(rDBG,4)}, 0 offen sc1"]
        if c == 12:
            extra = [f"v_and_b32 {v(t4)}, 15, v0", f"v_lshlrev_b32 {v(t4)}, 2, {v(t4)}", f"buffer_load_dword {v(vP)}, {v(t4)}, {s(rWS,4)}, {s(sFK)} offen sc1"]
        p(weave(mfmas(0, c == 0), reads(c, 1) + extra, per_gap=1))
        if c == 0: p("s_waitcnt vmcnt(0)")
        if c in (11, 13):
            want = 128 if c == 11 else 1
            p(f"s_waitcnt vmcnt(0)\nv_cmp_{'gt' if want > 1 else 'ne'}_u32 vcc, {want}, {v(vP)}\ns_cbranch_vccnz LB_slow{c}\nLB_back{c}:")
            slow(f"LB_slow{c}:")
            if c == 11: gpoll(slow, cfg, "LB_pc11", rDBG, t4, "0", 128, vP)
            else: gpoll(slow, cfg, "LB_pk13", rWS, t4, s(sFK), 1, vP)
            slow(f"s_branch LB_back{c}")
        p("s_waitcnt lgkmcnt(0)\ns_barrier")
        if c in (0, 3, 7, 11, 15): st(p, f"B.bar{c+1}")
        if c + 1 == 1 or c + 1 == kvflag_bar:
            lab = f"LB_sk{c+1}"
            p(f"s_cmp_lg_u32 {s(wb)}, 0\ns_cbranch_scc1 {lab}\ns_mov_b64 exec, 1")
            if c + 1 == 1:
                p(f"s_and_b32 {s(sT)}, s2, 1\ns_lshl_b32 {s(sT)}, {s(sT)}, 7\nv_mov_b32 {v(t4)}, {s(sT)}")
                p(f"buffer_atomic_add {v(vONE)}, {v(t4)}, {s(rDBG,4)}, 0 offen sc1")
            else:
                p(f"buffer_store_dword {v(vONE)}, {v(vFA)}, {s(rWS,4)}, 0 offen sc1")
            p(f"s_mov_b64 exec, -1\n{lab}:")
        if c < 15: p(weave(mfmas(1, False), reads(c + 1, 0), per_gap=1))
    Qp = lambda t: 120 + 4 * t
    Kp = lambda t: 136 + 4 * (t + 1)
    Vp = lambda u, t: 224 + 10 * u + 2 * (t + 1)
    Hp = 156
    def pk(dst, a): return [f"v_cvt_pk_bf16_f32 {v(dst)}, {v(a)}, {v(a+1)}", f"v_cvt_pk_bf16_f32 {v(dst+1)}, {v(a+2)}, {v(a+3)}"]
    M = mfmas(1, False)
    fill = pk(Hp, accHK) + pk(Hp + 2, accHV)
    for u in range(2): fill += pk(Kp(3) + 2 * u, accK(3, u))
    for u in range(2): fill += pk(Vp(u, 3), accV(3, u))
    fill += [f"ds_write_b64 {v(vEh)}, {v(Hp,2)}", f"ds_write_b64 {v(vEh)}, {v(Hp+2,2)} offset:1024"]
    for u in range(2):
        fill += [f"ds_write_b64 {v(vE3)}, {v(Kp(3)+2*u,2)} offset:{512*u}", f"ds_write_b64 {v(vE3)}, {v(Vp(u,3),2)} offset:{1024+512*u}"]
    p(f"s_lshl_b32 {s(sT)}, {s(sHH)}, 2\nv_add_u32 {v(t0)}, {s(sT)}, {v(vCNT)}")
    for t in (3,):
        for u in range(2): fill += pk(Qp(t) + 2 * u, accQ(t, u))
    for t in (2, 1):
        for u in range(2): fill += pk(Kp(t) + 2 * u, accK(t, u))
        for u in range(2): fill += pk(Qp(t) + 2 * u, accQ(t, u))
    p(weave(M, fill, per_gap=2, start=9))
    lds_arrive(p, t0, S1, vONE)
    st(p, "B.T0")
    for u in range(2): p(pk(Kp(0) + 2 * u, accK(0, u)))
    for u in range(2): p(pk(Qp(0) + 2 * u, accQ(0, u)))
    Sp = lambda t: ACC + 8 * t; Sc = lambda t: ACC + 8 * t + 4
    def smm(d, kt, qt, c="0"): return f"v_mfma_f32_16x16x32_bf16 {v(d,4)}, {v(Kp(kt),4)}, {v(Qp(qt),4)}, {c}"
    SM = [smm(Sc(3), 3, 3), smm(Sp(3), 2, 3), smm(Sc(2), 2, 2), smm(Sp(2), 1, 2), smm(Sc(1), 1, 1), smm(Sp(1), 0, 1), smm(Sc(0), 0, 0)]
    fill = []
    for t in (2, 1, 0):
        for u in range(2): fill += pk(Vp(u, t), accV(t, u))
    p(weave(SM, fill, per_gap=2))
    ex = [f"ds_read_b64 {v(Kp(-1)+2*u,2)}, {v(vEr+u)}" for u in range(2)] + [f"ds_read_b64 {v(Vp(u,-1),2)}, {v(vEr+u)} offset:1024" for u in range(2)]
    lds_wait(p, "LB_s1", t0, S1, 2, t1, extra=ex)
    p(smm(Sp(0), -1, 0, v(NEG, 4)))
    Xv = lambda t, j: ACC + 32 + 2 * t + j
    Mx = lambda t: ACC + 40 + t
    Tm = ACC + 44
    for t in (3, 2, 1, 0):
        for j, m in ((0, mLe0), (1, mLe1)):
            p(f"v_cndmask_b32 {v(Tm)}, {v(Sc(t)+2*j)}, {v(Sc(t)+2*j+1)}, {s(mPar,2)}")
            p(f"v_cndmask_b32 {v(Tm+1)}, {v(Sp(t)+2*j)}, {v(Sp(t)+2*j+1)}, {s(mPar,2)}")
            p(f"v_cndmask_b32 {v(Xv(t,j))}, {v(Tm+1)}, {v(Tm)}, {s(m,2)}")
        p(f"v_max_f32 {v(Mx(t))}, {v(Xv(t,0))}, {v(Xv(t,1))}")
    def allred(op, mid):
        m0, m1, m2, m3 = (Mx(t) for t in range(4))
        p(f"v_permlane32_swap_b32 {v(m2)}, {v(m3)}\nv_permlane32_swap_b32 {v(m0)}, {v(m1)}")
        p(f"{op} {v(m2)}, {v(m2)}, {v(m3)}\n{op} {v(m0)}, {v(m0)}, {v(m1)}")
        p(f"v_permlane16_swap_b32 {v(m0)}, {v(m2)}\n{op} {v(m0)}, {v(m0)}, {v(m2)}")
        p(mid(m0))
        p(f"v_mov_b32 {v(m2)}, {v(m0)}\nv_permlane16_swap_b32 {v(m0)}, {v(m2)}")
        p(f"v_mov_b32 {v(m1)}, {v(m0)}\nv_mov_b32 {v(m3)}, {v(m2)}")
        p(f"v_permlane32_swap_b32 {v(m0)}, {v(m1)}\nv_permlane32_swap_b32 {v(m2)}, {v(m3)}")
    cs = (32 ** -0.5) * math.log2(math.e)
    p(f"s_mov_b32 {s(sT+2)}, {hex(f2u(cs))}")
    allred("v_max_f32", lambda m: f"v_mul_f32 {v(m)}, {s(sT+2)}, {v(m)}")
    for t in range(4):
        for j in range(2): p(f"v_fma_f32 {v(Xv(t,j))}, {v(Xv(t,j))}, {s(sT+2)}, -{v(Mx(t))}")
    for t in range(4):
        for j in range(2): p(f"v_exp_f32 {v(Xv(t,j))}, {v(Xv(t,j))}")
    for t in range(4): p(f"v_add_f32 {v(Mx(t))}, {v(Xv(t,0))}, {v(Xv(t,1))}")
    allred("v_add_f32", lambda m: f"v_rcp_f32 {v(m)}, {v(m)}")
    Pf = lambda t: ACC + 48 + 4 * t
    Oa = lambda t, u: ACC + 8 * t + 4 * u
    Of = lambda t: ACC + 64 + 4 * t
    for t in range(4):
        for j in range(2): p(f"v_mul_f32 {v(Xv(t,j))}, {v(Xv(t,j))}, {v(Mx(t))}")
        p(f"v_cvt_pk_bf16_f32 {v(Xv(t,0))}, {v(Xv(t,0))}, {v(Xv(t,1))}")
        for k in range(4): p(f"v_perm_b32 {v(Pf(t)+k)}, {v(Xv(t,0))}, {v(Xv(t,0))}, {v(SEL+k)}")
        if t > 0:
            for u in range(2): p(f"v_mfma_f32_16x16x32_bf16 {v(Oa(t-1,u),4)}, {v(Vp(u,t-2),4)}, {v(Pf(t-1),4)}, 0")
    for u in range(2): p(f"v_mfma_f32_16x16x32_bf16 {v(Oa(3,u),4)}, {v(Vp(u,2),4)}, {v(Pf(3),4)}, 0")
    for t in range(4):
        for u in range(2): p(pk(Of(t) + 2 * u, Oa(t, u)))
        p(f"s_add_u32 {s(sSO)}, {s(sOB)}, {32768*t}")
        p(f"buffer_store_dwordx4 {v(Of(t),4)}, {v(vL16)}, {s(rWS,4)}, {s(sSO)} offen sc1", "ost")
    st(p, "B.ostiss")
    vWA = 2
    p(f"v_bfe_u32 {v(t1)}, v0, 3, 2\nv_lshlrev_b32 {v(t1)}, 5, {v(t1)}\nv_and_b32 {v(t2)}, 3, v0\nv_lshl_add_u32 {v(t1)}, {v(t2)}, 3, {v(t1)}")
    p(f"v_lshrrev_b32 {v(t2)}, 2, v0\nv_lshl_add_u32 {v(t1)}, {v(t2)}, 7, {v(t1)}\ns_lshl_b32 {s(sT)}, {s(sTH)}, 11\nv_add_u32 {v(t1)}, {s(sT)}, {v(t1)}")
    for j in range(2):
        for u in range(4): p(f"v_xor_b32 {v(vWA+4*j+u)}, {2048*j + 32*u}, {v(t1)}")
    p(f"v_and_b32 {v(t1)}, 15, v0\ns_lshl_b32 {s(sT)}, {s(sRB4)}, 2\ns_add_u32 {s(sT)}, {s(sT)}, {s(wb)}\ns_lshl_b32 {s(sT+1)}, {s(sT)}, 5\nv_add_u32 {v(t1)}, {s(sT+1)}, {v(t1)}\nv_lshlrev_b32 {v(t1)}, 12, {v(t1)}")
    p(f"v_bfe_u32 {v(t2)}, v0, 4, 1\nv_lshl_add_u32 {v(t1)}, {v(t2)}, 5, {v(t1)}\nv_lshrrev_b32 {v(t2)}, 5, v0\nv_lshl_add_u32 {v(t1)}, {v(t2)}, 4, {v(t1)}")
    p(f"s_lshl_b32 {s(sT+1)}, {s(sCB)}, 7\ns_add_u32 {s(sT+1)}, {s(sT+1)}, 2048\nv_add_u32 {v(t0)}, {s(sT+1)}, {v(t1)}")
    vOUT = t0
    sO0, sO1, sPF = 88, 89, 90
    p(f"s_lshl_b32 {s(sO0)}, {s(sT)}, 16\ns_add_u32 {s(sO0)}, {s(sO0)}, {WS_O}")
    p(f"s_lshl_b32 {s(sPF)}, {s(sRB4)}, 1\ns_add_u32 {s(sPF)}, {s(sPF)}, {s(sTH)}\ns_lshl_b32 {s(sPF)}, {s(sPF)}, 8\ns_add_u32 {s(sPF)}, {s(sPF)}, {F_O}")
    p(f"v_and_b32 {v(t2)}, 31, v0\nv_lshlrev_b32 {v(t2)}, 2, {v(t2)}")
    p.wait_vm("ost")
    p(f"s_mov_b64 exec, 4\nbuffer_store_dword {v(vONE)}, {v(vFA)}, {s(rWS,4)}, 0 offen sc1\ns_mov_b64 exec, -1")
    st(p, "B.oflag")
    A4 = 16; WF = [48, 64]; OF = 80; NR = 21
    def wreads(stp):
        k = stp & 1; loc = wo_loc(stp)
        base = 0 if stp < 16 else (65536 if stp < 24 else HB)
        return [f"ds_read_b64_tr_b16 {v(WF[k]+4*u+2*j,2)}, {v(vWA+4*j+u)} offset:{loc-base}" for u in range(4) for j in range(2)]
    def oload(stp):
        L = []
        for tt in range(2):
            r = OF + 8 * (stp % NR) + 4 * tt
            if stp % 4 == 0: L.append(f"s_add_u32 {s(sO1+2*tt)}, {s(sO0)}, {32768*tt + 1024*stp}")
            L.append(f"buffer_load_dwordx4 {v(r,4)}, {v(vL16)}, {s(rWS,4)}, {s(sO1+2*tt)} offen offset:{1024*(stp%4)} sc1")
        return L
    lds_wait(p, "LB_s2", vCNT, S2, 4, t1, extra=wreads(0))
    gpoll(p, cfg, "LB_po", rWS, t2, s(sPF), 1, t1)
    st(p, "B.opoll")
    for stp in range(NR): p(oload(stp))
    for stp in range(32):
        k = stp & 1
        p("s_waitcnt lgkmcnt(0)")
        if stp == 1: st(p, "B.p4s1")
        fill = []
        if stp + 1 in (16, 24):
            d = 65536 if stp + 1 == 16 else HB - 65536
            p([f"v_add_u32 {v(vWA+i)}, {d}, {v(vWA+i)}" for i in range(8)])
        if stp + 1 == 24: lds_wait(p, "LB_s4", vCNT, S4, 4, t1)
        if stp < 31: fill += wreads(stp + 1)
        if stp >= 1 and stp - 1 + NR < 32: fill += oload(stp - 1 + NR)
        M = [f"v_mfma_f32_16x16x32_bf16 {v(A4+16*tt+4*u,4)}, {v(WF[k]+4*u,4)}, {v(OF+8*(stp%NR)+4*tt,4)}, {'0' if stp == 0 else v(A4+16*tt+4*u,4)}" for tt in range(2) for u in range(4)]
        p(weave(M, fill, per_gap=2))
    st(p, "B.p4end")
    PK = 48
    for tt in range(2):
        for pr in range(2):
            d = PK + 8 * tt + 4 * pr
            p(pk(d, A4 + 16 * tt + 8 * pr) + pk(d + 2, A4 + 16 * tt + 8 * pr + 4))
            p(f"v_permlane16_swap_b32 {v(d)}, {v(d+2)}\nv_permlane16_swap_b32 {v(d+1)}, {v(d+3)}")
            p(f"s_mov_b32 {s(sSO)}, {65536*tt}")
            p(f"buffer_store_dwordx4 {v(d,4)}, {v(vOUT)}, {s(rOUT,4)}, {s(sSO)} offen offset:{64*pr} {cfg.pol_out}")
    st(p, "B.outiss")
    if cfg.diag:
        p("s_waitcnt vmcnt(0)"); st(p, "B.end"); st(p, "B.real1", real=True); st.dump(p, t1, 1)
    p("s_endpgm")
    p.names = st.names
    return p, slow

HEAD = open(__file__.rsplit("/", 1)[0] + "/head.txt").read() if "/" in __file__ else open("head.txt").read()

def generate(cfg, verbose=False):
    c = gen_common(cfg); a = gen_A(cfg); b, slow = gen_B(cfg, a.kvflag_bar)
    pa = Prog(); pa.L = c.L + a.L
    ta = pa.finalize(verbose)
    pb = Prog(); pb.L = c.L + b.L
    pb.finalize(verbose)
    i = next(k for k, y in enumerate(pb.out) if y.text == "L_B:")
    tb = "\n".join(("" if y.kind == "label" else "    ") + y.text for y in pb.out[i:])
    ts = slow.finalize()
    txt = HEAD + f"; @launch grid=(256,1,1) block=(512,1,1) lds={LDS_BYTES}\n"
    txt += f""".amdgcn_target "amdgcn-amd-amdhsa--gfx950"
.text
.globl {NAME}_kernel
.p2align 8
.type {NAME}_kernel,@function
{NAME}_kernel:
{ta}
{tb}
{ts}
L_end:
    s_endpgm
.section .rodata,"a"
.p2align 6
.amdhsa_kernel {NAME}_kernel
  .amdhsa_next_free_vgpr 256
  .amdhsa_next_free_sgpr 102
  .amdhsa_accum_offset 256
  .amdhsa_group_segment_fixed_size 0
  .amdhsa_kernarg_size 96
  .amdhsa_user_sgpr_count 2
  .amdhsa_user_sgpr_kernarg_segment_ptr 1
  .amdhsa_system_sgpr_workgroup_id_x 1
.end_amdhsa_kernel
"""
    return txt, (a.names, b.names)

if __name__ == "__main__":
    cfg = Cfg(); out = None
    for arg in sys.argv[1:]:
        if "=" in arg:
            k, val = arg.split("=", 1)
            cur = getattr(cfg, k)
            setattr(cfg, k, (val not in ("0", "False")) if isinstance(cur, bool) else type(cur)(val.replace("+", " ")))
        else: out = arg
    txt, names = generate(cfg, True)
    if cfg.diag: txt = txt.replace(".amdgcn_target", f"; stamps A {' '.join(names[0])}\n; stamps B {' '.join(names[1])}\n.amdgcn_target", 1)
    open(out or f"/code/{NAME}.s", "w").write(txt)
```

```python
import sys, math, struct
from asmlib import *

NAME = "concat_heads__ssm_conv_h3__sliding_local_dilated__prompt"

class Cfg:
    diag = False
    nt_in = "nt"
    pol_x = ""
    pol_w = ""
    pol_wo = ""
    pol_out = ""
    prioB = 2
    spin = 200000
    codepf = True
    noclear = False
    nop1 = False
    first = 3
    leadD = 0.0
    rot = 0
    warm = 0
    probe = 0
    probe_ptr = 16
    probe_pol = ""
    enc = ""
    encwg = 37
    early = False
    encbase = 10000
    dbgdump = ""

WR = 0; XR = 73728; XS = 18432; HB = 129024; HS = 8320; CNT = 162304
XIMG = XR + XS; EXCH = XR + 2 * XS; WO22 = EXCH + 10240
LDS_BYTES = 163840
S1, S2, S3, S4 = 0, 8, 12, 16
def wo_loc(st):
    if st < 22: return 4096 * st
    if st < 24: return WO22 + 4096 * (st - 22)
    return HB + ((st - 24) >> 1) * HS + 4096 * (st & 1)
WS_KV = 0; WS_Y = 4 << 20; WS_O = 8 << 20; WS_F = 12 << 20; WS_DBG = 13 << 20
F_KV = WS_F; F_Y = WS_F + 4096; F_O = WS_F + 4096 + 16384
pQ, pK, pV, pSH, pH, pD, pX, pW, pWO, pOUT, pDBG, pWS = 4, 6, 8, 10, 12, 14, 16, 18, 20, 22, 24, 26
rX, rW, rK, rV, rSH, rH, rWS, rQ, rOUT, rWO, rDBG = 28, 32, 36, 40, 44, 48, 52, 56, 60, 64, 68
sWV = 3; sRB, sHG, sCT, sM, sRB4, sCB = 72, 73, 74, 75, 76, 77
sT = 78
sSTAMP = 84

def srd(p, r, ptr, nbytes):
    p(f"s_mov_b32 {s(r)}, {s(ptr)}\ns_mov_b32 {s(r+1)}, {s(ptr+1)}\ns_mov_b32 {s(r+2)}, {hex(nbytes)}\ns_mov_b32 {s(r+3)}, 0x20000")

def f2u(x): return struct.unpack("<I", struct.pack("<f", x))[0]

class Stamper:
    def __init__(self, cfg, vreg): self.cfg = cfg; self.n = 0; self.vreg = vreg; self.names = []
    def __call__(self, p, name, real=False):
        if not self.cfg.diag: return
        if not (self.cfg.early and self.n == 0): p(f"{'s_memrealtime' if real else 's_memtime'} {s(sSTAMP,2)}")
        p(f"s_waitcnt lgkmcnt(0)\nv_writelane_b32 {v(self.vreg)}, {s(sSTAMP)}, {self.n}")
        self.names.append(name); self.n += 1
    def dump(self, p, vtmp, role):
        if not self.cfg.diag: return
        cfg = self.cfg; rn = "AB"[role]
        if cfg.dbgdump == rn or cfg.enc.startswith(rn) or (cfg.enc == "zero" and role == 0):
            p(f"s_cmp_lg_u32 s2, {cfg.encwg}\ns_cbranch_scc1 L_noenc{rn}\ns_cmp_lg_u32 {s(sWV)}, 0\ns_cbranch_scc1 L_noenc{rn}")
            if cfg.dbgdump == rn:
                srd(p, rDBG, pDBG, 256)
                p(f"v_readlane_b32 {s(sT)}, {v(self.vreg)}, 1\ns_nop 3\nv_subrev_u32 v1, {s(sT)}, {v(self.vreg)}\nv_lshlrev_b32 {v(vtmp)}, 2, v0\nv_subrev_u32 {v(vtmp)}, 4, {v(vtmp)}")
                p(f"s_mov_b64 exec, 0x1fffc\nbuffer_store_dword v1, {v(vtmp)}, {s(rDBG,4)}, 0 offen\ns_mov_b64 exec, -1")
            if cfg.enc.startswith(rn) or (cfg.enc == "zero" and role == 0):
                p(f"v_readlane_b32 {s(sT)}, {v(self.vreg)}, 0")
                if cfg.enc != "zero":
                    a, b = cfg.enc.split("-")
                    p(f"v_readlane_b32 {s(sT+1)}, {v(self.vreg)}, {self.names.index(a)}\nv_readlane_b32 {s(sT+2)}, {v(self.vreg)}, {self.names.index(b)}\ns_nop 3")
                    p(f"s_sub_u32 {s(sT+1)}, {s(sT+1)}, {s(sT+2)}")
                    if "real" not in a: p(f"s_mul_i32 {s(sT+1)}, {s(sT+1)}, 6554\ns_lshr_b32 {s(sT+1)}, {s(sT+1)}, 16")
                    p(f"s_add_u32 {s(sT)}, {s(sT)}, {s(sT+1)}")
                p(f"s_nop 3\ns_add_u32 {s(sT)}, {s(sT)}, {cfg.encbase}\nL_enc{rn}:\ns_memrealtime {s(sSTAMP,2)}\ns_waitcnt lgkmcnt(0)\ns_sub_u32 {s(sT+1)}, {s(sSTAMP)}, {s(sT)}\ns_cmp_lt_i32 {s(sT+1)}, 0\ns_cbranch_scc1 L_enc{rn}")
            p(f"L_noenc{rn}:")
        p(f"s_lshl_b32 {s(sT)}, s2, 3\ns_add_u32 {s(sT)}, {s(sT)}, {s(sWV)}\ns_add_u32 {s(sT)}, {s(sT)}, {4*role}\ns_lshl_b32 {s(sT)}, {s(sT)}, 8\ns_add_u32 {s(sT)}, {s(sT)}, {hex(WS_DBG)}")
        p(f"v_lshlrev_b32 {v(vtmp)}, 2, v0\nbuffer_store_dword {v(self.vreg)}, {v(vtmp)}, {s(rWS,4)}, {s(sT)} offen")

def lds_wait(p, name, vcnt, off, target, vt, extra=None):
    p(f"{name}:")
    p(f"ds_read_b32 {v(vt)}, {v(vcnt)} offset:{off}")
    if extra: p(extra)
    p(f"s_waitcnt lgkmcnt(0)\nv_readfirstlane_b32 {s(sT)}, {v(vt)}\ns_nop 0\ns_cmp_ge_u32 {s(sT)}, {target}\ns_cbranch_scc0 {name}")

def lds_arrive(p, vcnt, off, vone):
    p(f"s_mov_b64 exec, 1\nds_add_u32 {v(vcnt)}, {v(vone)} offset:{off}\ns_mov_b64 exec, -1")

def gpoll(p, cfg, name, srdr, vaddr, soff, want, vt, sleep=2):
    p(f"s_mov_b32 {s(sT+1)}, 0")
    p(f"{name}:")
    p(f"buffer_load_dword {v(vt)}, {v(vaddr)}, {s(srdr,4)}, {soff} offen sc1")
    p(f"s_add_u32 {s(sT+1)}, {s(sT+1)}, 1\ns_cmp_gt_u32 {s(sT+1)}, {cfg.spin}\ns_cbranch_scc1 {name}_x")
    p(f"s_waitcnt vmcnt(0)\nv_cmp_{'gt' if want > 1 else 'ne'}_u32 vcc, {want}, {v(vt)}\ns_cbranch_vccz {name}_x")
    p(f"s_sleep {sleep}\ns_branch {name}")
    p(f"{name}_x:\ns_waitcnt vmcnt(0)")

def gen_common(cfg):
    p = Prog()
    if cfg.early: p(f"s_memrealtime {s(sSTAMP,2)}")
    p("s_cmp_ge_u32 s2, 256\ns_cbranch_scc1 L_end")
    p(f"s_load_dwordx4 {s(pX,4)}, s[0:1], 48")
    p(f"s_load_dwordx8 {s(pQ,8)}, s[0:1], 0\ns_load_dwordx4 {s(pH,4)}, s[0:1], 32\ns_load_dwordx8 {s(pWO,8)}, s[0:1], 64")
    p(f"v_lshrrev_b32 v1, 6, v0\nv_and_b32 v0, 63, v0\nv_readfirstlane_b32 {s(sWV)}, v1")
    x, j = sT, sT + 1
    p(f"s_and_b32 {s(x)}, s2, 7\ns_lshr_b32 {s(j)}, s2, 3")
    a, b = sT + 2, sT + 3
    p(f"s_and_b32 {s(a)}, {s(x)}, 1\ns_lshl_b32 {s(a)}, {s(a)}, 3")
    p(f"s_lshr_b32 {s(b)}, {s(x)}, 1\ns_lshl_b32 {s(b)}, {s(b)}, 2")
    p(f"s_and_b32 {s(sRB)}, {s(j)}, 7\ns_add_u32 {s(sRB)}, {s(sRB)}, {s(a)}")
    p(f"s_lshr_b32 {s(sHG)}, {s(j)}, 3\ns_add_u32 {s(sHG)}, {s(sHG)}, {s(b)}")
    p(f"s_and_b32 {s(sRB4)}, {s(j)}, 3\ns_add_u32 {s(sRB4)}, {s(sRB4)}, {s(b)}")
    p(f"s_lshr_b32 {s(sCB)}, {s(j)}, 2\ns_add_u32 {s(sCB)}, {s(sCB)}, {s(a)}")
    p(f"s_lshr_b32 {s(sCT)}, {s(j)}, 4\ns_lshl_b32 {s(x)}, {s(x)}, 1\ns_add_u32 {s(sCT)}, {s(sCT)}, {s(x)}")
    p(f"s_and_b32 {s(sM)}, {s(j)}, 15")
    if cfg.probe:
        p("s_waitcnt lgkmcnt(0)")
        srd(p, rDBG, cfg.probe_ptr, 4 << 20)
        p(f"s_lshl_b32 {s(sT)}, s2, 8\nv_mov_b32 v2, {s(sT)}\ns_mov_b32 {s(sT)}, 0\nL_probe:")
        p(f"buffer_load_dword v3, v2, {s(rDBG,4)}, 0 offen {cfg.probe_pol}\nv_add_u32 v2, 65536, v2\ns_waitcnt vmcnt(0)")
        p(f"s_add_u32 {s(sT)}, {s(sT)}, 1\ns_cmp_lt_u32 {s(sT)}, {cfg.probe}\ns_cbranch_scc1 L_probe")
    p(f"s_cmp_ge_u32 {s(sWV)}, 4\ns_cbranch_scc1 L_B")
    return p

def gen_A(cfg):
    p = Prog(); st = Stamper(cfg, 255)
    wa = sWV
    vX, vH, vW = 2, 3, 4
    t0, t1, t2, t3 = 5, 6, 7, 8
    sMW, sMX, sMH, sSO = 86, 87, 88, 89
    st(p, "A.real0", real=True); st(p, "A.start")
    p(f"v_lshrrev_b32 {v(t0)}, 3, v0\nv_and_b32 {v(t1)}, 7, v0\nv_lshrrev_b32 {v(t2)}, 4, v0")
    p(f"s_and_b32 {s(sT)}, {s(wa)}, 1\ns_lshl_b32 {s(sT)}, {s(sT)}, 2")
    p(f"s_lshl_b32 {s(sT+1)}, {s(sRB)}, 7\ns_lshl_b32 {s(sT+2)}, {s(wa)}, 3\ns_add_u32 {s(sT+3)}, {s(sT+1)}, {s(sT+2)}")
    p(f"v_add_u32 {v(t3)}, {s(sT)}, {v(t2)}\nv_xor_b32 {v(t3)}, {v(t3)}, {v(t1)}\nv_lshlrev_b32 {v(t3)}, 4, {v(t3)}")
    p(f"v_add_u32 {v(vX)}, {s(sT+3)}, {v(t0)}\nv_lshl_add_u32 {v(vX)}, {v(vX)}, 11, {v(t3)}")
    p(f"v_and_b32 {v(t3)}, 1, {v(t2)}\nv_lshl_or_b32 {v(t3)}, {v(t3)}, 1, {s(sT)}\nv_xor_b32 {v(t3)}, {v(t3)}, {v(t1)}\nv_lshlrev_b32 {v(t3)}, 4, {v(t3)}")
    p(f"v_add_u32 {v(vW)}, {s(sT+2)}, {v(t0)}\nv_mul_u32_u24 {v(vW)}, 6144, {v(vW)}\ns_lshl_b32 {s(sT+4)}, {s(sHG)}, 7\nv_add3_u32 {v(vW)}, {v(vW)}, {v(t3)}, {s(sT+4)}")
    p(f"s_lshl_b32 {s(sT)}, {s(wa)}, 1\ns_lshl_b32 {s(sT+2)}, {s(wa)}, 2\ns_add_u32 {s(sT+1)}, {s(sT+1)}, {s(sT+2)}\ns_sub_u32 {s(sT+1)}, {s(sT+1)}, 16")
    p(f"v_add_u32 {v(t3)}, {s(sT)}, {v(t2)}\nv_xor_b32 {v(t3)}, {v(t3)}, {v(t1)}\nv_and_b32 {v(t3)}, 7, {v(t3)}\nv_lshlrev_b32 {v(t3)}, 4, {v(t3)}")
    p(f"v_add_u32 {v(vH)}, {s(sT+1)}, {v(t0)}\nv_lshl_add_u32 {v(vH)}, {v(vH)}, 11, {v(t3)}")
    p(f"s_lshl_b32 {s(sMW)}, {s(wa)}, 10\ns_add_u32 {s(sMX)}, {s(sMW)}, {XR+2048}\ns_lshl_b32 {s(sMH)}, {s(wa)}, 9\ns_add_u32 {s(sMH)}, {s(sMH)}, {XR}")
    p("s_waitcnt lgkmcnt(0)")
    srd(p, rX, pX, 4 << 20); srd(p, rW, pW, 6 << 20)

    def dma(m0base, m0off, vaddr, srdr, soff, pol, tag, imm=0):
        L = [f"s_add_u32 m0, {s(m0base)}, {m0off}"]
        if isinstance(soff, int): L.append(f"s_mov_b32 {s(sSO)}, {soff}")
        else: L.append(f"s_add_u32 {s(sSO)}, {s(soff[0])}, {soff[1]}")
        L.append(Ins(f"buffer_load_dwordx4 {v(vaddr)}, {s(srdr,4)}, {s(sSO)} offen {f'offset:{imm} ' if imm else ''}{pol} lds", tag))
        return L
    sTB, sROT, sCX, sCW = 98, 100, 97, 101
    def order(rho):
        o = sorted(range(16), key=lambda c: c - (cfg.leadD if c % 4 == rho else 0))
        return sum(c << (4 * t) for t, c in enumerate(o))
    p(f"s_add_u32 {s(sT)}, {s(sRB)}, {s(sHG)}\ns_and_b32 {s(sT)}, {s(sT)}, 3")
    p(f"s_mov_b32 {s(sTB)}, {hex(order(0) & 0xffffffff)}\ns_mov_b32 {s(sTB+1)}, {hex(order(0) >> 32)}")
    if cfg.leadD:
        for rho in range(1, 4):
            p(f"s_cmp_eq_u32 {s(sT)}, {rho}\ns_cselect_b32 {s(sTB)}, {hex(order(rho) & 0xffffffff)}, {s(sTB)}\ns_cselect_b32 {s(sTB+1)}, {hex(order(rho) >> 32)}, {s(sTB+1)}")
    if cfg.rot:
        p(f"s_and_b32 {s(sROT)}, {s(sHG)}, 12\ns_and_b32 {s(sT)}, {s(sRB)}, 8\ns_add_u32 {s(sROT)}, {s(sROT)}, {s(sT)}")
    else: p(f"s_mov_b32 {s(sROT)}, 0")
    def chunk(c):
        sl = c % 3; tag = f"ch{c}"
        L = [f"s_lshr_b32 {s(sCX)}, {s(sTB + (c >> 3))}, {4 * (c & 7)}", f"s_add_u32 {s(sCX)}, {s(sCX)}, {s(sROT)}", f"s_and_b32 {s(sCX)}, {s(sCX)}, 15",
             f"s_mul_i32 {s(sCW)}, {s(sCX)}, {64*6144}", f"s_lshl_b32 {s(sCX)}, {s(sCX)}, 7"]
        xs = [dma(sMX, sl * XS + n * 4096, vX, rX, (sCX, n * 65536), cfg.pol_x, tag) for n in range(4)]
        ws = [dma(sMW, part * 24576 + sl * 8192 + n * 4096, vW, rW, (sCW, 32 * n * 6144 + part * 2048), cfg.pol_w, tag)
              for n in range(2) for part in range(3)]
        hl = ["s_mov_b64 exec, 0xffffffff"] + dma(sMH, sl * XS, vH, rX, (sCX, 0), cfg.pol_x, tag) + ["s_mov_b64 exec, -1"]
        order = [xs[0], ws[0], ws[1], xs[1], ws[2], xs[2], ws[3], ws[4], xs[3], ws[5], hl]
        for o in order: L += o
        return L
    if cfg.warm:
        p(f"v_lshlrev_b32 {v(t0)}, 4, v0\nv_add_u32 {v(t0)}, {s(sMW)}, {v(t0)}\ns_lshl_b32 {s(sT)}, s2, 14\ns_mul_i32 {s(sT+1)}, s2, 24576")
        for n in range(4):
            p(f"buffer_load_dwordx4 {v(200+4*n,4)}, {v(t0)}, {s(rX,4)}, {s(sT)} offen\ns_add_u32 {s(sT)}, {s(sT)}, 4096")
        for n in range(6):
            p(f"buffer_load_dwordx4 {v(216+4*n,4)}, {v(t0)}, {s(rW,4)}, {s(sT+1)} offen\ns_add_u32 {s(sT+1)}, {s(sT+1)}, 4096")
    for c in range(cfg.first): p(chunk(c))
    st(p, "A.iss012")
    srd(p, rK, pK, 4 << 20); srd(p, rV, pV, 4 << 20); srd(p, rSH, pSH, 8192); srd(p, rH, pH, 4 << 20)
    srd(p, rWS, pWS, 16 << 20); srd(p, rQ, pQ, 4 << 20); srd(p, rOUT, pOUT, 8 << 20); srd(p, rWO, pWO, 2 << 20)
    vKV, vKM, vSHa, vST, vOUT, vXI, vL16, vL16o, vWO, vCNT, vONE, vEP = 9, 10, 11, 12, 13, 14, 15, 16, 17, 18, 19, 20
    vAB = 21
    vBB = 25
    sCH, sGRP, sD, sH0, sHBW, sWA16, s4096 = 90, 91, 92, 93, 94, 95, 96
    p(f"v_bfe_u32 {v(t0)}, v0, 3, 2\nv_lshrrev_b32 {v(t1)}, 5, v0\nv_and_b32 {v(t2)}, 7, v0")
    p(f"s_lshl_b32 {s(sT)}, {s(sM)}, 7\ns_lshl_b32 {s(sT+1)}, {s(wa)}, 5\ns_add_u32 {s(sT)}, {s(sT)}, {s(sT+1)}")
    p(f"v_lshlrev_b32 {v(t3)}, 3, {v(t0)}\nv_lshl_add_u32 {v(t3)}, {v(t1)}, 2, {v(t3)}\nv_add_u32 {v(t3)}, {s(sT)}, {v(t3)}")
    p(f"s_lshl_b32 {s(sT+1)}, {s(sCT)}, 7\nv_lshl_add_u32 {v(vSHa)}, {v(t2)}, 4, {s(sT+1)}")
    p(f"v_lshl_add_u32 {v(vKV)}, {v(t3)}, 11, {v(vSHa)}\nv_lshl_add_u32 {v(vOUT)}, {v(t3)}, 12, {v(vSHa)}")
    p(f"v_subrev_u32 {v(vKM)}, 6144, {v(vKV)}\nv_lshlrev_b32 {v(vSHa)}, 2, {v(vSHa)}")
    p(f"v_bfe_u32 {v(t3)}, v0, 2, 1\nv_lshlrev_b32 {v(t3)}, 1, {v(t3)}\nv_add_u32 {v(t3)}, {v(t3)}, {v(t1)}\nv_lshlrev_b32 {v(t3)}, 16, {v(t3)}")
    p(f"v_lshl_add_u32 {v(t3)}, {v(t0)}, 6, {v(t3)}\nv_and_b32 {v(t2)}, 3, v0\nv_lshl_add_u32 {v(t3)}, {v(t2)}, 4, {v(t3)}")
    p(f"s_lshl_b32 {s(sT)}, {s(sT)}, 3\ns_lshl_b32 {s(sT+1)}, {s(sCT)}, 18\ns_add_u32 {s(sT)}, {s(sT)}, {s(sT+1)}\nv_add_u32 {v(vST)}, {s(sT)}, {v(t3)}")
    p(f"s_lshl_b32 {s(sGRP)}, {s(sCT)}, 4\ns_add_u32 {s(sGRP)}, {s(sGRP)}, {s(sM)}")
    p(f"s_lshr_b32 {s(sT)}, {s(sGRP)}, 3\ns_lshl_b32 {s(sT)}, {s(sT)}, 5\ns_and_b32 {s(sT+1)}, {s(sGRP)}, 7\ns_add_u32 {s(sT)}, {s(sT)}, {s(sT+1)}")
    p(f"s_lshl_b32 {s(sT+1)}, {s(wa)}, 3\ns_add_u32 {s(sCH)}, {s(sT)}, {s(sT+1)}\ns_lshl_b32 {s(sGRP)}, {s(sGRP)}, 14")
    p(f"s_lshr_b32 {s(sT)}, {s(sCH)}, 1\ns_lshl_b32 {s(sT)}, {s(sT)}, 2\ns_lshl_b32 {s(sT+1)}, {s(sCH)}, 12")
    p(f"s_load_dword {s(sD)}, {s(pD,2)}, {s(sT)}\ns_load_dword {s(sH0)}, {s(pH,2)}, {s(sT+1)}")
    p(f"s_mul_i32 {s(sHBW)}, {s(wa)}, {HS}\ns_add_u32 {s(sHBW)}, {s(sHBW)}, {HB}\ns_lshl_b32 {s(sWA16)}, {s(wa)}, 14\ns_mov_b32 {s(s4096)}, 4096")
    p(f"v_bfe_u32 {v(t0)}, v0, 2, 2\nv_lshlrev_b32 {v(t0)}, 1, {v(t0)}\nv_lshl_add_u32 {v(t0)}, {v(t1)}, 3, {v(t0)}\nv_bfe_u32 {v(t3)}, v0, 4, 1\nv_add_u32 {v(t0)}, {v(t0)}, {v(t3)}")
    p(f"s_and_b32 {s(sT)}, {s(wa)}, 1\ns_lshl_b32 {s(sT)}, {s(sT)}, 1\nv_add_u32 {v(t3)}, {s(sT)}, {v(t1)}\nv_xor_b32 {v(t3)}, {v(t3)}, {v(t2)}\nv_lshlrev_b32 {v(t3)}, 4, {v(t3)}")
    p(f"v_lshl_add_u32 {v(t0)}, {v(t0)}, 6, {v(t3)}\nv_add_u32 {v(vXI)}, {s(sMW)}, {v(t0)}")
    p(f"v_lshlrev_b32 {v(vL16)}, 4, v0\nv_add_u32 {v(vL16o)}, 2, {v(vL16)}")
    p(f"v_lshrrev_b32 {v(t0)}, 4, v0\nv_lshlrev_b32 {v(t0)}, 1, {v(t0)}\nv_and_b32 {v(t3)}, 7, v0\nv_xor_b32 {v(t0)}, {v(t0)}, {v(t3)}\nv_lshlrev_b32 {v(t0)}, 4, {v(t0)}")
    p(f"v_lshrrev_b32 {v(t3)}, 3, v0\nv_lshl_add_u32 {v(t0)}, {v(t3)}, 11, {v(t0)}\ns_lshl_b32 {s(sT)}, {s(sCB)}, 7\nv_add_u32 {v(vWO)}, {s(sT)}, {v(t0)}")
    p(f"v_mov_b32 {v(vCNT)}, {CNT}\nv_mov_b32 {v(vONE)}, 1")

    def addr_setup():
        L = []
        L += f"v_and_b32 {v(t0)}, 15, v0\nv_lshrrev_b32 {v(t1)}, 4, v0\nv_add_u32 {v(t2)}, 9, {v(t0)}\nv_and_b32 {v(t3)}, 1, {v(t2)}\nv_mul_u32_u24 {v(t3)}, 4160, {v(t3)}".split("\n")
        L += f"v_lshrrev_b32 {v(t2)}, 1, {v(t2)}\nv_lshl_add_u32 {v(t3)}, {v(t2)}, 2, {v(t3)}\nv_lshlrev_b32 {v(t2)}, 4, {v(t1)}\nv_sub_u32 {v(t3)}, {v(t3)}, {v(t2)}".split("\n")
        L += [f"s_add_u32 {s(sT)}, {s(sHBW)}, 32", f"v_add_u32 {v(vAB)}, {s(sT)}, {v(t3)}"]
        L += [f"v_add_u32 {v(vAB+k)}, {1024*k}, {v(vAB)}" for k in range(1, 4)]
        def ximg(dst):
            return f"""v_lshrrev_b32 {v(t3)}, 3, {v(t2)}
v_and_b32 {v(dst)}, 3, {v(t3)}
v_xor_b32 {v(dst)}, {s(wa)}, {v(dst)}
v_lshl_add_u32 {v(dst)}, {v(t3)}, 5, {v(dst)}
v_and_b32 {v(t3)}, 1, {v(t2)}
v_lshl_add_u32 {v(dst)}, {v(t3)}, 4, {v(dst)}
v_bfe_u32 {v(t3)}, {v(t2)}, 1, 2
v_lshl_add_u32 {v(dst)}, {v(t3)}, 2, {v(dst)}
v_lshlrev_b32 {v(dst)}, 4, {v(dst)}
v_add_u32 {v(dst)}, {XIMG}, {v(dst)}""".split("\n")
        for n in range(8):
            L += [f"v_lshl_add_u32 {v(t2)}, {v(t0)}, 1, {v(t1)}", f"v_add_u32 {v(t2)}, {30-4*n}, {v(t2)}"] + ximg(vBB + n)
        L += [f"v_lshrrev_b32 {v(t2)}, 1, {v(t1)}", f"v_lshl_add_u32 {v(t2)}, {v(t0)}, 1, {v(t2)}", f"v_add_u32 {v(t2)}, 32, {v(t2)}"] + ximg(vEP)
        L += [f"v_and_b32 {v(t3)}, 1, {v(t1)}", f"v_xor_b32 {v(t3)}, 1, {v(t3)}", f"v_lshl_add_u32 {v(vEP)}, {v(t3)}, 3, {v(vEP)}"]
        return L

    Kr, Vr, SHr, G = 40, 68, 84, 100
    Ku, Vu, Wu, Ac = 116, 123, 127, 131
    def p1_loads():
        L = []
        for i in range(4): L.append(Ins(f"buffer_load_dwordx4 {v(SHr+4*i,4)}, {v(vSHa)}, {s(rSH,4)}, 0 offen offset:{16*i}", "p1ld"))
        for j in range(7):
            base, jj = (vKM, j) if j < 3 else (vKV, j - 3)
            L.append(Ins(f"buffer_load_dwordx4 {v(Kr+4*j,4)}, {v(base)}, {s(rK,4)}, {s(s4096) if jj >= 2 else 0} offen offset:{2048*(jj&1)} {cfg.nt_in}", "p1ld"))
        for j in range(4):
            L.append(Ins(f"buffer_load_dwordx4 {v(Vr+4*j,4)}, {v(vKV)}, {s(rV,4)}, {s(s4096) if j >= 2 else 0} offen offset:{2048*(j&1)} {cfg.nt_in}", "p1ld"))
        return L
    def unp(dst, src, hi):
        return f"v_and_b32 {v(dst)}, 0xffff0000, {v(src)}" if hi else f"v_lshlrev_b32 {v(dst)}, 16, {v(src)}"
    def p1_chan(c):
        L = []; d, hi = c >> 1, c & 1
        for j in range(7): L.append(unp(Ku + j, Kr + 4 * j + d, hi))
        for t in range(4): L.append(unp(Wu + t, SHr + 2 * c + (t >> 1), t & 1))
        for j in range(4): L.append(unp(Vu + j, Vr + 4 * j + d, hi))
        for j in range(4): L.append(f"v_mul_f32 {v(Ac+j)}, {v(Ku+j)}, {v(Wu+3)}")
        for t in (2, 1, 0):
            for j in range(4): L.append(f"v_fmac_f32 {v(Ac+j)}, {v(Ku+j+3-t)}, {v(Wu+t)}")
        for j in range(4): L.append(f"v_mul_f32 {v(Ac+j)}, {v(Ac+j)}, {v(Vu+j)}")
        dst = G + 4 * (c & 3) + (2 if c < 4 else 0)
        L.append(f"v_cvt_pk_bf16_f32 {v(dst)}, {v(Ac+3)}, {v(Ac+2)}")
        L.append(f"v_cvt_pk_bf16_f32 {v(dst+1)}, {v(Ac+1)}, {v(Ac+0)}")
        return L
    def swaps():
        return [f"v_permlane32_swap_b32 {v(G+4*c+2+d)}, {v(G+4*c+d)}" for c in range(4) for d in range(2)]
    def p1_store():
        L = swaps()
        for c in range(4):
            L.append(f"s_mov_b32 {s(sSO)}, {WS_KV + c*16384}")
            L.append(Ins(f"buffer_store_dwordx4 {v(G+4*c,4)}, {v(vST)}, {s(rWS,4)}, {s(sSO)} offen sc1", "kvst"))
        return L
    def h_dma(odd):
        L = [f"s_add_u32 m0, {s(sHBW)}, {32 + 4160*odd}", f"s_lshl_b32 {s(sSO)}, {s(sCH)}, 12"]
        for n in range(4):
            L.append(Ins(f"buffer_load_dwordx4 {v(vL16o if odd else vL16)}, {s(rH,4)}, {s(sSO)} offen offset:{1024*n} {'' if odd == 0 else cfg.nt_in} lds", "hld"))
        return L
    def h_pad():
        return f"""s_waitcnt lgkmcnt(0)
s_lshl_b32 {s(sH0)}, {s(sH0)}, 16
s_and_b32 {s(sT)}, {s(sD)}, 0xffff0000
s_lshl_b32 {s(sD)}, {s(sD)}, 16
s_bitcmp1_b32 {s(sCH)}, 0
s_cselect_b32 {s(sD)}, {s(sT)}, {s(sD)}
v_lshrrev_b32 {v(t0)}, 3, v0
v_mul_u32_u24 {v(t0)}, 4160, {v(t0)}
v_and_b32 {v(t1)}, 7, v0
v_lshl_add_u32 {v(t0)}, {v(t1)}, 2, {v(t0)}
v_add_u32 {v(t0)}, {s(sHBW)}, {v(t0)}
v_mov_b32 {v(t1)}, 0
v_writelane_b32 {v(t1)}, {s(sH0)}, 15
s_mov_b64 exec, 0xffff
ds_write_b32 {v(t0)}, {v(t1)}
s_mov_b64 exec, -1""".split("\n")

    side = {c: [] for c in range(16)}
    side[0] = p1_loads() + addr_setup()
    side[1] = h_pad()
    for i, c in enumerate(range(3, 7)): side[c] = p1_chan(2 * i) + p1_chan(2 * i + 1)
    side[6] += p1_store()
    side[7] = h_dma(0); side[8] = h_dma(1)
    if cfg.nop1:
        side = {c: [] for c in range(16)}; side[0] = addr_setup(); side[1] = h_pad()
    KVFLAG_BAR = 9
    for c in range(16):
        p.wait_vm(f"ch{c}")
        if c == KVFLAG_BAR: p.wait_vm("kvst")
        p("s_barrier")
        if c in (0, 1, 4, 8, 12, 15): st(p, f"A.bar{c}")
        if c == 0:
            for cc in range(cfg.first, 3): p(chunk(cc))
        if c >= 1 and c + 2 <= 15: p(chunk(c + 2))
        if c == 14:
            for nn in range(4):
                p(dma(sMW, XIMG + 2048 + nn * 4096, vXI, rWS, (sGRP, WS_KV + nn * 4096), "sc1", "xi"))
            p(f"v_lshlrev_b32 {v(t0)}, 3, v0\ns_add_u32 {s(sT)}, {s(sMH)}, {XS}\nv_add_u32 {v(t0)}, {s(sT)}, {v(t0)}\nv_mov_b32 {v(t1)}, 0\nv_mov_b32 {v(t2)}, 0")
            p(f"ds_write_b64 {v(t0)}, {v(t1,2)}")
        p(side[c])
    p("s_waitcnt vmcnt(0) lgkmcnt(0)\ns_barrier")
    st(p, "A.bar15b")
    ACC = 36; FA = [68, 132]; FB = [100, 164]
    def conv_reads(n):
        k = n & 1; L = []
        def ra(nu):
            o = 16 * n + 128 * (nu & 1)
            return [f"ds_read2_b32 {v(FA[k]+4*nu,2)}, {v(vAB+(nu>>1))} offset0:{o} offset1:{o+1}",
                    f"ds_read2_b32 {v(FA[k]+4*nu+2,2)}, {v(vAB+(nu>>1))} offset0:{o+2} offset1:{o+3}"]
        def rb(ka): return [f"ds_read_b128 {v(FB[k]+4*ka,4)}, {v(vBB+n)} offset:{2048*ka}"]
        for i in range(8): L += ra(i) + rb(i)
        return L
    def conv_mfma(n):
        k = n & 1; L = []
        for nu in range(8):
            for ka in range(8 - nu):
                a = v(ACC + 4 * (nu + ka), 4)
                c = "0" if (n == 0 and nu == 0) else a
                L.append(f"v_mfma_f32_16x16x32_bf16 {a}, {v(FA[k]+4*nu,4)}, {v(FB[k]+4*ka,4)}, {c}")
        return L
    wo1 = []
    for stp in range(24): wo1 += dma(sMW, wo_loc(stp), vWO, rWO, (sWA16, stp * 65536), cfg.pol_wo, "wo1")
    p(conv_reads(0)); p(wo1)
    KVr = 196
    for n in range(8):
        p("s_waitcnt lgkmcnt(0)")
        if n < 7: fill = conv_reads(n + 1)
        else:
            fill = [f"s_lshl_b32 {s(sT+2)}, {s(wa)}, 17"]
            for o in range(8): fill += dma(sHBW, o * 1024, vWO, rWO, (sT + 2, (768 + 8 * o) * 2048), cfg.pol_wo, "wo2")
            fill += [f"ds_read_b64 {v(KVr+2*t,2)}, {v(vEP)} offset:{2048*t}" for t in range(8)]
        p(weave(conv_mfma(n), fill, per_gap=1))
        if n == 4:
            p.wait_vm("wo1"); lds_arrive(p, vCNT, S2, vONE)
    st(p, "A.convend")
    U = 68
    for t in range(8):
        a = ACC + 4 * t; kq = KVr + 2 * t; u = U + 4 * (t & 1)
        p([unp(u + 3, kq, 0), unp(u + 2, kq, 1), unp(u + 1, kq + 1, 0), unp(u + 0, kq + 1, 1)])
        for r in range(4): p(f"v_fmac_f32 {v(a+r)}, {s(sD)}, {v(u+r)}")
        p(f"v_cvt_pk_bf16_f32 {v(kq)}, {v(a+3)}, {v(a+2)}\nv_cvt_pk_bf16_f32 {v(kq+1)}, {v(a+1)}, {v(a+0)}")
        p(f"ds_write_b64 {v(vEP)}, {v(kq,2)} offset:{2048*t}")
    lds_arrive(p, vCNT, S3, vONE)
    YR = 76
    p(f"s_add_u32 {s(sT+2)}, {s(sMW)}, {XIMG+2048}\nv_add_u32 {v(t0)}, {s(sT+2)}, {v(vL16)}")
    lds_wait(p, "LA_s3", vCNT, S3, 4, t1, extra=[f"ds_read_b128 {v(YR+4*nn,4)}, {v(t0)} offset:{4096*nn}" for nn in range(4)])
    for nn in range(4):
        p(f"s_add_u32 {s(sSO)}, {s(sGRP)}, {WS_Y + nn*4096}")
        p(f"buffer_store_dwordx4 {v(YR+4*nn,4)}, {v(vXI)}, {s(rWS,4)}, {s(sSO)} offen sc1", "yst")
    Qr, Qu = 116, 132
    for j in range(4):
        p(f"buffer_load_dwordx4 {v(Qr+4*j,4)}, {v(vKV)}, {s(rQ,4)}, {s(s4096) if j >= 2 else 0} offen offset:{2048*(j&1)} {cfg.nt_in}", "qld")
    st(p, "A.ystiss")
    p.wait_vm("wo2"); lds_arrive(p, vCNT, S4, vONE)
    p(f"s_lshl_b32 {s(sT+2)}, {s(sCT)}, 2\ns_add_u32 {s(sT+3)}, {s(sT+2)}, {s(wa)}\ns_lshl_b32 {s(sT+3)}, {s(sT+3)}, 8\ns_lshl_b32 {s(sT+4)}, {s(sM)}, 2\ns_add_u32 {s(sT+3)}, {s(sT+3)}, {s(sT+4)}\ns_add_u32 {s(sT+3)}, {s(sT+3)}, {F_Y}")
    p(f"s_and_b32 {s(sT+4)}, {s(sM)}, 3\ns_add_u32 {s(sT+2)}, {s(sT+2)}, {s(sT+4)}\ns_lshl_b32 {s(sT+2)}, {s(sT+2)}, 8\ns_add_u32 {s(sT+2)}, {s(sT+2)}, {F_Y}")
    p(f"v_mov_b32 {v(t0)}, 0\nv_and_b32 {v(t2)}, 15, v0\nv_lshlrev_b32 {v(t2)}, 2, {v(t2)}")
    p.wait_vm("yst")
    p(f"s_mov_b64 exec, 1\nbuffer_store_dword {v(vONE)}, {v(t0)}, {s(rWS,4)}, {s(sT+3)} offen sc1\ns_mov_b64 exec, -1")
    st(p, "A.yflag")
    for j in range(4):
        for c in range(8): p(unp(Qu + 8 * j + c, Qr + 4 * j + (c >> 1), c & 1))
    gpoll(p, cfg, "LA_py", rWS, t2, s(sT + 2), 1, t1)
    st(p, "A.ypoll")
    for c in range(4):
        p(f"s_mov_b32 {s(sSO)}, {WS_Y + c*16384}")
        p(f"buffer_load_dwordx4 {v(G+4*c,4)}, {v(vST)}, {s(rWS,4)}, {s(sSO)} offen sc1")
    p(swaps())
    OR = 36; T = 68
    for j in range(4):
        for c in range(8):
            src = G + 4 * (c & 3) + (2 if c < 4 else 0) + (0 if j >= 2 else 1)
            p(unp(T + c, src, 1 - (j & 1)))
        for c in range(8): p(f"v_mul_f32 {v(T+c)}, {v(T+c)}, {v(Qu+8*j+c)}")
        for d in range(4): p(f"v_cvt_pk_bf16_f32 {v(OR+4*j+d)}, {v(T+2*d)}, {v(T+2*d+1)}")
        p(f"s_mov_b32 {s(sSO)}, {4096*j}")
        p(f"buffer_store_dwordx4 {v(OR+4*j,4)}, {v(vOUT)}, {s(rOUT,4)}, {s(sSO)} offen {cfg.pol_out}")
    st(p, "A.outiss")
    if cfg.diag:
        p("s_waitcnt vmcnt(0)"); st(p, "A.end"); st(p, "A.real1", real=True); st.dump(p, t0, 0)
    p("s_endpgm")
    p.kvflag_bar = KVFLAG_BAR; p.names = st.names
    return p

def gen_B(cfg, kvflag_bar):
    p = Prog(); slow = Prog(); st = Stamper(cfg, 255)
    wb = sWV
    p("L_B:")
    p(f"s_setprio {cfg.prioB}\ns_and_b32 {s(wb)}, {s(wb)}, 3")
    st(p, "B.real0", real=True); st(p, "B.start")
    sTH, sHH = 86, 87
    mPar, mLe0, mLe1 = 88, 90, 92
    sOB, sSO, sFK = 94, 95, 96
    vXh, vXo, vWq, vWv = 2, 4, 6, 8
    vCNT, vONE, vL16 = 10, 11, 12
    t0, t1, t2 = 13, 14, 15
    ACC = 16
    accQ = lambda t, u: ACC + 8 * t + 4 * u
    accK = lambda t, u: ACC + 32 + 8 * t + 4 * u
    accV = lambda t, u: ACC + 64 + 8 * t + 4 * u
    accHK, accHV = ACC + 96, ACC + 100
    FS = [120, 164]
    fx = lambda k, t: FS[k] + 4 * t
    fw = lambda k, part, u: FS[k] + 20 + 8 * part + 4 * u
    SEL, NEG, vEh, vE3, vEr, vPO, vFA = 208, 212, 216, 217, 218, 220, 221
    t3, t4 = 222, 223
    p(f"s_lshr_b32 {s(sTH)}, {s(wb)}, 1\ns_and_b32 {s(sHH)}, {s(wb)}, 1")
    p(f"v_mov_b32 {v(vCNT)}, {CNT}\nv_mov_b32 {v(vONE)}, 1\nv_lshlrev_b32 {v(vL16)}, 4, v0")
    p(f"v_lshl_add_u32 {v(t0)}, v0, 2, {v(vCNT)}\nv_mov_b32 {v(t1)}, 0\nds_write_b32 {v(t0)}, {v(t1)}")
    p(f"s_lshl_b32 {s(sT)}, {s(sM)}, 2\ns_lshl_b32 {s(sFK)}, {s(sCT)}, 8\ns_add_u32 {s(sFK)}, {s(sFK)}, {F_KV}\ns_add_u32 {s(sT+1)}, {s(sFK)}, {s(sT)}")
    p(f"s_lshl_b32 {s(sT+2)}, {s(sCT)}, 2\ns_add_u32 {s(sT+2)}, {s(sT+2)}, {s(wb)}\ns_lshl_b32 {s(sT+2)}, {s(sT+2)}, 8\ns_add_u32 {s(sT+2)}, {s(sT+2)}, {s(sT)}\ns_add_u32 {s(sT+2)}, {s(sT+2)}, {F_Y}")
    p(f"s_lshl_b32 {s(sT+3)}, {s(sRB)}, 1\ns_add_u32 {s(sT+3)}, {s(sT+3)}, {s(sTH)}\ns_lshl_b32 {s(sT+3)}, {s(sT+3)}, 8")
    p(f"s_lshl_b32 {s(sT+4)}, {s(sHG)}, 1\ns_add_u32 {s(sT+4)}, {s(sT+4)}, {s(sHH)}")
    p(f"s_lshl_b32 {s(sT)}, {s(sT+4)}, 2\ns_add_u32 {s(sT+3)}, {s(sT+3)}, {s(sT)}\ns_add_u32 {s(sT+3)}, {s(sT+3)}, {F_O}")
    p(f"v_mov_b32 {v(vFA)}, {s(sT+1)}\nv_writelane_b32 {v(vFA)}, {s(sT+2)}, 1\nv_writelane_b32 {v(vFA)}, {s(sT+3)}, 2")
    p(f"s_lshl_b32 {s(sT)}, {s(sRB)}, 1\ns_add_u32 {s(sT)}, {s(sT)}, {s(sTH)}\ns_lshl_b32 {s(sT)}, {s(sT)}, 7\ns_add_u32 {s(sT)}, {s(sT)}, {s(sT+4)}\ns_lshl_b32 {s(sOB)}, {s(sT)}, 10\ns_add_u32 {s(sOB)}, {s(sOB)}, {WS_O}")
    p("s_waitcnt lgkmcnt(0)")
    srd(p, rWS, pWS, 16 << 20); srd(p, rDBG, pDBG, 256); srd(p, rOUT, pOUT, 8 << 20)
    if not cfg.noclear: p(f"s_mov_b64 exec, 7\nbuffer_store_dword {v(t1)}, {v(vFA)}, {s(rWS,4)}, 0 offen sc1\ns_mov_b64 exec, -1")
    if cfg.codepf:
        p(f"s_getpc_b64 {s(sT+2,2)}\nLB_pc:")
        p(f"s_sub_u32 {s(sT+2)}, {s(sT+2)}, LB_pc-{NAME}_kernel\ns_subb_u32 {s(sT+3)}, {s(sT+3)}, 0")
        p(f"s_lshr_b32 {s(sT)}, s2, 3\ns_and_b32 {s(sT)}, {s(sT)}, 7\ns_lshl_b32 {s(sT)}, {s(sT)}, 2\ns_add_u32 {s(sT)}, {s(sT)}, {s(wb)}")
        p(f"v_lshlrev_b32 {v(t0)}, 5, v0\nv_add_u32 {v(t0)}, {s(sT)}, {v(t0)}\nv_lshlrev_b32 {v(t0)}, 7, {v(t0)}")
        p(f"v_cmp_gt_u32 vcc, L_end-{NAME}_kernel, {v(t0)}\ns_and_saveexec_b64 {s(sT+4,2)}, vcc")
        p(f"global_load_dword {v(t3)}, {v(t0)}, {s(sT+2,2)}\ns_mov_b64 exec, -1")
    c_, g_ = t0, t1
    p(f"v_and_b32 {v(c_)}, 15, v0\nv_lshrrev_b32 {v(g_)}, 4, v0")
    p(f"v_lshrrev_b32 {v(t2)}, 1, {v(c_)}\nv_xor_b32 {v(t2)}, {v(t2)}, {v(g_)}\nv_lshlrev_b32 {v(t2)}, 4, {v(t2)}\nv_lshl_add_u32 {v(t2)}, {v(c_)}, 7, {v(t2)}")
    p(f"v_add_u32 {v(vXh)}, {XR}, {v(t2)}\nv_xor_b32 {v(vXh+1)}, 64, {v(vXh)}")
    p(f"s_lshl_b32 {s(sT)}, {s(sTH)}, 13\ns_add_u32 {s(sT)}, {s(sT)}, 2048\nv_add_u32 {v(vXo)}, {s(sT)}, {v(vXh)}\nv_add_u32 {v(vXo+1)}, {s(sT)}, {v(vXh+1)}")
    p(f"v_bfe_u32 {v(t2)}, v0, 3, 2")
    p(f"s_lshl_b32 {s(sT)}, {s(sHH)}, 1\ns_add_u32 {s(sT)}, {s(sT)}, {s(sTH)}\nv_xor_b32 {v(t2)}, {s(sT)}, {v(t2)}\nv_lshlrev_b32 {v(t2)}, 5, {v(t2)}")
    p(f"v_and_b32 {v(t4)}, 3, v0\nv_lshl_add_u32 {v(t2)}, {v(t4)}, 3, {v(t2)}\nv_bfe_u32 {v(t4)}, v0, 2, 2\nv_lshl_add_u32 {v(t2)}, {v(t4)}, 7, {v(t2)}")
    p(f"v_lshl_add_u32 {v(vWq)}, {v(g_)}, 10, {v(t2)}\nv_xor_b32 {v(vWq+1)}, 32, {v(vWq)}\nv_add_u32 {v(vWv)}, 49152, {v(vWq)}\nv_add_u32 {v(vWv+1)}, 49152, {v(vWq+1)}")
    p(f"v_and_b32 {v(t2)}, 1, {v(c_)}\nv_cmp_eq_u32 {s(mPar,2)}, 1, {v(t2)}")
    p(f"v_lshl_add_u32 {v(t2)}, {v(g_)}, 2, {v(t2)}\nv_cmp_le_u32 {s(mLe0,2)}, {v(t2)}, {v(c_)}\nv_add_u32 {v(t2)}, 2, {v(t2)}\nv_cmp_le_u32 {s(mLe1,2)}, {v(t2)}, {v(c_)}")
    p(f"v_mov_b32 {v(NEG)}, 0x0c0c0c0c")
    for j, m in ((0, mLe0), (1, mLe1)):
        lo = 0x0c0c0000 | ((2*j+1) << 8) | (2*j); hi = ((2*j+1) << 24) | ((2*j) << 16) | 0x0c0c
        p(f"v_mov_b32 {v(t2)}, {hex(lo)}\nv_mov_b32 {v(t4)}, {hex(hi)}\nv_cndmask_b32 {v(t2)}, {v(t2)}, {v(t4)}, {s(mPar,2)}")
        p(f"v_cndmask_b32 {v(SEL+j)}, {v(t2)}, {v(NEG)}, {s(m,2)}\nv_cndmask_b32 {v(SEL+2+j)}, {v(NEG)}, {v(t2)}, {s(m,2)}")
    p(f"s_or_b32 {s(sT)}, {s(sRB)}, {s(sTH)}\ns_cmp_eq_u32 {s(sT)}, 0\ns_cselect_b32 {s(sT)}, {hex(f2u(-1e30))}, 0")
    for r in range(4): p(f"v_mov_b32 {v(NEG+r)}, {s(sT)}")
    p(f"s_lshl_b32 {s(sT)}, {s(sHH)}, 12\ns_add_u32 {s(sT)}, {s(sT)}, {EXCH}\ns_lshl_b32 {s(sT+1)}, {s(sTH)}, 9\ns_add_u32 {s(sT+1)}, {s(sT+1)}, {s(sT)}")
    p(f"v_lshlrev_b32 {v(t2)}, 3, v0\nv_add_u32 {v(vEh)}, {s(sT+1)}, {v(t2)}")
    p(f"s_lshl_b32 {s(sT+2)}, {s(sTH)}, 11\nv_add_u32 {v(vEr)}, {s(sT+2)}, {v(vEh)}\nv_xor_b32 {v(vEr+1)}, 512, {v(vEr)}")
    p(f"s_add_u32 {s(sT)}, {s(sT)}, 2048\ns_cmp_eq_u32 {s(sTH)}, 0\ns_cselect_b32 {s(sT)}, {s(sT)}, {EXCH+8192}\nv_add_u32 {v(vE3)}, {s(sT)}, {v(t2)}")

    def reads(c, ks):
        k = ks; sl = c % 3; L = []
        X = [f"ds_read_b128 {v(fx(k,t),4)}, {v(vXo+ks)} offset:{sl*XS + 2048*t}" for t in range(4)]
        X.append(f"ds_read_b128 {v(fx(k,4),4)}, {v(vXh+ks)} offset:{sl*XS}")
        W = []
        for part in range(3):
            for u in range(2):
                for j in range(2):
                    base = (vWv if part == 2 else vWq) + u
                    off = (part & 1) * 24576 + sl * 8192 + ks * 4096 + j * 512
                    W.append(f"ds_read_b64_tr_b16 {v(fw(k,part,u)+2*j,2)}, {v(base)} offset:{off}")
        return X + W
    def mfmas(k, first, last=False):
        def mm(a, A, B): return f"v_mfma_f32_16x16x32_bf16 {v(a,4)}, {v(A,4)}, {v(B,4)}, {'0' if first else v(a,4)}"
        H = [mm(accHK, fw(k,1,0), fx(k,4)), mm(accHV, fx(k,4), fw(k,2,0))]
        Q = lambda t: [mm(accQ(t,u), fw(k,0,u), fx(k,t)) for u in range(2)]
        K = lambda t: [mm(accK(t,u), fw(k,1,u), fx(k,t)) for u in range(2)]
        V = lambda t: [mm(accV(t,u), fx(k,t), fw(k,2,u)) for u in range(2)]
        return H + K(3) + V(3) + Q(3) + K(2) + Q(2) + K(1) + Q(1) + K(0) + Q(0) + V(2) + V(1) + V(0)

    p("s_waitcnt lgkmcnt(0)\ns_barrier")
    st(p, "B.bar0")
    p(reads(0, 0))
    vP = t3
    for c in range(16):
        p("s_waitcnt lgkmcnt(0)")
        extra = []
        if c == 9:
            extra = [f"v_and_b32 {v(t4)}, 1, v0", f"v_lshlrev_b32 {v(t4)}, 7, {v(t4)}", f"buffer_load_dword {v(vP)}, {v(t4)}, {s(rDBG,4)}, 0 offen sc1"]
        if c == 12:
            extra = [f"v_and_b32 {v(t4)}, 15, v0", f"v_lshlrev_b32 {v(t4)}, 2, {v(t4)}", f"buffer_load_dword {v(vP)}, {v(t4)}, {s(rWS,4)}, {s(sFK)} offen sc1"]
        p(weave(mfmas(0, c == 0), reads(c, 1) + extra, per_gap=1))
        if c == 0: p("s_waitcnt vmcnt(0)")
        if c in (11, 13):
            want = 128 if c == 11 else 1
            p(f"s_waitcnt vmcnt(0)\nv_cmp_{'gt' if want > 1 else 'ne'}_u32 vcc, {want}, {v(vP)}\ns_cbranch_vccnz LB_slow{c}\nLB_back{c}:")
            slow(f"LB_slow{c}:")
            if c == 11: gpoll(slow, cfg, "LB_pc11", rDBG, t4, "0", 128, vP)
            else: gpoll(slow, cfg, "LB_pk13", rWS, t4, s(sFK), 1, vP)
            slow(f"s_branch LB_back{c}")
        p("s_waitcnt lgkmcnt(0)\ns_barrier")
        if c in (0, 3, 7, 11, 15): st(p, f"B.bar{c+1}")
        if c + 1 == 1 or c + 1 == kvflag_bar:
            lab = f"LB_sk{c+1}"
            p(f"s_cmp_lg_u32 {s(wb)}, 0\ns_cbranch_scc1 {lab}\ns_mov_b64 exec, 1")
            if c + 1 == 1:
                p(f"s_and_b32 {s(sT)}, s2, 1\ns_lshl_b32 {s(sT)}, {s(sT)}, 7\nv_mov_b32 {v(t4)}, {s(sT)}")
                p(f"buffer_atomic_add {v(vONE)}, {v(t4)}, {s(rDBG,4)}, 0 offen sc1")
            else:
                p(f"buffer_store_dword {v(vONE)}, {v(vFA)}, {s(rWS,4)}, 0 offen sc1")
            p(f"s_mov_b64 exec, -1\n{lab}:")
        if c < 15: p(weave(mfmas(1, False), reads(c + 1, 0), per_gap=1))
    Qp = lambda t: 120 + 4 * t
    Kp = lambda t: 136 + 4 * (t + 1)
    Vp = lambda u, t: 224 + 10 * u + 2 * (t + 1)
    Hp = 156
    def pk(dst, a): return [f"v_cvt_pk_bf16_f32 {v(dst)}, {v(a)}, {v(a+1)}", f"v_cvt_pk_bf16_f32 {v(dst+1)}, {v(a+2)}, {v(a+3)}"]
    M = mfmas(1, False)
    fill = pk(Hp, accHK) + pk(Hp + 2, accHV)
    for u in range(2): fill += pk(Kp(3) + 2 * u, accK(3, u))
    for u in range(2): fill += pk(Vp(u, 3), accV(3, u))
    fill += [f"ds_write_b64 {v(vEh)}, {v(Hp,2)}", f"ds_write_b64 {v(vEh)}, {v(Hp+2,2)} offset:1024"]
    for u in range(2):
        fill += [f"ds_write_b64 {v(vE3)}, {v(Kp(3)+2*u,2)} offset:{512*u}", f"ds_write_b64 {v(vE3)}, {v(Vp(u,3),2)} offset:{1024+512*u}"]
    p(f"s_lshl_b32 {s(sT)}, {s(sHH)}, 2\nv_add_u32 {v(t0)}, {s(sT)}, {v(vCNT)}")
    for t in (3,):
        for u in range(2): fill += pk(Qp(t) + 2 * u, accQ(t, u))
    for t in (2, 1):
        for u in range(2): fill += pk(Kp(t) + 2 * u, accK(t, u))
        for u in range(2): fill += pk(Qp(t) + 2 * u, accQ(t, u))
    p(weave(M, fill, per_gap=2, start=9))
    lds_arrive(p, t0, S1, vONE)
    st(p, "B.T0")
    for u in range(2): p(pk(Kp(0) + 2 * u, accK(0, u)))
    for u in range(2): p(pk(Qp(0) + 2 * u, accQ(0, u)))
    Sp = lambda t: ACC + 8 * t; Sc = lambda t: ACC + 8 * t + 4
    def smm(d, kt, qt, c="0"): return f"v_mfma_f32_16x16x32_bf16 {v(d,4)}, {v(Kp(kt),4)}, {v(Qp(qt),4)}, {c}"
    SM = [smm(Sc(3), 3, 3), smm(Sp(3), 2, 3), smm(Sc(2), 2, 2), smm(Sp(2), 1, 2), smm(Sc(1), 1, 1), smm(Sp(1), 0, 1), smm(Sc(0), 0, 0)]
    fill = []
    for t in (2, 1, 0):
        for u in range(2): fill += pk(Vp(u, t), accV(t, u))
    p(weave(SM, fill, per_gap=2))
    ex = [f"ds_read_b64 {v(Kp(-1)+2*u,2)}, {v(vEr+u)}" for u in range(2)] + [f"ds_read_b64 {v(Vp(u,-1),2)}, {v(vEr+u)} offset:1024" for u in range(2)]
    lds_wait(p, "LB_s1", t0, S1, 2, t1, extra=ex)
    p(smm(Sp(0), -1, 0, v(NEG, 4)))
    Xv = lambda t, j: ACC + 32 + 2 * t + j
    Mx = lambda t: ACC + 40 + t
    Tm = ACC + 44
    for t in (3, 2, 1, 0):
        for j, m in ((0, mLe0), (1, mLe1)):
            p(f"v_cndmask_b32 {v(Tm)}, {v(Sc(t)+2*j)}, {v(Sc(t)+2*j+1)}, {s(mPar,2)}")
            p(f"v_cndmask_b32 {v(Tm+1)}, {v(Sp(t)+2*j)}, {v(Sp(t)+2*j+1)}, {s(mPar,2)}")
            p(f"v_cndmask_b32 {v(Xv(t,j))}, {v(Tm+1)}, {v(Tm)}, {s(m,2)}")
        p(f"v_max_f32 {v(Mx(t))}, {v(Xv(t,0))}, {v(Xv(t,1))}")
    def allred(op, mid):
        m0, m1, m2, m3 = (Mx(t) for t in range(4))
        p(f"v_permlane32_swap_b32 {v(m2)}, {v(m3)}\nv_permlane32_swap_b32 {v(m0)}, {v(m1)}")
        p(f"{op} {v(m2)}, {v(m2)}, {v(m3)}\n{op} {v(m0)}, {v(m0)}, {v(m1)}")
        p(f"v_permlane16_swap_b32 {v(m0)}, {v(m2)}\n{op} {v(m0)}, {v(m0)}, {v(m2)}")
        p(mid(m0))
        p(f"v_mov_b32 {v(m2)}, {v(m0)}\nv_permlane16_swap_b32 {v(m0)}, {v(m2)}")
        p(f"v_mov_b32 {v(m1)}, {v(m0)}\nv_mov_b32 {v(m3)}, {v(m2)}")
        p(f"v_permlane32_swap_b32 {v(m0)}, {v(m1)}\nv_permlane32_swap_b32 {v(m2)}, {v(m3)}")
    cs = (32 ** -0.5) * math.log2(math.e)
    p(f"s_mov_b32 {s(sT+2)}, {hex(f2u(cs))}")
    allred("v_max_f32", lambda m: f"v_mul_f32 {v(m)}, {s(sT+2)}, {v(m)}")
    for t in range(4):
        for j in range(2): p(f"v_fma_f32 {v(Xv(t,j))}, {v(Xv(t,j))}, {s(sT+2)}, -{v(Mx(t))}")
    for t in range(4):
        for j in range(2): p(f"v_exp_f32 {v(Xv(t,j))}, {v(Xv(t,j))}")
    for t in range(4): p(f"v_add_f32 {v(Mx(t))}, {v(Xv(t,0))}, {v(Xv(t,1))}")
    allred("v_add_f32", lambda m: f"v_rcp_f32 {v(m)}, {v(m)}")
    Pf = lambda t: ACC + 48 + 4 * t
    Oa = lambda t, u: ACC + 8 * t + 4 * u
    Of = lambda t: ACC + 64 + 4 * t
    for t in range(4):
        for j in range(2): p(f"v_mul_f32 {v(Xv(t,j))}, {v(Xv(t,j))}, {v(Mx(t))}")
        p(f"v_cvt_pk_bf16_f32 {v(Xv(t,0))}, {v(Xv(t,0))}, {v(Xv(t,1))}")
        for k in range(4): p(f"v_perm_b32 {v(Pf(t)+k)}, {v(Xv(t,0))}, {v(Xv(t,0))}, {v(SEL+k)}")
        if t > 0:
            for u in range(2): p(f"v_mfma_f32_16x16x32_bf16 {v(Oa(t-1,u),4)}, {v(Vp(u,t-2),4)}, {v(Pf(t-1),4)}, 0")
    for u in range(2): p(f"v_mfma_f32_16x16x32_bf16 {v(Oa(3,u),4)}, {v(Vp(u,2),4)}, {v(Pf(3),4)}, 0")
    for t in range(4):
        for u in range(2): p(pk(Of(t) + 2 * u, Oa(t, u)))
        p(f"s_add_u32 {s(sSO)}, {s(sOB)}, {32768*t}")
        p(f"buffer_store_dwordx4 {v(Of(t),4)}, {v(vL16)}, {s(rWS,4)}, {s(sSO)} offen sc1", "ost")
    st(p, "B.ostiss")
    vWA = 2
    p(f"v_bfe_u32 {v(t1)}, v0, 3, 2\nv_lshlrev_b32 {v(t1)}, 5, {v(t1)}\nv_and_b32 {v(t2)}, 3, v0\nv_lshl_add_u32 {v(t1)}, {v(t2)}, 3, {v(t1)}")
    p(f"v_lshrrev_b32 {v(t2)}, 2, v0\nv_lshl_add_u32 {v(t1)}, {v(t2)}, 7, {v(t1)}\ns_lshl_b32 {s(sT)}, {s(sTH)}, 11\nv_add_u32 {v(t1)}, {s(sT)}, {v(t1)}")
    for j in range(2):
        for u in range(4): p(f"v_xor_b32 {v(vWA+4*j+u)}, {2048*j + 32*u}, {v(t1)}")
    p(f"v_and_b32 {v(t1)}, 15, v0\ns_lshl_b32 {s(sT)}, {s(sRB4)}, 2\ns_add_u32 {s(sT)}, {s(sT)}, {s(wb)}\ns_lshl_b32 {s(sT+1)}, {s(sT)}, 5\nv_add_u32 {v(t1)}, {s(sT+1)}, {v(t1)}\nv_lshlrev_b32 {v(t1)}, 12, {v(t1)}")
    p(f"v_bfe_u32 {v(t2)}, v0, 4, 1\nv_lshl_add_u32 {v(t1)}, {v(t2)}, 5, {v(t1)}\nv_lshrrev_b32 {v(t2)}, 5, v0\nv_lshl_add_u32 {v(t1)}, {v(t2)}, 4, {v(t1)}")
    p(f"s_lshl_b32 {s(sT+1)}, {s(sCB)}, 7\ns_add_u32 {s(sT+1)}, {s(sT+1)}, 2048\nv_add_u32 {v(t0)}, {s(sT+1)}, {v(t1)}")
    vOUT = t0
    sO0, sO1, sPF = 88, 89, 90
    p(f"s_lshl_b32 {s(sO0)}, {s(sT)}, 16\ns_add_u32 {s(sO0)}, {s(sO0)}, {WS_O}")
    p(f"s_lshl_b32 {s(sPF)}, {s(sRB4)}, 1\ns_add_u32 {s(sPF)}, {s(sPF)}, {s(sTH)}\ns_lshl_b32 {s(sPF)}, {s(sPF)}, 8\ns_add_u32 {s(sPF)}, {s(sPF)}, {F_O}")
    p(f"v_and_b32 {v(t2)}, 31, v0\nv_lshlrev_b32 {v(t2)}, 2, {v(t2)}")
    p.wait_vm("ost")
    p(f"s_mov_b64 exec, 4\nbuffer_store_dword {v(vONE)}, {v(vFA)}, {s(rWS,4)}, 0 offen sc1\ns_mov_b64 exec, -1")
    st(p, "B.oflag")
    A4 = 16; WF = [48, 64]; OF = 80; NR = 21
    def wreads(stp):
        k = stp & 1; loc = wo_loc(stp)
        base = 0 if stp < 16 else (65536 if stp < 24 else HB)
        return [f"ds_read_b64_tr_b16 {v(WF[k]+4*u+2*j,2)}, {v(vWA+4*j+u)} offset:{loc-base}" for u in range(4) for j in range(2)]
    def oload(stp):
        L = []
        for tt in range(2):
            r = OF + 8 * (stp % NR) + 4 * tt
            if stp % 4 == 0: L.append(f"s_add_u32 {s(sO1+2*tt)}, {s(sO0)}, {32768*tt + 1024*stp}")
            L.append(f"buffer_load_dwordx4 {v(r,4)}, {v(vL16)}, {s(rWS,4)}, {s(sO1+2*tt)} offen offset:{1024*(stp%4)} sc1")
        return L
    lds_wait(p, "LB_s2", vCNT, S2, 4, t1, extra=wreads(0))
    gpoll(p, cfg, "LB_po", rWS, t2, s(sPF), 1, t1)
    st(p, "B.opoll")
    for stp in range(NR): p(oload(stp))
    for stp in range(32):
        k = stp & 1
        p("s_waitcnt lgkmcnt(0)")
        if stp == 1: st(p, "B.p4s1")
        fill = []
        if stp + 1 in (16, 24):
            d = 65536 if stp + 1 == 16 else HB - 65536
            p([f"v_add_u32 {v(vWA+i)}, {d}, {v(vWA+i)}" for i in range(8)])
        if stp + 1 == 24: lds_wait(p, "LB_s4", vCNT, S4, 4, t1)
        if stp < 31: fill += wreads(stp + 1)
        if stp >= 1 and stp - 1 + NR < 32: fill += oload(stp - 1 + NR)
        M = [f"v_mfma_f32_16x16x32_bf16 {v(A4+16*tt+4*u,4)}, {v(WF[k]+4*u,4)}, {v(OF+8*(stp%NR)+4*tt,4)}, {'0' if stp == 0 else v(A4+16*tt+4*u,4)}" for tt in range(2) for u in range(4)]
        p(weave(M, fill, per_gap=2))
    st(p, "B.p4end")
    PK = 48
    for tt in range(2):
        for pr in range(2):
            d = PK + 8 * tt + 4 * pr
            p(pk(d, A4 + 16 * tt + 8 * pr) + pk(d + 2, A4 + 16 * tt + 8 * pr + 4))
            p(f"v_permlane16_swap_b32 {v(d)}, {v(d+2)}\nv_permlane16_swap_b32 {v(d+1)}, {v(d+3)}")
            p(f"s_mov_b32 {s(sSO)}, {65536*tt}")
            p(f"buffer_store_dwordx4 {v(d,4)}, {v(vOUT)}, {s(rOUT,4)}, {s(sSO)} offen offset:{64*pr} {cfg.pol_out}")
    st(p, "B.outiss")
    if cfg.diag:
        p("s_waitcnt vmcnt(0)"); st(p, "B.end"); st(p, "B.real1", real=True); st.dump(p, t1, 1)
    p("s_endpgm")
    p.names = st.names
    return p, slow

HEAD = open(__file__.rsplit("/", 1)[0] + "/head.txt").read() if "/" in __file__ else open("head.txt").read()

def generate(cfg, verbose=False):
    c = gen_common(cfg); a = gen_A(cfg); b, slow = gen_B(cfg, a.kvflag_bar)
    pa = Prog(); pa.L = c.L + a.L
    ta = pa.finalize(verbose)
    pb = Prog(); pb.L = c.L + b.L
    pb.finalize(verbose)
    i = next(k for k, y in enumerate(pb.out) if y.text == "L_B:")
    tb = "\n".join(("" if y.kind == "label" else "    ") + y.text for y in pb.out[i:])
    ts = slow.finalize()
    txt = HEAD + f"; @launch grid=(256,1,1) block=(512,1,1) lds={LDS_BYTES}\n"
    txt += f""".amdgcn_target "amdgcn-amd-amdhsa--gfx950"
.text
.globl {NAME}_kernel
.p2align 8
.type {NAME}_kernel,@function
{NAME}_kernel:
{ta}
{tb}
{ts}
L_end:
    s_endpgm
.section .rodata,"a"
.p2align 6
.amdhsa_kernel {NAME}_kernel
  .amdhsa_next_free_vgpr 256
  .amdhsa_next_free_sgpr 102
  .amdhsa_accum_offset 256
  .amdhsa_group_segment_fixed_size 0
  .amdhsa_kernarg_size 96
  .amdhsa_user_sgpr_count 2
  .amdhsa_user_sgpr_kernarg_segment_ptr 1
  .amdhsa_system_sgpr_workgroup_id_x 1
.end_amdhsa_kernel
"""
    return txt, (a.names, b.names)

if __name__ == "__main__":
    cfg = Cfg(); out = None
    for arg in sys.argv[1:]:
        if "=" in arg:
            k, val = arg.split("=", 1)
            cur = getattr(cfg, k)
            setattr(cfg, k, (val not in ("0", "False")) if isinstance(cur, bool) else type(cur)(val.replace("+", " ")))
        else: out = arg
    txt, names = generate(cfg, True)
    if cfg.diag: txt = txt.replace(".amdgcn_target", f"; stamps A {' '.join(names[0])}\n; stamps B {' '.join(names[1])}\n.amdgcn_target", 1)
    open(out or f"/code/{NAME}.s", "w").write(txt)
```

```python
import re

def v(n, c=1):
    return f"v{n}" if c == 1 else f"v[{n}:{n+c-1}]"
def s(n, c=1):
    return f"s{n}" if c == 1 else f"s[{n}:{n+c-1}]"

_REG = re.compile(r"^-?\|?(?:abs\()?([vsa])(?:(\d+)|\[(\d+):(\d+)\])\)?\|?$")
def regs_of(tok):
    tok = tok.strip()
    if tok in ("vcc", "exec", "m0", "scc"):
        return {tok}
    if tok in ("vcc_lo", "vcc_hi"): return {"vcc"}
    if tok in ("exec_lo", "exec_hi"): return {"exec"}
    m = _REG.match(tok)
    if not m: return set()
    k = m.group(1)
    if m.group(2) is not None: return {k + m.group(2)}
    return {k + str(i) for i in range(int(m.group(3)), int(m.group(4)) + 1)}

TRANS = ("v_exp_f32", "v_log_f32", "v_rcp_f32", "v_rsq_f32", "v_sqrt_f32", "v_sin_f32", "v_cos_f32")

class Ins:
    __slots__ = ("text", "op", "kind", "rd", "wr", "tag", "ops", "srcc", "srcab", "wide", "meta")
    def __init__(self, text, tag=None):
        self.text = text.strip(); self.tag = tag; self.meta = None
        t = self.text.split(";")[0].strip()
        self.rd = set(); self.wr = set(); self.srcc = set(); self.srcab = set(); self.wide = set()
        if t.endswith(":"):
            self.op = t; self.kind = "label"; self.ops = []; return
        parts = t.split(None, 1)
        op = self.op = parts[0]
        rest = parts[1] if len(parts) > 1 else ""
        ops = [x.strip() for x in rest.split(",")] if rest else []
        mods = []
        if ops:
            last = ops[-1].split()
            if last:
                ops[-1] = last[0]; mods = last[1:]
        self.ops = ops
        R = [regs_of(x) for x in ops]
        allr = lambda a: set().union(*R[a:]) if R[a:] else set()
        if op.startswith("v_mfma"):
            self.kind = "mfma"; self.wr = R[0]; self.rd = allr(1); self.srcc = R[3]; self.srcab = R[1] | R[2]
        elif op.startswith("ds_read") or op.startswith("ds_bpermute") or op.startswith("ds_swizzle") or "_rtn" in op:
            self.kind = "ds"; self.wr = R[0]; self.rd = allr(1)
        elif op.startswith("ds_"):
            self.kind = "ds"; self.rd = allr(0)
        elif op.startswith("buffer_load") or op.startswith("global_load"):
            self.kind = "vm"
            if "lds" in mods: self.rd = allr(0) | {"m0"}
            else: self.wr = R[0]; self.rd = allr(1)
        elif op.startswith("buffer_store") or op.startswith("global_store") or op.startswith("buffer_atomic"):
            self.kind = "vm"; self.rd = allr(0)
            if op.endswith("x4") or op.endswith("x3"):
                self.wide = R[0] if op.startswith("buffer") else R[1]
            if op.startswith("buffer_atomic") and "sc0" in mods: self.wr = R[0]
        elif op.startswith("s_load") or op.startswith("s_memtime") or op.startswith("s_memrealtime"):
            self.kind = "smem"; self.wr = R[0]; self.rd = allr(1)
        elif op == "s_waitcnt": self.kind = "wait"
        elif op == "s_barrier": self.kind = "barrier"
        elif op == "s_nop": self.kind = "nop"
        elif op.startswith("s_cbranch") or op == "s_branch" or op == "s_endpgm": self.kind = "branch"
        elif op in ("s_setprio", "s_sleep"): self.kind = "other"
        elif op.startswith("s_cmp") or op.startswith("s_bitcmp"):
            self.kind = "salu"; self.rd = allr(0); self.wr = {"scc"}
        elif op.startswith("s_"):
            self.kind = "salu"; self.wr = R[0] | {"scc"}; self.rd = allr(1)
            if "saveexec" in op: self.wr |= {"exec"}
        elif op.startswith("v_"):
            self.kind = "valu"
            self.wr = set(R[0]); self.rd = allr(1)
            if op.startswith("v_permlane") and "swap" in op:
                self.wr = R[0] | R[1]; self.rd = R[0] | R[1]
            if op.startswith("v_fmac") or op.startswith("v_dot2c") or "_dpp" in op or op.startswith("v_writelane"):
                self.rd |= R[0]
            if "_co_" in op: self.wr |= R[1]
        else:
            raise ValueError("unknown instruction: " + text)
    def is_trans(self):
        return any(self.op.startswith(x) for x in TRANS)
    def states(self):
        if self.kind == "nop": return int(self.ops[0], 0) + 1
        if self.kind == "label": return 0
        return 1

class Pseudo:
    def __init__(self, what, tag=None): self.what = what; self.tag = tag; self.kind = "pseudo"

class Prog:
    def __init__(self): self.L = []
    def __call__(self, text, tag=None):
        if isinstance(text, (Ins, Pseudo)): self.L.append(text); return
        if isinstance(text, (list, tuple)):
            for x in text: self(x, tag)
            return
        for line in text.split("\n"):
            if line.strip(): self.L.append(Ins(line, tag))
    def wait_vm(self, tag): self.L.append(Pseudo("wait_vm", tag))
    def wait_ds(self, tag): self.L.append(Pseudo("wait_ds", tag))
    def wait_both(self, vtag, dtag): self.L.append(Pseudo("wait_both", (vtag, dtag)))

    def finalize(self, verbose=False):
        out = []
        vmq = []; dsq = []; smem = []
        nwait = 0
        def emit_wait(vm=None, lg=None):
            nonlocal vmq, dsq, smem, nwait
            parts = []
            if vm is not None:
                vm = min(vm, 62); parts.append(f"vmcnt({vm})"); vmq = vmq[len(vmq) - vm:] if vm < len(vmq) else vmq
                if vm == 0: vmq = []
            if lg is not None:
                if smem: lg = 0
                lg = min(lg, 14); parts.append(f"lgkmcnt({lg})"); dsq = dsq[len(dsq) - lg:] if lg < len(dsq) else dsq
                if lg == 0: dsq = []; smem = []
            out.append(Ins("s_waitcnt " + " ".join(parts))); nwait += 1
        def last_idx(q, pred):
            for i in range(len(q) - 1, -1, -1):
                if pred(q[i]): return i
            return None
        for x in self.L:
            if x.kind == "pseudo" and x.what == "wait_both":
                i = last_idx(vmq, lambda y: y.tag == x.tag[0]); k = last_idx(dsq, lambda y: y.tag == x.tag[1])
                if i is not None or k is not None:
                    emit_wait(None if i is None else len(vmq) - 1 - i, None if k is None else len(dsq) - 1 - k)
                continue
            if x.kind == "pseudo":
                q = vmq if x.what == "wait_vm" else dsq
                i = last_idx(q, lambda y: y.tag == x.tag)
                if i is not None:
                    n = len(q) - 1 - i
                    emit_wait(vm=n) if x.what == "wait_vm" else emit_wait(lg=n)
                continue
            if x.kind == "wait":
                m = re.search(r"vmcnt\((\d+)\)", x.text)
                if m:
                    n = int(m.group(1)); vmq = vmq[len(vmq) - n:] if 0 < n < len(vmq) else ([] if n == 0 else vmq)
                m = re.search(r"lgkmcnt\((\d+)\)", x.text)
                if m:
                    n = int(m.group(1))
                    if n == 0: dsq = []; smem = []
                    elif not smem and n < len(dsq): dsq = dsq[len(dsq) - n:]
                out.append(x); continue
            touch = x.rd | x.wr
            vm = lg = None
            i = last_idx(vmq, lambda y: y.wr & touch)
            if i is not None and not (x.kind == "vm" and not (vmq[i].wr & x.rd)): vm = len(vmq) - 1 - i
            i = last_idx(dsq, lambda y: y.wr & touch)
            if i is not None and not (x.kind == "ds" and not (dsq[i].wr & x.rd)): lg = len(dsq) - 1 - i
            if any(y.wr & touch for y in smem): lg = 0
            if vm is not None or lg is not None: emit_wait(vm, lg)
            out.append(x)
            if x.kind == "vm": vmq.append(x)
            elif x.kind == "ds": dsq.append(x)
            elif x.kind == "smem": smem.append(x)
        res = []; nnop = 0
        def need(prev, cur):
            isv = lambda S: {r for r in S if r[0] in "va" and r != "vcc"}
            iss = lambda S: {r for r in S if (r[0] == "s" and r != "scc") or r == "vcc"}
            n = 0
            if prev.kind == "valu":
                w = isv(prev.wr)
                if cur.kind == "mfma" and w & cur.rd: n = max(n, 2)
                if cur.kind == "valu":
                    if (cur.op.startswith("v_permlane") or "_dpp" in cur.op) and w & cur.rd: n = max(n, 2)
                    if cur.op.startswith("v_readlane") or cur.op.startswith("v_readfirstlane"):
                        if w & cur.rd: n = max(n, 1)
                    if prev.is_trans() and w & cur.rd: n = max(n, 1)
                ws = iss(prev.wr)
                if ws & cur.rd:
                    if cur.kind == "valu": n = max(n, 4 if cur.op.startswith(("v_readlane", "v_writelane")) else 2)
                    if cur.kind == "vm": n = max(n, 5)
                    if cur.kind == "salu": n = max(n, 1)
            if prev.kind == "mfma":
                big = "32x32" in prev.op
                d = prev.wr
                if cur.kind == "mfma":
                    if d & cur.srcab: n = max(n, 12 if big else 8)
                    if d & cur.srcc and not (d == cur.srcc and prev.op == cur.op): n = max(n, 10 if big else 6)
                    if d & cur.wr and not (d & cur.srcc): n = max(n, 12 if big else 8)
                elif cur.kind in ("valu", "vm", "ds"):
                    if d & (cur.rd | cur.wr): n = max(n, 12 if big else 8)
                    if cur.kind == "valu" and prev.srcc & cur.wr: n = max(n, 7 if big else 3)
            if prev.kind == "salu" and "m0" in prev.wr and cur.kind == "vm" and "m0" in cur.rd: n = max(n, 1)
            if prev.kind == "vm" and prev.wide and (prev.wide & cur.wr): n = max(n, 2)
            return n
        for x in out:
            dist = 0; pad = 0
            for p in reversed(res):
                if dist >= 12: break
                pad = max(pad, need(p, x) - dist)
                dist += p.states()
            if pad > 0:
                res.append(Ins(f"s_nop {pad-1}")); nnop += 1
            res.append(x)
        if verbose: print(f"; {len(res)} instrs, {nwait} auto waits, {nnop} nops")
        self.out = res
        return "\n".join(("" if y.kind == "label" else "    ") + y.text for y in res)

def weave(main, fill, per_gap=2, start=0):
    out = []; f = 0
    for i, m in enumerate(main):
        out.append(m)
        if i >= start:
            for _ in range(per_gap):
                if f < len(fill): out.append(fill[f]); f += 1
    out.extend(fill[f:])
    return out

def spread(main, fill, start=0, end=None):
    end = len(main) if end is None else end
    n = end - start; out = []; f = 0
    for i, m in enumerate(main):
        out.append(m)
        if start <= i < end:
            tgt = ((i - start + 1) * len(fill) + n - 1) // n
            while f < tgt: out.append(fill[f]); f += 1
    out.extend(fill[f:])
    return out
```

```python
import sys, math, struct
from asmlib import *

NAME = "concat_heads__ssm_conv_h3__sliding_local_dilated__prompt"

class Cfg:
    diag = False
    nt_in = ""
    pol_x = ""
    pol_w = ""
    pol_wo = ""
    pol_out = ""
    prioB = 2
    spin = 200000
    codepf = True
    first = 7
    leadD = 3.5
    rot = 1
    KL = "1,1,2,2"
    NI = 6
    KF = 12
    HL = "9,9,10,10"
    cap = 14
    NR = 6
    prioA2 = 1; prioA3 = 3; prioB2 = 0
    nop1 = False
    both = False; allbar = False
    half = True; sigma = True; ctx = 2; late = True; sleep = 4
    notail = False; pol_o = "sc1"; rotcb = 0; noo = False; hlate = True; rdend = True
    probe = 0; probe_ptr = 16; probe_pol = ""
    enc = ""; encwg = 37; early = False; encbase = 10000; dbgdump = ""

WR = 0; XR = 73728; XS = 18432; HB = 129024; HS = 8320; CNT = 162304
XIMG = XR + XS; EXCH = XR + 2 * XS; WO22 = EXCH + 10240
LDS_BYTES = 163840
S1, S2, S3, S4, S5, S6, S7 = 0, 8, 12, 16, 20, 24, 28
KST = HB; VST = HB + 16896; SHW = CNT + 512
def wo_loc(st):
    if st < 22: return 4096 * st
    if st < 24: return WO22 + 4096 * (st - 22)
    return HB + ((st - 24) >> 1) * HS + 4096 * (st & 1)
WS_KV = 0; WS_Y = 4 << 20; WS_O = 8 << 20; WS_F = 12 << 20; WS_DBG = 13 << 20
F_KV = WS_F; F_Y = WS_F + 65536; F_O = WS_F + 65536 + 262144
pQ, pK, pV, pSH, pH, pD, pX, pW, pWO, pOUT, pDBG, pWS = 4, 6, 8, 10, 12, 14, 16, 18, 20, 22, 24, 26
rX, rW, rK, rV, rSH, rH, rWS, rQ, rOUT, rWO, rDBG = 28, 32, 36, 40, 44, 48, 52, 56, 60, 64, 68
sWV = 3; sRB, sHG, sCT, sM, sRB4, sCB = 72, 73, 74, 75, 76, 77
sT = 78
sSTAMP = 84

def srd(p, r, ptr, nbytes):
    p(f"s_mov_b32 {s(r)}, {s(ptr)}\ns_mov_b32 {s(r+1)}, {s(ptr+1)}\ns_mov_b32 {s(r+2)}, {hex(nbytes)}\ns_mov_b32 {s(r+3)}, 0x20000")

def f2u(x): return struct.unpack("<I", struct.pack("<f", x))[0]

class Stamper:
    def __init__(self, cfg, vreg): self.cfg = cfg; self.n = 0; self.vreg = vreg; self.names = []
    def __call__(self, p, name, real=False):
        if not self.cfg.diag: return
        if not (self.cfg.early and self.n == 0): p(f"{'s_memrealtime' if real else 's_memtime'} {s(sSTAMP,2)}")
        p(f"s_waitcnt lgkmcnt(0)\nv_writelane_b32 {v(self.vreg)}, {s(sSTAMP)}, {self.n}")
        if self.cfg.both: p(f"s_memrealtime {s(sSTAMP,2)}\ns_waitcnt lgkmcnt(0)\nv_writelane_b32 {v(self.vreg)}, {s(sSTAMP)}, {self.n+32}")
        self.names.append(name); self.n += 1
    def dump(self, p, vtmp, role):
        if not self.cfg.diag: return
        cfg = self.cfg; rn = "AB"[role]
        if cfg.dbgdump == rn or cfg.enc.startswith(rn) or (cfg.enc == "zero" and role == 0):
            p(f"s_cmp_lg_u32 s2, {cfg.encwg}\ns_cbranch_scc1 L_noenc{rn}\ns_cmp_lg_u32 {s(sWV)}, 0\ns_cbranch_scc1 L_noenc{rn}")
            if cfg.dbgdump == rn:
                srd(p, rDBG, pDBG, 256)
                p(f"v_readlane_b32 {s(sT)}, {v(self.vreg)}, 1\ns_nop 3\nv_subrev_u32 v1, {s(sT)}, {v(self.vreg)}\nv_lshlrev_b32 {v(vtmp)}, 2, v0\nv_subrev_u32 {v(vtmp)}, 4, {v(vtmp)}")
                p(f"s_mov_b64 exec, 0x1fffc\nbuffer_store_dword v1, {v(vtmp)}, {s(rDBG,4)}, 0 offen\ns_mov_b64 exec, -1")
            if cfg.enc.startswith(rn) or (cfg.enc == "zero" and role == 0):
                p(f"v_readlane_b32 {s(sT)}, {v(self.vreg)}, 0")
                if cfg.enc != "zero":
                    a, b = cfg.enc.split("-")
                    p(f"v_readlane_b32 {s(sT+1)}, {v(self.vreg)}, {self.names.index(a)}\nv_readlane_b32 {s(sT+2)}, {v(self.vreg)}, {self.names.index(b)}\ns_nop 3")
                    p(f"s_sub_u32 {s(sT+1)}, {s(sT+1)}, {s(sT+2)}")
                    if "real" not in a: p(f"s_mul_i32 {s(sT+1)}, {s(sT+1)}, 6554\ns_lshr_b32 {s(sT+1)}, {s(sT+1)}, 16")
                    p(f"s_add_u32 {s(sT)}, {s(sT)}, {s(sT+1)}")
                p(f"s_nop 3\ns_add_u32 {s(sT)}, {s(sT)}, {cfg.encbase}\nL_enc{rn}:\ns_memrealtime {s(sSTAMP,2)}\ns_waitcnt lgkmcnt(0)\ns_sub_u32 {s(sT+1)}, {s(sSTAMP)}, {s(sT)}\ns_cmp_lt_i32 {s(sT+1)}, 0\ns_cbranch_scc1 L_enc{rn}")
            p(f"L_noenc{rn}:")
        p(f"s_lshl_b32 {s(sT)}, s2, 3\ns_add_u32 {s(sT)}, {s(sT)}, {s(sWV)}\ns_add_u32 {s(sT)}, {s(sT)}, {4*role}\ns_lshl_b32 {s(sT)}, {s(sT)}, 8\ns_add_u32 {s(sT)}, {s(sT)}, {hex(WS_DBG)}")
        p(f"v_lshlrev_b32 {v(vtmp)}, 2, v0\nbuffer_store_dword {v(self.vreg)}, {v(vtmp)}, {s(rWS,4)}, {s(sT)} offen")

def lds_wait(p, name, vcnt, off, target, vt, extra=None):
    p(f"{name}:")
    p(f"ds_read_b32 {v(vt)}, {v(vcnt)} offset:{off}")
    if extra: p(extra)
    p(f"s_waitcnt lgkmcnt(0)\nv_readfirstlane_b32 {s(sT)}, {v(vt)}\ns_nop 0\ns_cmp_ge_u32 {s(sT)}, {target}\ns_cbranch_scc0 {name}")

def lds_arrive(p, vcnt, off, vone):
    p(f"s_mov_b64 exec, 1\nds_add_u32 {v(vcnt)}, {v(vone)} offset:{off}\ns_mov_b64 exec, -1")

def gpoll(p, cfg, name, srdr, vaddr, soff, want, vt, sleep=2):
    p(f"s_mov_b32 {s(sT+1)}, 0")
    p(f"{name}:")
    p(f"buffer_load_dword {v(vt)}, {v(vaddr)}, {s(srdr,4)}, {soff} offen sc1")
    p(f"s_add_u32 {s(sT+1)}, {s(sT+1)}, 1\ns_cmp_gt_u32 {s(sT+1)}, {cfg.spin}\ns_cbranch_scc1 {name}_x")
    p(f"s_waitcnt vmcnt(0)\nv_cmp_{'gt' if want > 1 else 'ne'}_u32 vcc, {want}, {v(vt)}\ns_cbranch_vccz {name}_x")
    p(f"s_mov_b64 exec, vcc\ns_sleep {cfg.sleep}\ns_branch {name}")
    p(f"{name}_x:\ns_waitcnt vmcnt(0)")

def gen_common(cfg):
    p = Prog()
    if cfg.early: p(f"s_memrealtime {s(sSTAMP,2)}")
    p("s_cmp_ge_u32 s2, 256\ns_cbranch_scc1 L_end")
    p(f"s_load_dwordx4 {s(pX,4)}, s[0:1], 48")
    p(f"s_load_dwordx8 {s(pQ,8)}, s[0:1], 0\ns_load_dwordx4 {s(pH,4)}, s[0:1], 32\ns_load_dwordx8 {s(pWO,8)}, s[0:1], 64")
    p(f"v_lshrrev_b32 v1, 6, v0\nv_and_b32 v0, 63, v0\nv_readfirstlane_b32 {s(sWV)}, v1")
    x, j = sT, sT + 1
    p(f"s_and_b32 {s(x)}, s2, 7\ns_lshr_b32 {s(j)}, s2, 3")
    a, b = sT + 2, sT + 3
    p(f"s_and_b32 {s(a)}, {s(x)}, 1\ns_lshl_b32 {s(a)}, {s(a)}, 3")
    p(f"s_lshr_b32 {s(b)}, {s(x)}, 1\ns_lshl_b32 {s(b)}, {s(b)}, 2")
    p(f"s_and_b32 {s(sRB)}, {s(j)}, 7\ns_add_u32 {s(sRB)}, {s(sRB)}, {s(a)}")
    p(f"s_lshr_b32 {s(sHG)}, {s(j)}, 3\ns_add_u32 {s(sHG)}, {s(sHG)}, {s(b)}")
    p(f"s_and_b32 {s(sRB4)}, {s(j)}, 3\ns_add_u32 {s(sRB4)}, {s(sRB4)}, {s(b)}")
    p(f"s_lshr_b32 {s(sCB)}, {s(j)}, 2\ns_add_u32 {s(sCB)}, {s(sCB)}, {s(a)}")
    p(f"s_lshr_b32 {s(sCT)}, {s(j)}, 4\ns_xor_b32 {s(x)}, {s(x)}, {cfg.ctx}\ns_lshl_b32 {s(x)}, {s(x)}, 1\ns_add_u32 {s(sCT)}, {s(sCT)}, {s(x)}")
    p(f"s_and_b32 {s(sM)}, {s(j)}, 15")
    if cfg.probe:
        p("s_waitcnt lgkmcnt(0)")
        srd(p, rDBG, cfg.probe_ptr, 4 << 20)
        p(f"s_lshl_b32 {s(sT)}, s2, 8\nv_mov_b32 v2, {s(sT)}\ns_mov_b32 {s(sT)}, 0\nL_probe:")
        p(f"buffer_load_dword v3, v2, {s(rDBG,4)}, 0 offen {cfg.probe_pol}\nv_add_u32 v2, 65536, v2\ns_waitcnt vmcnt(0)")
        p(f"s_add_u32 {s(sT)}, {s(sT)}, 1\ns_cmp_lt_u32 {s(sT)}, {cfg.probe}\ns_cbranch_scc1 L_probe")
    p(f"s_cmp_ge_u32 {s(sWV)}, 4\ns_cbranch_scc1 L_B")
    return p

def dma(m0base, m0off, vaddr, srdr, soff, pol, tag, imm=0, sSO=89):
    L = [f"s_add_u32 m0, {s(m0base)}, {m0off}"]
    if isinstance(soff, int): L.append(f"s_mov_b32 {s(sSO)}, {soff}")
    else: L.append(f"s_add_u32 {s(sSO)}, {s(soff[0])}, {soff[1]}")
    L.append(Ins(f"buffer_load_dwordx4 {v(vaddr)}, {s(srdr,4)}, {s(sSO)} offen {f'offset:{imm} ' if imm else ''}{pol} lds", tag))
    return L
def unp(dst, src, hi):
    return f"v_and_b32 {v(dst)}, 0xffff0000, {v(src)}" if hi else f"v_lshlrev_b32 {v(dst)}, 16, {v(src)}"
def lines(t): return [x for x in t.split("\n") if x.strip()]
def mix(groups, fill):
    if not groups: return list(fill)
    out = []
    for g in spread(groups, fill):
        if isinstance(g, list): out += g
        else: out.append(g)
    return out

class RA:
    wa = sWV
    vX, vH, vW = 2, 3, 4
    t0, t1, t2, t3 = 5, 6, 7, 8
    vQ, vKS, vKH, vST, vOUT, vXI, vL16, vSR, vWO, vCNT, vONE, vEP = 9, 10, 11, 12, 13, 14, 15, 16, 17, 18, 19, 20
    vAB = 21
    vBB = 25
    vTA, vFG, vSW = 33, 34, 35
    sMW, sMX, sMH, sSO = 86, 87, 88, 89
    sCH, sGRP, sD, sH0, sHBW, sWOB, s4096 = 90, 91, 92, 93, 94, 95, 96
    sCX, sROT, sCW, sR4 = 97, 98, 99, 100
    sMW0, sMW1, sHF, sCW1 = 16, 17, 18, 19
    Kr, Vr, SHr, G = 40, 68, 84, 100
    Ku, Vu, Wu, Ac = 116, 123, 127, 131
    TG, FG = 136, 137
    HE, HN = 140, 156

def gen_A0(cfg, st):
    p = Prog(); R = RA; wa = R.wa; t0, t1, t2, t3 = R.t0, R.t1, R.t2, R.t3; vX, vH, vW = R.vX, R.vH, R.vW
    st(p, "A.real0", real=True); st(p, "A.start")
    p(f"v_lshrrev_b32 {v(t0)}, 3, v0\nv_and_b32 {v(t1)}, 7, v0\nv_lshrrev_b32 {v(t2)}, 4, v0")
    p(f"s_and_b32 {s(sT)}, {s(wa)}, 1\ns_lshl_b32 {s(sT)}, {s(sT)}, 2")
    p(f"s_lshl_b32 {s(sT+1)}, {s(sRB)}, 7\ns_lshl_b32 {s(sT+2)}, {s(wa)}, 3\ns_add_u32 {s(sT+3)}, {s(sT+1)}, {s(sT+2)}")
    p(f"v_add_u32 {v(t3)}, {s(sT)}, {v(t2)}\nv_xor_b32 {v(t3)}, {v(t3)}, {v(t1)}\nv_lshlrev_b32 {v(t3)}, 4, {v(t3)}")
    p(f"v_add_u32 {v(vX)}, {s(sT+3)}, {v(t0)}\nv_lshl_add_u32 {v(vX)}, {v(vX)}, 11, {v(t3)}")
    p(f"v_and_b32 {v(t3)}, 1, {v(t2)}\nv_lshl_or_b32 {v(t3)}, {v(t3)}, 1, {s(sT)}\nv_xor_b32 {v(t3)}, {v(t3)}, {v(t1)}\nv_lshlrev_b32 {v(t3)}, 4, {v(t3)}")
    p(f"v_add_u32 {v(vW)}, {s(sT+2)}, {v(t0)}\nv_mul_u32_u24 {v(vW)}, 6144, {v(vW)}\ns_lshl_b32 {s(sT+4)}, {s(sHG)}, 7\nv_add3_u32 {v(vW)}, {v(vW)}, {v(t3)}, {s(sT+4)}")
    p(f"s_lshl_b32 {s(sT)}, {s(wa)}, 1\ns_lshl_b32 {s(sT+2)}, {s(wa)}, 2\ns_add_u32 {s(sT+1)}, {s(sT+1)}, {s(sT+2)}\ns_sub_u32 {s(sT+1)}, {s(sT+1)}, 16")
    p(f"v_add_u32 {v(t3)}, {s(sT)}, {v(t2)}\nv_xor_b32 {v(t3)}, {v(t3)}, {v(t1)}\nv_and_b32 {v(t3)}, 7, {v(t3)}\nv_lshlrev_b32 {v(t3)}, 4, {v(t3)}")
    p(f"v_add_u32 {v(vH)}, {s(sT+1)}, {v(t0)}\nv_lshl_add_u32 {v(vH)}, {v(vH)}, 11, {v(t3)}")
    p(f"s_lshl_b32 {s(R.sMW)}, {s(wa)}, 10\ns_add_u32 {s(R.sMX)}, {s(R.sMW)}, {XR+2048}\ns_lshl_b32 {s(R.sMH)}, {s(wa)}, 9\ns_add_u32 {s(R.sMH)}, {s(R.sMH)}, {XR}")
    if cfg.rot:
        mC, mR = {1: (12, 8), 2: (0, 8), 3: (12, 0), 4: (8, 8)}[cfg.rot]
        p(f"s_and_b32 {s(R.sROT)}, {s(sHG)}, {mC}\ns_and_b32 {s(sT)}, {s(sRB)}, {mR}\ns_add_u32 {s(R.sROT)}, {s(R.sROT)}, {s(sT)}")
    else: p(f"s_mov_b32 {s(R.sROT)}, 0")
    p(f"s_add_u32 {s(sT)}, {s(sRB)}, {s(sHG)}\ns_and_b32 {s(sT)}, {s(sT)}, 3")
    p("s_waitcnt lgkmcnt(0)")
    srd(p, rX, pX, 4 << 20); srd(p, rW, pW, 6 << 20)
    p(f"s_bfe_u32 {s(R.sHF)}, {s(sRB)}, {hex((1 << 16) | 2) if cfg.half else 0}\ns_lshl_b32 {s(R.sMW0)}, {s(R.sHF)}, 12\ns_xor_b32 {s(R.sMW1)}, {s(R.sMW0)}, 4096")
    p(f"s_add_u32 {s(R.sMW0)}, {s(R.sMW0)}, {s(R.sMW)}\ns_add_u32 {s(R.sMW1)}, {s(R.sMW1)}, {s(R.sMW)}\ns_mul_i32 {s(R.sHF)}, {s(R.sHF)}, {32*6144}")
    for rho in range(1, 4): p(f"s_cmp_eq_u32 {s(sT)}, {rho}\ns_cbranch_scc1 LA_c{rho}")
    return p

def wo_dma(cfg, stp, tag):
    R = RA
    return [f"s_add_u32 {s(R.sCX)}, {s(R.sR4)}, {stp*65536}", f"s_and_b32 {s(R.sCX)}, {s(R.sCX)}, {hex(31*65536)}"] + \
           dma(R.sMW, wo_loc(stp), R.vWO, rWO, (R.sCX, s(R.sWOB)), cfg.pol_wo, tag)

def flag_loads():
    R = RA
    return ["s_mov_b64 exec, 0xff", Ins(f"buffer_load_dword {v(R.TG)}, {v(R.vTA)}, {s(rDBG,4)}, 0 offen sc1"),
            Ins(f"buffer_load_dword {v(R.FG)}, {v(R.vFG)}, {s(rWS,4)}, 0 offen sc1", "fg"), "s_mov_b64 exec, -1"]

def gen_A1(cfg, st, rho):
    p = Prog(); R = RA; wa = R.wa; t0, t1, t2, t3 = R.t0, R.t1, R.t2, R.t3
    p(f"LA_c{rho}:")
    order = sorted(range(16), key=lambda c: c - (cfg.leadD if c % 4 == rho else 0))
    def chunk(c):
        sl = c % 3; tag = f"ch{c}"
        pre = [f"s_add_u32 {s(R.sCX)}, {s(R.sROT)}, {order[c]}", f"s_and_b32 {s(R.sCX)}, {s(R.sCX)}, 15"]
        if cfg.sigma: pre += [f"s_lshr_b32 {s(R.sCW)}, {s(R.sCX)}, 3", f"s_xor_b32 {s(R.sCX)}, {s(R.sCX)}, {s(R.sCW)}"]
        pre2 = [f"s_mul_i32 {s(R.sCW)}, {s(R.sCX)}, {64*6144//128}", f"s_sub_u32 {s(R.sCW1)}, {s(R.sCW)}, {s(R.sHF)}", f"s_add_u32 {s(R.sCW)}, {s(R.sCW)}, {s(R.sHF)}"]
        pre += [f"s_lshl_b32 {s(R.sCX)}, {s(R.sCX)}, 7"]
        xs = [dma(R.sMX, sl * XS + n * 4096, R.vX, rX, (R.sCX, n * 65536), cfg.pol_x, tag) for n in range(4)]
        ws = [dma((R.sMW0, R.sMW1)[n], part * 24576 + sl * 8192, R.vW, rW, ((R.sCW, R.sCW1)[n], 32 * n * 6144 + part * 2048), cfg.pol_w, tag)
              for n in range(2) for part in range(3)]
        hl = ["s_mov_b64 exec, 0xffffffff"] + dma(R.sMH, sl * XS, R.vH, rX, (R.sCX, 0), cfg.pol_x, tag) + ["s_mov_b64 exec, -1"]
        if cfg.half: return [pre + xs[0], pre2 + ws[0], xs[1], ws[1], xs[2], ws[2], xs[3], hl, ws[3], ws[4], ws[5]]
        return [pre + xs[0], pre2 + ws[0], ws[1], xs[1], ws[2], xs[2], ws[3], ws[4], xs[3], ws[5], hl]

    def setup():
        q = Prog()
        srd(q, rK, pK, 4 << 20); srd(q, rV, pV, 4 << 20); srd(q, rSH, pSH, 8192); srd(q, rH, pH, 4 << 20)
        srd(q, rWS, pWS, 16 << 20); srd(q, rQ, pQ, 4 << 20); srd(q, rOUT, pOUT, 8 << 20); srd(q, rWO, pWO, 2 << 20); srd(q, rDBG, pDBG, 256)
        q(f"v_and_b32 {v(t2)}, 7, v0\ns_lshl_b32 {s(sT+1)}, {s(sCT)}, 7\nv_lshl_add_u32 {v(t2)}, {v(t2)}, 4, {s(sT+1)}")
        q(f"s_lshl_b32 {s(sT)}, {s(sM)}, 7\ns_lshl_b32 {s(sT+2)}, {s(wa)}, 3\ns_add_u32 {s(sT+2)}, {s(sT+2)}, {s(sT)}")
        q(f"v_lshrrev_b32 {v(t0)}, 3, v0\nv_add_u32 {v(t0)}, {s(sT+2)}, {v(t0)}\nv_lshl_add_u32 {v(R.vKS)}, {v(t0)}, 11, {v(t2)}")
        q(f"s_add_u32 {s(sT+2)}, {s(sT)}, {s(wa)}\ns_sub_u32 {s(sT+2)}, {s(sT+2)}, 4\ns_lshl_b32 {s(sT+2)}, {s(sT+2)}, 11\nv_add_u32 {v(R.vKH)}, {s(sT+2)}, {v(t2)}")
        q(f"v_bfe_u32 {v(t0)}, v0, 3, 2\nv_lshrrev_b32 {v(t1)}, 5, v0\ns_lshl_b32 {s(sT+2)}, {s(wa)}, 5")
        q(f"v_lshlrev_b32 {v(t3)}, 3, {v(t0)}\nv_lshl_add_u32 {v(t3)}, {v(t1)}, 2, {v(t3)}\nv_add_u32 {v(t3)}, {s(sT+2)}, {v(t3)}")
        q(f"v_and_b32 {v(R.vSW)}, 7, v0\nv_lshlrev_b32 {v(R.vSR)}, 4, {v(R.vSW)}\nv_lshl_add_u32 {v(R.vSR)}, {v(t3)}, 7, {v(R.vSR)}\nv_add_u32 {v(R.vSR)}, {KST+128}, {v(R.vSR)}")
        q(f"v_lshlrev_b32 {v(R.vSW)}, 6, {v(R.vSW)}\nv_add_u32 {v(R.vSW)}, {SHW}, {v(R.vSW)}")
        q(f"v_add_u32 {v(t3)}, {s(sT)}, {v(t3)}\nv_lshl_add_u32 {v(R.vQ)}, {v(t3)}, 11, {v(t2)}\nv_lshl_add_u32 {v(R.vOUT)}, {v(t3)}, 12, {v(t2)}")
        q(f"v_bfe_u32 {v(t3)}, v0, 2, 1\nv_lshlrev_b32 {v(t3)}, 1, {v(t3)}\nv_add_u32 {v(t3)}, {v(t3)}, {v(t1)}\nv_lshlrev_b32 {v(t3)}, 16, {v(t3)}")
        q(f"v_lshl_add_u32 {v(t3)}, {v(t0)}, 6, {v(t3)}\nv_and_b32 {v(t2)}, 3, v0\nv_lshl_add_u32 {v(t3)}, {v(t2)}, 4, {v(t3)}")
        q(f"s_add_u32 {s(sT)}, {s(sT)}, {s(sT+2)}\ns_lshl_b32 {s(sT)}, {s(sT)}, 3\ns_lshl_b32 {s(sT+1)}, {s(sCT)}, 18\ns_add_u32 {s(sT)}, {s(sT)}, {s(sT+1)}\nv_add_u32 {v(R.vST)}, {s(sT)}, {v(t3)}")
        q(f"s_lshl_b32 {s(R.sGRP)}, {s(sCT)}, 4\ns_add_u32 {s(R.sGRP)}, {s(R.sGRP)}, {s(sM)}")
        q(f"s_lshr_b32 {s(sT)}, {s(R.sGRP)}, 3\ns_lshl_b32 {s(sT)}, {s(sT)}, 5\ns_and_b32 {s(sT+1)}, {s(R.sGRP)}, 7\ns_add_u32 {s(sT)}, {s(sT)}, {s(sT+1)}")
        q(f"s_lshl_b32 {s(sT+1)}, {s(wa)}, 3\ns_add_u32 {s(R.sCH)}, {s(sT)}, {s(sT+1)}\ns_lshl_b32 {s(R.sGRP)}, {s(R.sGRP)}, 14")
        q(f"s_lshr_b32 {s(sT)}, {s(R.sCH)}, 1\ns_lshl_b32 {s(sT)}, {s(sT)}, 2")
        q(f"s_load_dword {s(R.sD)}, {s(pD,2)}, {s(sT)}")
        q(f"s_mul_i32 {s(R.sHBW)}, {s(wa)}, {HS}\ns_add_u32 {s(R.sHBW)}, {s(R.sHBW)}, {HB}\ns_lshl_b32 {s(R.sWOB)}, {s(wa)}, 14\ns_mov_b32 {s(R.s4096)}, 4096")
        q(f"s_and_b32 {s(R.sR4)}, {s(sRB4)}, 3\ns_lshl_b32 {s(R.sR4)}, {s(R.sR4)}, 19")
        if cfg.rotcb: q(f"s_and_b32 {s(sT)}, {s(sCB)}, {cfg.rotcb}\ns_lshl_b32 {s(sT)}, {s(sT)}, 18\ns_add_u32 {s(R.sR4)}, {s(R.sR4)}, {s(sT)}")
        q(f"v_bfe_u32 {v(t0)}, v0, 2, 2\nv_lshlrev_b32 {v(t0)}, 1, {v(t0)}\nv_lshl_add_u32 {v(t0)}, {v(t1)}, 3, {v(t0)}\nv_bfe_u32 {v(t3)}, v0, 4, 1\nv_add_u32 {v(t0)}, {v(t0)}, {v(t3)}")
        q(f"s_and_b32 {s(sT)}, {s(wa)}, 1\ns_lshl_b32 {s(sT)}, {s(sT)}, 1\nv_add_u32 {v(t3)}, {s(sT)}, {v(t1)}\nv_xor_b32 {v(t3)}, {v(t3)}, {v(t2)}\nv_lshlrev_b32 {v(t3)}, 4, {v(t3)}")
        q(f"v_lshl_add_u32 {v(t0)}, {v(t0)}, 6, {v(t3)}\nv_add_u32 {v(R.vXI)}, {s(R.sMW)}, {v(t0)}")
        q(f"v_lshlrev_b32 {v(R.vL16)}, 4, v0")
        q(f"v_lshrrev_b32 {v(t0)}, 4, v0\nv_lshlrev_b32 {v(t0)}, 1, {v(t0)}\nv_and_b32 {v(t3)}, 7, v0\nv_xor_b32 {v(t0)}, {v(t0)}, {v(t3)}\nv_lshlrev_b32 {v(t0)}, 4, {v(t0)}")
        q(f"v_lshrrev_b32 {v(t3)}, 3, v0\nv_lshl_add_u32 {v(t0)}, {v(t3)}, 11, {v(t0)}\ns_lshl_b32 {s(sT)}, {s(sCB)}, 7\nv_add_u32 {v(R.vWO)}, {s(sT)}, {v(t0)}")
        q(f"v_mov_b32 {v(R.vCNT)}, {CNT}\nv_mov_b32 {v(R.vONE)}, 1")
        return q.L
    def setup2():
        L = []
        L += lines(f"""v_and_b32 {v(t0)}, 3, v0
s_lshl_b32 {s(sT)}, {s(sCT)}, 4
s_add_u32 {s(sT)}, {s(sT)}, {s(wa)}
v_lshl_add_u32 {v(t1)}, {v(t0)}, 2, {s(sT)}
s_lshr_b32 {s(sT)}, {s(sRB4)}, 3
s_lshl_b32 {s(sT+1)}, {s(wa)}, 1
s_add_u32 {s(sT)}, {s(sT)}, {s(sT+1)}
s_xor_b32 {s(sT)}, {s(sT)}, {cfg.ctx}
s_lshl_b32 {s(sT)}, {s(sT)}, 5
s_and_b32 {s(sT+1)}, {s(sRB4)}, 7
s_add_u32 {s(sT)}, {s(sT)}, {s(sT+1)}
v_lshl_add_u32 {v(t2)}, {v(t0)}, 3, {s(sT)}
v_and_b32 {v(t3)}, 4, v0
v_cmp_eq_u32 vcc, 0, {v(t3)}
v_cndmask_b32 {v(t1)}, {v(t2)}, {v(t1)}, vcc
v_and_b32 {v(R.vTA)}, 0xf0, {v(t1)}
v_lshlrev_b32 {v(R.vFG)}, 8, {v(t1)}
v_add_u32 {v(R.vFG)}, {F_KV}, {v(R.vFG)}
v_and_b32 {v(t0)}, 15, v0""")
        L += lines(f"v_lshrrev_b32 {v(t1)}, 4, v0\nv_add_u32 {v(t2)}, 9, {v(t0)}\nv_and_b32 {v(t3)}, 1, {v(t2)}\nv_mul_u32_u24 {v(t3)}, 4160, {v(t3)}")
        L += lines(f"v_lshrrev_b32 {v(t2)}, 1, {v(t2)}\nv_lshl_add_u32 {v(t3)}, {v(t2)}, 2, {v(t3)}\nv_lshlrev_b32 {v(t2)}, 4, {v(t1)}\nv_sub_u32 {v(t3)}, {v(t3)}, {v(t2)}")
        L += [f"s_add_u32 {s(sT)}, {s(R.sHBW)}, 32", f"v_add_u32 {v(R.vAB)}, {s(sT)}, {v(t3)}"]
        L += [f"v_add_u32 {v(R.vAB+k)}, {1024*k}, {v(R.vAB)}" for k in range(1, 4)]
        def ximg(dst):
            return lines(f"""v_lshrrev_b32 {v(t3)}, 3, {v(t2)}
v_and_b32 {v(dst)}, 3, {v(t3)}
v_xor_b32 {v(dst)}, {s(wa)}, {v(dst)}
v_lshl_add_u32 {v(dst)}, {v(t3)}, 5, {v(dst)}
v_and_b32 {v(t3)}, 1, {v(t2)}
v_lshl_add_u32 {v(dst)}, {v(t3)}, 4, {v(dst)}
v_bfe_u32 {v(t3)}, {v(t2)}, 1, 2
v_lshl_add_u32 {v(dst)}, {v(t3)}, 2, {v(dst)}
v_lshlrev_b32 {v(dst)}, 4, {v(dst)}
v_add_u32 {v(dst)}, {XIMG}, {v(dst)}""")
        for n in range(8):
            L += [f"v_lshl_add_u32 {v(t2)}, {v(t0)}, 1, {v(t1)}", f"v_add_u32 {v(t2)}, {30-4*n}, {v(t2)}"] + ximg(R.vBB + n)
        L += [f"v_lshrrev_b32 {v(t2)}, 1, {v(t1)}", f"v_lshl_add_u32 {v(t2)}, {v(t0)}, 1, {v(t2)}", f"v_add_u32 {v(t2)}, 32, {v(t2)}"] + ximg(R.vEP)
        L += [f"v_and_b32 {v(t3)}, 1, {v(t1)}", f"v_xor_b32 {v(t3)}, 1, {v(t3)}", f"v_lshl_add_u32 {v(R.vEP)}, {v(t3)}, 3, {v(R.vEP)}"]
        L += lines(f"""s_waitcnt lgkmcnt(0)
s_and_b32 {s(sT)}, {s(R.sD)}, 0xffff0000
s_lshl_b32 {s(R.sD)}, {s(R.sD)}, 16""")
        L.append([f"s_bitcmp1_b32 {s(R.sCH)}, 0", f"s_cselect_b32 {s(R.sD)}, {s(sT)}, {s(R.sD)}"])
        return L
    Kr, Vr, SHr, G, Ku, Vu, Wu, Ac = R.Kr, R.Vr, R.SHr, R.G, R.Ku, R.Vu, R.Wu, R.Ac
    def stage():
        L = []
        for n in range(4):
            L.append(dma(R.sMW, KST + 512 + n * 4096, R.vKS, rK, n * 65536, cfg.nt_in, "stg"))
            L.append(dma(R.sMW, VST + n * 4096, R.vKS, rV, n * 65536, cfg.nt_in, "stg"))
        L.append(["s_mov_b64 exec, 0xff", f"s_lshl_b32 {s(sT+4)}, {s(wa)}, 7"] + dma(sT + 4, KST, R.vKH, rK, 0, cfg.nt_in, "stg") +
                 [f"s_lshl_b32 {s(sT+5)}, {s(sCT)}, 9"] + dma(sT + 4, SHW, R.vL16, rSH, (sT + 5, s(sT + 4)), "", "stg") + ["s_mov_b64 exec, -1"])
        return L
    def p1_reads():
        L = [f"ds_read_b128 {v(SHr+4*i,4)}, {v(R.vSW)} offset:{16*i}" for i in range(4)]
        L += [f"ds_read_b128 {v(Kr+4*j,4)}, {v(R.vSR)} offset:{128*j}" for j in range(7)]
        L += [f"ds_read_b128 {v(Vr+4*j,4)}, {v(R.vSR)} offset:{VST-KST-128+128*j}" for j in range(4)]
        return L
    def p1_chan(c):
        L = []; d, hi = c >> 1, c & 1
        for j in range(7): L.append(unp(Ku + j, Kr + 4 * j + d, hi))
        for t in range(4): L.append(unp(Wu + t, SHr + 2 * c + (t >> 1), t & 1))
        for j in range(4): L.append(unp(Vu + j, Vr + 4 * j + d, hi))
        for j in range(4): L.append(f"v_mul_f32 {v(Ac+j)}, {v(Ku+j)}, {v(Wu+3)}")
        for t in (2, 1, 0):
            for j in range(4): L.append(f"v_fmac_f32 {v(Ac+j)}, {v(Ku+j+3-t)}, {v(Wu+t)}")
        for j in range(4): L.append(f"v_mul_f32 {v(Ac+j)}, {v(Ac+j)}, {v(Vu+j)}")
        dst = G + 4 * (c & 3) + (2 if c < 4 else 0)
        L.append(f"v_cvt_pk_bf16_f32 {v(dst)}, {v(Ac+3)}, {v(Ac+2)}")
        L.append(f"v_cvt_pk_bf16_f32 {v(dst+1)}, {v(Ac+1)}, {v(Ac+0)}")
        return L
    def p1_store(c):
        return [f"v_permlane32_swap_b32 {v(G+4*c+2+d)}, {v(G+4*c+d)}" for d in range(2)] + \
               [[f"s_mov_b32 {s(R.sSO)}, {WS_KV + c*16384}", Ins(f"buffer_store_dwordx4 {v(G+4*c,4)}, {v(R.vST)}, {s(rWS,4)}, {s(R.sSO)} offen sc1", "kvst")]]
    def h_dma():
        return [[f"s_add_u32 m0, {s(R.sHBW)}, 32", f"s_lshl_b32 {s(R.sSO)}, {s(R.sCH)}, 12",
                 Ins(f"buffer_load_dwordx4 {v(R.vL16)}, {s(rH,4)}, {s(R.sSO)} offen offset:{1024*n} {cfg.nt_in} lds", "hld")] for n in range(4)]
    def h_copy():
        L = [f"v_add_u32 {v(t0)}, {s(R.sHBW)}, {v(R.vL16)}"]
        for n in range(4):
            L += [f"ds_read_b128 {v(R.HE+4*n,4)}, {v(t0)} offset:{32+1024*n}", f"ds_read_b32 {v(R.HN+n)}, {v(t0)} offset:{48+1024*n}"]
        L += lines(f"""v_lshrrev_b32 {v(t1)}, 3, v0
v_mul_u32_u24 {v(t1)}, 4160, {v(t1)}
v_and_b32 {v(t2)}, 7, v0
v_lshl_add_u32 {v(t1)}, {v(t2)}, 2, {v(t1)}
v_add_u32 {v(t1)}, {s(R.sHBW)}, {v(t1)}
v_mov_b32 {v(t2)}, 0""")
        L0 = L; L = ["s_waitcnt lgkmcnt(0)", f"v_readfirstlane_b32 {s(R.sH0)}, {v(R.HE)}"]
        L += [f"s_lshl_b32 {s(R.sH0)}, {s(R.sH0)}, 16", f"v_writelane_b32 {v(t2)}, {s(R.sH0)}, 15"]
        L.append(["s_mov_b64 exec, 0xffff", f"ds_write_b32 {v(t1)}, {v(t2)}", "s_mov_b64 exec, -1"])
        for n in range(4):
            e = R.HE + 4 * n
            for i in range(4): L.append(f"v_alignbit_b32 {v(e+i)}, {v(e+i+1 if i < 3 else R.HN+n)}, {v(e+i)}, 16")
            L.append(f"ds_write_b128 {v(t0)}, {v(e,4)} offset:{4160+32+1024*n}")
        return L0, L

    KL = int(cfg.KL.split(",")[rho]); HL = int(cfg.HL.split(",")[rho]); NI = cfg.NI
    new = {c: (chunk(c + 2) if 1 <= c <= 13 else []) for c in range(16)}
    fill = {c: [] for c in range(16)}; tail = {c: [] for c in range(16)}
    c0, c1 = chunk(0), chunk(1)
    p(mix(c0[:8], []))
    p(mix(c0[8:] + c1[:cfg.first], setup() + setup2()))
    st(p, "A.iss0")
    new[0] = c1[cfg.first:] + chunk(2)
    hc = h_copy()
    if not cfg.nop1:
        new[KL] = stage() + new[KL]
        comp = []
        for c in range(4): comp += p1_chan(c) + p1_chan(c + 4) + p1_store(c)
        per = (len(comp) + NI - 1) // NI
        if cfg.rdend: tail[KL + 2] = p1_reads()
        else: fill[KL + 2] += p1_reads()
        for i in range(NI): fill[KL + 3 + i] += comp[i * per:(i + 1) * per]
        assert KL >= 1 and KL + 3 + NI <= cfg.KF and KL + 3 <= HL
    new[HL] = h_dma() + new[HL]
    if cfg.hlate: p.hc = hc
    else: fill[HL + 2] += hc[0]; fill[HL + 3] += hc[1]; p.hc = ([], [])
    if not cfg.late: new[13] += [flag_loads()]
    back = []
    for c in range(15):
        p.wait_vm(f"ch{c}")
        if c == cfg.KF: p.wait_vm("kvst")
        if c == KL + 2: p.wait_vm("stg")
        if c == HL + 2 and not cfg.hlate: p.wait_vm("hld")
        if c == KL + 3: p("s_waitcnt lgkmcnt(0)")
        p("s_barrier")
        if not cfg.allbar and c in (0, 1, 4, 8, 12, 14): st(p, f"A.bar{c}")
        if c == 14: break
        must = len(back)
        back += new[c]
        k = len(back) if c == 13 else max(must, min(len(back), cfg.cap))
        p(mix(back[:k], fill[c])); back = back[k:]
        p(tail[c])
    assert not back and not fill[14]
    if not cfg.late: p("s_waitcnt vmcnt(0)")
    if rho < 3: p("s_branch LA_j")
    return p

def gen_A2(cfg, st, hc):
    p = Prog(); slow = Prog(); R = RA; wa = R.wa; t0, t1, t2, t3 = R.t0, R.t1, R.t2, R.t3
    vCNT, vONE, sSO, G = R.vCNT, R.vONE, R.sSO, R.G
    p("LA_j:")
    chk = f"v_cmp_ne_u32 vcc, {v(R.TG)}, {v(R.FG)}\nv_cmp_gt_u32 {s(sT+2,2)}, {s(R.s4096)}, {v(R.TG)}\ns_nop 0\ns_or_b64 vcc, vcc, {s(sT+2,2)}"
    def check_xi():
        p("s_mov_b64 exec, 0xff\n" + chk + "\ns_cbranch_vccnz LA_slow\nLA_back:\ns_mov_b64 exec, -1")
        for nn in range(4): p(dma(R.sMW, XIMG + 2048 + nn * 4096, R.vXI, rWS, (R.sGRP, WS_KV + nn * 4096), "sc1", "xi"))
    slow(f"LA_slow:\ns_mov_b32 {s(sT+1)}, 0\nLA_slow1:\ns_mov_b64 exec, vcc\ns_sleep {cfg.sleep}")
    slow(f"buffer_load_dword {v(R.TG)}, {v(R.vTA)}, {s(rDBG,4)}, 0 offen sc1\nbuffer_load_dword {v(R.FG)}, {v(R.vFG)}, {s(rWS,4)}, 0 offen sc1")
    slow(f"s_add_u32 {s(sT+1)}, {s(sT+1)}, 1\ns_cmp_gt_u32 {s(sT+1)}, {cfg.spin}\ns_waitcnt vmcnt(0)\ns_cbranch_scc1 LA_back")
    slow(chk + "\ns_cbranch_vccnz LA_slow1\ns_branch LA_back")
    if cfg.late: p(flag_loads())
    else: check_xi()
    for x in (2, 3, 8, 9): p(wo_dma(cfg, x, "wo1"))
    p(f"v_lshlrev_b32 {v(t0)}, 3, v0\ns_add_u32 {s(sT)}, {s(R.sMH)}, {XS}\nv_add_u32 {v(t0)}, {s(sT)}, {v(t0)}\nv_mov_b32 {v(t1)}, 0\nv_mov_b32 {v(t2)}, 0\nds_write_b64 {v(t0)}, {v(t1,2)}")
    p.wait_vm("ch15")
    p("s_barrier")
    st(p, "A.bar15")
    if cfg.late: p.wait_vm("fg"); check_xi()
    p(hc[0]); p(hc[1])
    p.wait_vm("xi")
    lds_arrive(p, vCNT, S5, vONE)
    for x in (14, 15, 4, 5): p(wo_dma(cfg, x, "wo1"))
    ACC = 36; FA = [68, 132]; FB = [100, 164]
    def conv_reads(n, which="ab"):
        k = n & 1; L = []
        def ra(nu):
            o = 16 * n + 128 * (nu & 1)
            return [f"ds_read2_b32 {v(FA[k]+4*nu,2)}, {v(R.vAB+(nu>>1))} offset0:{o} offset1:{o+1}",
                    f"ds_read2_b32 {v(FA[k]+4*nu+2,2)}, {v(R.vAB+(nu>>1))} offset0:{o+2} offset1:{o+3}"]
        def rb(ka): return [f"ds_read_b128 {v(FB[k]+4*ka,4)}, {v(R.vBB+n)} offset:{2048*ka}"]
        if "a" in which: L += ra(0)
        if "b" in which:
            for i in range(8): L += rb(i)
        if "a" in which:
            for i in range(1, 8): L += ra(i)
        return L
    def conv_mfma(n):
        k = n & 1; L = []
        for nu in range(8):
            for ka in range(8 - nu):
                a = v(ACC + 4 * (nu + ka), 4)
                c = "0" if (n == 0 and nu == 0) else a
                L.append(f"v_mfma_f32_16x16x32_bf16 {a}, {v(FA[k]+4*nu,4)}, {v(FB[k]+4*ka,4)}, {c}")
        return L
    p(conv_reads(0, "a"))
    lds_wait(p, "LA_s5", vCNT, S5, 4, t1, extra=conv_reads(0, "b"))
    st(p, "A.conv0")
    KVr = 196; Qr = 212; Qu = 132
    extra = {n: [] for n in range(8)}
    for n, xs in ((0, (10, 11, 16, 17, 22, 23)), (1, (0, 1, 6, 7, 12)), (2, (13, 18, 19, 20, 21))):
        for x in xs: extra[n] += wo_dma(cfg, x, "wo1")
    extra[4] = [Ins(f"buffer_load_dwordx4 {v(Qr+4*j,4)}, {v(R.vQ)}, {s(rQ,4)}, {s(R.s4096) if j >= 2 else 0} offen offset:{2048*(j&1)} {cfg.nt_in}", "qld") for j in range(4)]
    p(f"s_setprio {cfg.prioA2}")
    for n in range(8):
        if n == 1: lds_wait(p, "LA_s6", vCNT, S6, 4, t1)
        pre = []
        if n < 7: rd = conv_reads(n + 1)
        else:
            rd = [f"ds_read_b64 {v(KVr+2*t,2)}, {v(R.vEP)} offset:{2048*t}" for t in range(8)]
            ex = [f"s_lshl_b32 {s(sT+2)}, {s(wa)}, 17", f"s_add_u32 {s(sT+2)}, {s(sT+2)}, {s(R.sR4)}", f"s_add_u32 {s(sT+2)}, {s(sT+2)}, {24*65536}", f"s_and_b32 {s(sT+2)}, {s(sT+2)}, {hex(31*65536)}",
                  "s_waitcnt lgkmcnt(0)"]
            for o in range(8): ex += dma(R.sHBW, o * 1024, R.vWO, rWO, (sT + 2, o * 16384), cfg.pol_wo, "wo2")
            extra[7] = ex
        M = conv_mfma(n)
        out = []; ri = ei = 0; E = extra[n]; nr = 32 if n < 7 else 36
        for i, m in enumerate(M):
            out.append(m)
            tgt = min(len(rd), ((i + 1) * len(rd) + nr - 1) // nr) if n < 7 else (max(0, i - 7) if i < 16 else 8)
            while ri < tgt: out.append(rd[ri]); ri += 1
            tgt = ((i + 1) * len(E) + len(M) - 1) // len(M)
            while ei < tgt: out.append(E[ei]); ei += 1
        p(out)
        if n == 3:
            p.wait_vm("wo1"); lds_arrive(p, vCNT, S2, vONE)
    p(f"s_setprio {cfg.prioA3}")
    st(p, "A.convend")
    if cfg.notail:
        p.wait_vm("wo2"); lds_arrive(p, vCNT, S4, vONE)
        st(p, "A.end"); st(p, "A.real1", real=True); st.dump(p, t0, 0); p("s_endpgm")
        return p, slow
    U = 68
    for t in range(8):
        a = ACC + 4 * t; kq = KVr + 2 * t; u = U + 4 * (t & 1)
        p([unp(u + 3, kq, 0), unp(u + 2, kq, 1), unp(u + 1, kq + 1, 0), unp(u + 0, kq + 1, 1)])
        for r in range(4): p(f"v_fmac_f32 {v(a+r)}, {s(R.sD)}, {v(u+r)}")
        p(f"v_cvt_pk_bf16_f32 {v(kq)}, {v(a+3)}, {v(a+2)}\nv_cvt_pk_bf16_f32 {v(kq+1)}, {v(a+1)}, {v(a+0)}")
        p(f"ds_write_b64 {v(R.vEP)}, {v(kq,2)} offset:{2048*t}")
    lds_arrive(p, vCNT, S3, vONE)
    YR = 76
    p(f"s_add_u32 {s(sT+2)}, {s(R.sMW)}, {XIMG+2048}\nv_add_u32 {v(t0)}, {s(sT+2)}, {v(R.vL16)}")
    lds_wait(p, "LA_s3", vCNT, S3, 4, t1, extra=[f"ds_read_b128 {v(YR+4*nn,4)}, {v(t0)} offset:{4096*nn}" for nn in range(4)])
    for nn in range(4):
        p(f"s_add_u32 {s(sSO)}, {s(R.sGRP)}, {WS_Y + nn*4096}")
        p(f"buffer_store_dwordx4 {v(YR+4*nn,4)}, {v(R.vXI)}, {s(rWS,4)}, {s(sSO)} offen sc1", "yst")
    st(p, "A.ystiss")
    p.wait_vm("wo2"); lds_arrive(p, vCNT, S4, vONE)
    p(f"s_lshr_b32 {s(sT+3)}, {s(R.sGRP)}, 4\ns_lshl_b32 {s(sT+4)}, {s(wa)}, 8\ns_add_u32 {s(sT+3)}, {s(sT+3)}, {s(sT+4)}\ns_add_u32 {s(sT+3)}, {s(sT+3)}, {F_Y}")
    p(f"s_lshl_b32 {s(sT+2)}, {s(sCT)}, 14\ns_and_b32 {s(sT+4)}, {s(sM)}, 3\ns_lshl_b32 {s(sT+4)}, {s(sT+4)}, 8\ns_add_u32 {s(sT+2)}, {s(sT+2)}, {s(sT+4)}\ns_add_u32 {s(sT+2)}, {s(sT+2)}, {F_Y}")
    p(f"v_mov_b32 {v(t0)}, 0\nv_lshlrev_b32 {v(t2)}, 12, v0\nv_add_u32 {v(t2)}, {s(R.sMW)}, {v(t2)}")
    for j in range(4):
        for c in range(8): p(unp(Qu + 8 * j + c, Qr + 4 * j + (c >> 1), c & 1))
    p.wait_vm("yst")
    p(f"s_mov_b64 exec, 1\nbuffer_store_dword {v(vONE)}, {v(t0)}, {s(rWS,4)}, {s(sT+3)} offen sc1\ns_mov_b64 exec, 0xf")
    st(p, "A.yflag")
    p("s_waitcnt vmcnt(0)")
    gpoll(p, cfg, "LA_py", rWS, t2, s(sT + 2), 1, t1)
    lds_arrive(p, vCNT, S7, vONE)
    lds_wait(p, "LA_s7", vCNT, S7, 4, t1)
    st(p, "A.ypoll")
    for c in range(4):
        p(f"s_mov_b32 {s(sSO)}, {WS_Y + c*16384}")
        p(f"buffer_load_dwordx4 {v(G+4*c,4)}, {v(R.vST)}, {s(rWS,4)}, {s(sSO)} offen sc1")
    p([f"v_permlane32_swap_b32 {v(G+4*c+2+d)}, {v(G+4*c+d)}" for c in range(4) for d in range(2)])
    OR = 36; T = 68
    for j in range(4):
        for c in range(8):
            src = G + 4 * (c & 3) + (2 if c < 4 else 0) + (0 if j >= 2 else 1)
            p(unp(T + c, src, 1 - (j & 1)))
        for c in range(8): p(f"v_mul_f32 {v(T+c)}, {v(T+c)}, {v(Qu+8*j+c)}")
        for d in range(4): p(f"v_cvt_pk_bf16_f32 {v(OR+4*j+d)}, {v(T+2*d)}, {v(T+2*d+1)}")
        p(f"s_mov_b32 {s(sSO)}, {4096*j}")
        p(f"buffer_store_dwordx4 {v(OR+4*j,4)}, {v(R.vOUT)}, {s(rOUT,4)}, {s(sSO)} offen {cfg.pol_out}")
    st(p, "A.outiss")
    if cfg.diag:
        p("s_waitcnt vmcnt(0)"); st(p, "A.end"); st(p, "A.real1", real=True); st.dump(p, t0, 0)
    p("s_endpgm")
    return p, slow

def gen_B(cfg, st):
    p = Prog(); slow = Prog()
    wb = sWV
    p("L_B:")
    p(f"s_setprio {cfg.prioB}\ns_and_b32 {s(wb)}, {s(wb)}, 3")
    st(p, "B.real0", real=True); st(p, "B.start")
    sTH, sHH = 86, 87
    mPar, mLe0, mLe1 = 88, 90, 92
    sOB, sSO, sFK = 94, 95, 96
    vXh, vXo, vWq, vWv = 2, 4, 6, 8
    vCNT, vONE, vL16 = 10, 11, 12
    t0, t1, t2 = 13, 14, 15
    ACC = 16
    accQ = lambda t, u: ACC + 8 * t + 4 * u
    accK = lambda t, u: ACC + 32 + 8 * t + 4 * u
    accV = lambda t, u: ACC + 64 + 8 * t + 4 * u
    accHK, accHV = ACC + 96, ACC + 100
    FS = [120, 164]
    fx = lambda k, t: FS[k] + 4 * t
    fw = lambda k, part, u: FS[k] + 20 + 8 * part + 4 * u
    SEL, NEG, vEh, vE3, vEr, vZ, vFA = 208, 212, 216, 217, 218, 220, 221
    t3, t4 = 222, 223
    p(f"s_lshr_b32 {s(sTH)}, {s(wb)}, 1\ns_and_b32 {s(sHH)}, {s(wb)}, 1")
    p(f"v_mov_b32 {v(vCNT)}, {CNT}\nv_mov_b32 {v(vONE)}, 1\nv_lshlrev_b32 {v(vL16)}, 4, v0")
    p(f"v_lshl_add_u32 {v(t0)}, v0, 2, {v(vCNT)}\nv_mov_b32 {v(t1)}, 0\nds_write_b32 {v(t0)}, {v(t1)}")
    sFO = 97
    p(f"s_lshl_b32 {s(sT)}, {s(sCT)}, 4\ns_add_u32 {s(sT)}, {s(sT)}, {s(sM)}\ns_lshl_b32 {s(sFK)}, {s(sT)}, 8\ns_add_u32 {s(sFK)}, {s(sFK)}, {F_KV}")
    p(f"s_lshl_b32 {s(sT)}, {s(sT)}, 2\ns_add_u32 {s(sT)}, {s(sT)}, {s(wb)}\ns_lshl_b32 {s(sT)}, {s(sT)}, 8\ns_add_u32 {s(sT+2)}, {s(sT)}, {F_Y}")
    p(f"s_lshl_b32 {s(sT+3)}, {s(sRB)}, 1\ns_add_u32 {s(sT+3)}, {s(sT+3)}, {s(sTH)}")
    p(f"s_lshl_b32 {s(sFO)}, {s(sT+3)}, 4\ns_add_u32 {s(sFO)}, {s(sFO)}, {s(sHG)}\ns_lshl_b32 {s(sFO)}, {s(sFO)}, 8\ns_add_u32 {s(sFO)}, {s(sFO)}, {F_O-128}")
    p(f"v_mov_b32 {v(t2)}, {s(sT+2)}\nv_mov_b32 {v(t4)}, {s(sFO)}\nv_cmp_gt_u32 vcc, 8, v0\nv_cndmask_b32 {v(t2)}, {v(t4)}, {v(t2)}, vcc\nv_add_u32 {v(vFA)}, {v(t2)}, {v(vL16)}")
    p(f"s_lshl_b32 {s(sT)}, {s(sHH)}, 2\ns_add_u32 {s(sT)}, {s(sT)}, 128\ns_add_u32 {s(sFO)}, {s(sFO)}, {s(sT)}")
    p(f"s_lshl_b32 {s(sT+4)}, {s(sHG)}, 1\ns_add_u32 {s(sT+4)}, {s(sT+4)}, {s(sHH)}")
    p(f"s_lshl_b32 {s(sT)}, {s(sT+3)}, 7\ns_add_u32 {s(sT)}, {s(sT)}, {s(sT+4)}\ns_lshl_b32 {s(sOB)}, {s(sT)}, 10\ns_add_u32 {s(sOB)}, {s(sOB)}, {WS_O}")
    for r in range(4): p(f"v_mov_b32 {v(NEG+r)}, 0")
    p(f"v_mov_b32 {v(vZ)}, 0")
    p("s_waitcnt lgkmcnt(0)")
    srd(p, rWS, pWS, 16 << 20); srd(p, rDBG, pDBG, 256); srd(p, rOUT, pOUT, 8 << 20)
    sTA = 98
    p(f"s_lshl_b32 {s(sTA)}, {s(sCT)}, 4\ns_or_b32 {s(sT)}, {s(sM)}, {s(wb)}\ns_cmp_lg_u32 {s(sT)}, 0\ns_cbranch_scc1 LB_notag")
    p(f"s_mov_b64 exec, 0xffff\nv_lshlrev_b32 {v(t2)}, 8, v0\nbuffer_load_dword {v(t4)}, {v(t2)}, {s(rWS,4)}, {s(sFK)} offen sc1\ns_waitcnt vmcnt(0)")
    p(f"v_lshrrev_b32 {v(t4)}, v0, {v(t4)}\nv_and_b32 {v(t4)}, 1, {v(t4)}\nv_cmp_eq_u32 vcc, 0, {v(t4)}\ns_nop 1\ns_or_b32 {s(sT)}, vcc_lo, 0x10000")
    p(f"s_mov_b64 exec, 1\nv_mov_b32 {v(t4)}, {s(sT)}\nbuffer_store_dword {v(t4)}, {v(vZ)}, {s(rDBG,4)}, {s(sTA)} offen sc1\nLB_notag:")
    p(f"s_lshl_b32 {s(sT)}, {s(sHH)}, 3\ns_lshr_b32 exec_lo, 0xffff, {s(sT)}\ns_mov_b32 exec_hi, 0")
    p(f"buffer_store_dwordx4 {v(NEG,4)}, {v(vFA)}, {s(rWS,4)}, 0 offen sc1\ns_mov_b64 exec, -1")
    if cfg.codepf:
        p(f"s_getpc_b64 {s(sT+2,2)}\nLB_pc:")
        p(f"s_sub_u32 {s(sT+2)}, {s(sT+2)}, LB_pc-{NAME}_kernel\ns_subb_u32 {s(sT+3)}, {s(sT+3)}, 0")
        p(f"s_lshr_b32 {s(sT)}, s2, 3\ns_and_b32 {s(sT)}, {s(sT)}, 7\ns_lshl_b32 {s(sT)}, {s(sT)}, 2\ns_add_u32 {s(sT)}, {s(sT)}, {s(wb)}")
        p(f"v_lshlrev_b32 {v(t0)}, 5, v0\nv_add_u32 {v(t0)}, {s(sT)}, {v(t0)}\nv_lshlrev_b32 {v(t0)}, 7, {v(t0)}")
        p(f"v_cmp_gt_u32 vcc, L_end-{NAME}_kernel, {v(t0)}\ns_and_saveexec_b64 {s(sT+4,2)}, vcc")
        p(f"global_load_dword {v(t3)}, {v(t0)}, {s(sT+2,2)}\ns_mov_b64 exec, -1")
    c_, g_ = t0, t1
    p(f"v_and_b32 {v(c_)}, 15, v0\nv_lshrrev_b32 {v(g_)}, 4, v0")
    p(f"v_lshrrev_b32 {v(t2)}, 1, {v(c_)}\nv_xor_b32 {v(t2)}, {v(t2)}, {v(g_)}\nv_lshlrev_b32 {v(t2)}, 4, {v(t2)}\nv_lshl_add_u32 {v(t2)}, {v(c_)}, 7, {v(t2)}")
    p(f"v_add_u32 {v(vXh)}, {XR}, {v(t2)}\nv_xor_b32 {v(vXh+1)}, 64, {v(vXh)}")
    p(f"s_lshl_b32 {s(sT)}, {s(sTH)}, 13\ns_add_u32 {s(sT)}, {s(sT)}, 2048\nv_add_u32 {v(vXo)}, {s(sT)}, {v(vXh)}\nv_add_u32 {v(vXo+1)}, {s(sT)}, {v(vXh+1)}")
    p(f"v_bfe_u32 {v(t2)}, v0, 3, 2")
    p(f"s_lshl_b32 {s(sT)}, {s(sHH)}, 1\ns_add_u32 {s(sT)}, {s(sT)}, {s(sTH)}\nv_xor_b32 {v(t2)}, {s(sT)}, {v(t2)}\nv_lshlrev_b32 {v(t2)}, 5, {v(t2)}")
    p(f"v_and_b32 {v(t4)}, 3, v0\nv_lshl_add_u32 {v(t2)}, {v(t4)}, 3, {v(t2)}\nv_bfe_u32 {v(t4)}, v0, 2, 2\nv_lshl_add_u32 {v(t2)}, {v(t4)}, 7, {v(t2)}")
    p(f"v_lshl_add_u32 {v(vWq)}, {v(g_)}, 10, {v(t2)}\nv_xor_b32 {v(vWq+1)}, 32, {v(vWq)}\nv_add_u32 {v(vWv)}, 49152, {v(vWq)}\nv_add_u32 {v(vWv+1)}, 49152, {v(vWq+1)}")
    p(f"v_and_b32 {v(t2)}, 1, {v(c_)}\nv_cmp_eq_u32 {s(mPar,2)}, 1, {v(t2)}")
    p(f"v_lshl_add_u32 {v(t2)}, {v(g_)}, 2, {v(t2)}\nv_cmp_le_u32 {s(mLe0,2)}, {v(t2)}, {v(c_)}\nv_add_u32 {v(t2)}, 2, {v(t2)}\nv_cmp_le_u32 {s(mLe1,2)}, {v(t2)}, {v(c_)}")
    p(f"v_mov_b32 {v(NEG)}, 0x0c0c0c0c")
    for j, m in ((0, mLe0), (1, mLe1)):
        lo = 0x0c0c0000 | ((2*j+1) << 8) | (2*j); hi = ((2*j+1) << 24) | ((2*j) << 16) | 0x0c0c
        p(f"v_mov_b32 {v(t2)}, {hex(lo)}\nv_mov_b32 {v(t4)}, {hex(hi)}\nv_cndmask_b32 {v(t2)}, {v(t2)}, {v(t4)}, {s(mPar,2)}")
        p(f"v_cndmask_b32 {v(SEL+j)}, {v(t2)}, {v(NEG)}, {s(m,2)}\nv_cndmask_b32 {v(SEL+2+j)}, {v(NEG)}, {v(t2)}, {s(m,2)}")
    p(f"s_or_b32 {s(sT)}, {s(sRB)}, {s(sTH)}\ns_cmp_eq_u32 {s(sT)}, 0\ns_cselect_b32 {s(sT)}, {hex(f2u(-1e30))}, 0")
    for r in range(4): p(f"v_mov_b32 {v(NEG+r)}, {s(sT)}")
    p(f"s_lshl_b32 {s(sT)}, {s(sHH)}, 12\ns_add_u32 {s(sT)}, {s(sT)}, {EXCH}\ns_lshl_b32 {s(sT+1)}, {s(sTH)}, 9\ns_add_u32 {s(sT+1)}, {s(sT+1)}, {s(sT)}")
    p(f"v_lshlrev_b32 {v(t2)}, 3, v0\nv_add_u32 {v(vEh)}, {s(sT+1)}, {v(t2)}")
    p(f"s_lshl_b32 {s(sT+2)}, {s(sTH)}, 11\nv_add_u32 {v(vEr)}, {s(sT+2)}, {v(vEh)}\nv_xor_b32 {v(vEr+1)}, 512, {v(vEr)}")
    p(f"s_add_u32 {s(sT)}, {s(sT)}, 2048\ns_cmp_eq_u32 {s(sTH)}, 0\ns_cselect_b32 {s(sT)}, {s(sT)}, {EXCH+8192}\nv_add_u32 {v(vE3)}, {s(sT)}, {v(t2)}")

    def reads(c, ks):
        k = ks; sl = c % 3; L = []
        X = [f"ds_read_b128 {v(fx(k,t),4)}, {v(vXo+ks)} offset:{sl*XS + 2048*t}" for t in range(4)]
        X.append(f"ds_read_b128 {v(fx(k,4),4)}, {v(vXh+ks)} offset:{sl*XS}")
        W = []
        for part in range(3):
            for u in range(2):
                for j in range(2):
                    base = (vWv if part == 2 else vWq) + u
                    off = (part & 1) * 24576 + sl * 8192 + ks * 4096 + j * 512
                    W.append(f"ds_read_b64_tr_b16 {v(fw(k,part,u)+2*j,2)}, {v(base)} offset:{off}")
        return X + W
    def mfmas(k, first, last=False):
        def mm(a, A, B): return f"v_mfma_f32_16x16x32_bf16 {v(a,4)}, {v(A,4)}, {v(B,4)}, {'0' if first else v(a,4)}"
        H = [mm(accHK, fw(k,1,0), fx(k,4)), mm(accHV, fx(k,4), fw(k,2,0))]
        Q = lambda t: [mm(accQ(t,u), fw(k,0,u), fx(k,t)) for u in range(2)]
        K = lambda t: [mm(accK(t,u), fw(k,1,u), fx(k,t)) for u in range(2)]
        V = lambda t: [mm(accV(t,u), fx(k,t), fw(k,2,u)) for u in range(2)]
        return H + K(3) + V(3) + Q(3) + K(2) + Q(2) + K(1) + Q(1) + K(0) + Q(0) + V(2) + V(1) + V(0)

    p("s_waitcnt lgkmcnt(0)\ns_barrier")
    st(p, "B.bar0")
    p(reads(0, 0))
    vP = t3
    for c in range(16):
        p("s_waitcnt lgkmcnt(0)")
        extra = []
        if c == cfg.KF - 3: extra = [f"buffer_load_dword {v(vP)}, {v(vZ)}, {s(rDBG,4)}, {s(sTA)} offen sc1"]
        p(weave(mfmas(0, c == 0), reads(c, 1) + extra, per_gap=1))
        if c == 0: p("s_waitcnt vmcnt(0)")
        p("s_waitcnt lgkmcnt(0)")
        if c < 15: p("s_barrier")
        else: lds_arrive(p, vCNT, S6, vONE)
        if cfg.allbar or c in (0, 3, 7, 11, 15): st(p, f"B.bar{c+1}")
        if c + 1 == cfg.KF:
            p(f"s_cmp_lg_u32 {s(wb)}, 0\ns_cbranch_scc1 LB_sk\ns_waitcnt vmcnt(0)\nv_cmp_eq_u32 vcc, 0, {v(vP)}\ns_cbranch_vccnz LB_slow\nLB_back:")
            p(f"s_mov_b64 exec, 1\nbuffer_store_dword {v(vP)}, {v(vZ)}, {s(rWS,4)}, {s(sFK)} offen sc1\ns_mov_b64 exec, -1\nLB_sk:")
            slow("LB_slow:"); gpoll(slow, cfg, "LB_pt", rDBG, vZ, s(sTA), 4096, vP); slow("s_branch LB_back")
        if c < 15: p(weave(mfmas(1, False), reads(c + 1, 0), per_gap=1))
    Qp = lambda t: 120 + 4 * t
    Kp = lambda t: 136 + 4 * (t + 1)
    Vp = lambda u, t: 224 + 10 * u + 2 * (t + 1)
    Hp = 156
    def pk(dst, a): return [f"v_cvt_pk_bf16_f32 {v(dst)}, {v(a)}, {v(a+1)}", f"v_cvt_pk_bf16_f32 {v(dst+1)}, {v(a+2)}, {v(a+3)}"]
    M = mfmas(1, False)
    fill = pk(Hp, accHK) + pk(Hp + 2, accHV)
    for u in range(2): fill += pk(Kp(3) + 2 * u, accK(3, u))
    for u in range(2): fill += pk(Vp(u, 3), accV(3, u))
    fill += [f"ds_write_b64 {v(vEh)}, {v(Hp,2)}", f"ds_write_b64 {v(vEh)}, {v(Hp+2,2)} offset:1024"]
    for u in range(2):
        fill += [f"ds_write_b64 {v(vE3)}, {v(Kp(3)+2*u,2)} offset:{512*u}", f"ds_write_b64 {v(vE3)}, {v(Vp(u,3),2)} offset:{1024+512*u}"]
    p(f"s_lshl_b32 {s(sT)}, {s(sHH)}, 2\nv_add_u32 {v(t0)}, {s(sT)}, {v(vCNT)}")
    for t in (3,):
        for u in range(2): fill += pk(Qp(t) + 2 * u, accQ(t, u))
    for t in (2, 1):
        for u in range(2): fill += pk(Kp(t) + 2 * u, accK(t, u))
        for u in range(2): fill += pk(Qp(t) + 2 * u, accQ(t, u))
    p(weave(M, fill, per_gap=2, start=9))
    lds_arrive(p, t0, S1, vONE)
    st(p, "B.T0")
    for u in range(2): p(pk(Kp(0) + 2 * u, accK(0, u)))
    for u in range(2): p(pk(Qp(0) + 2 * u, accQ(0, u)))
    Sp = lambda t: ACC + 8 * t; Sc = lambda t: ACC + 8 * t + 4
    def smm(d, kt, qt, c="0"): return f"v_mfma_f32_16x16x32_bf16 {v(d,4)}, {v(Kp(kt),4)}, {v(Qp(qt),4)}, {c}"
    SM = [smm(Sc(3), 3, 3), smm(Sp(3), 2, 3), smm(Sc(2), 2, 2), smm(Sp(2), 1, 2), smm(Sc(1), 1, 1), smm(Sp(1), 0, 1), smm(Sc(0), 0, 0)]
    fill = []
    for t in (2, 1, 0):
        for u in range(2): fill += pk(Vp(u, t), accV(t, u))
    p(weave(SM, fill, per_gap=2))
    ex = [f"ds_read_b64 {v(Kp(-1)+2*u,2)}, {v(vEr+u)}" for u in range(2)] + [f"ds_read_b64 {v(Vp(u,-1),2)}, {v(vEr+u)} offset:1024" for u in range(2)]
    lds_wait(p, "LB_s1", t0, S1, 2, t1, extra=ex)
    p(smm(Sp(0), -1, 0, v(NEG, 4)))
    Xv = lambda t, j: ACC + 32 + 2 * t + j
    Mx = lambda t: ACC + 40 + t
    Tm = ACC + 44
    for t in (3, 2, 1, 0):
        for j, m in ((0, mLe0), (1, mLe1)):
            p(f"v_cndmask_b32 {v(Tm)}, {v(Sc(t)+2*j)}, {v(Sc(t)+2*j+1)}, {s(mPar,2)}")
            p(f"v_cndmask_b32 {v(Tm+1)}, {v(Sp(t)+2*j)}, {v(Sp(t)+2*j+1)}, {s(mPar,2)}")
            p(f"v_cndmask_b32 {v(Xv(t,j))}, {v(Tm+1)}, {v(Tm)}, {s(m,2)}")
        p(f"v_max_f32 {v(Mx(t))}, {v(Xv(t,0))}, {v(Xv(t,1))}")
    def allred(op, mid):
        m0, m1, m2, m3 = (Mx(t) for t in range(4))
        p(f"v_permlane32_swap_b32 {v(m2)}, {v(m3)}\nv_permlane32_swap_b32 {v(m0)}, {v(m1)}")
        p(f"{op} {v(m2)}, {v(m2)}, {v(m3)}\n{op} {v(m0)}, {v(m0)}, {v(m1)}")
        p(f"v_permlane16_swap_b32 {v(m0)}, {v(m2)}\n{op} {v(m0)}, {v(m0)}, {v(m2)}")
        p(mid(m0))
        p(f"v_mov_b32 {v(m2)}, {v(m0)}\nv_permlane16_swap_b32 {v(m0)}, {v(m2)}")
        p(f"v_mov_b32 {v(m1)}, {v(m0)}\nv_mov_b32 {v(m3)}, {v(m2)}")
        p(f"v_permlane32_swap_b32 {v(m0)}, {v(m1)}\nv_permlane32_swap_b32 {v(m2)}, {v(m3)}")
    cs = (32 ** -0.5) * math.log2(math.e)
    p(f"s_mov_b32 {s(sT+2)}, {hex(f2u(cs))}")
    allred("v_max_f32", lambda m: f"v_mul_f32 {v(m)}, {s(sT+2)}, {v(m)}")
    for t in range(4):
        for j in range(2): p(f"v_fma_f32 {v(Xv(t,j))}, {v(Xv(t,j))}, {s(sT+2)}, -{v(Mx(t))}")
    for t in range(4):
        for j in range(2): p(f"v_exp_f32 {v(Xv(t,j))}, {v(Xv(t,j))}")
    for t in range(4): p(f"v_add_f32 {v(Mx(t))}, {v(Xv(t,0))}, {v(Xv(t,1))}")
    allred("v_add_f32", lambda m: f"v_rcp_f32 {v(m)}, {v(m)}")
    Pf = lambda t: ACC + 48 + 4 * t
    Oa = lambda t, u: ACC + 8 * t + 4 * u
    Of = lambda t: ACC + 64 + 4 * t
    for t in range(4):
        for j in range(2): p(f"v_mul_f32 {v(Xv(t,j))}, {v(Xv(t,j))}, {v(Mx(t))}")
        p(f"v_cvt_pk_bf16_f32 {v(Xv(t,0))}, {v(Xv(t,0))}, {v(Xv(t,1))}")
        for k in range(4): p(f"v_perm_b32 {v(Pf(t)+k)}, {v(Xv(t,0))}, {v(Xv(t,0))}, {v(SEL+k)}")
        if t > 0:
            for u in range(2): p(f"v_mfma_f32_16x16x32_bf16 {v(Oa(t-1,u),4)}, {v(Vp(u,t-2),4)}, {v(Pf(t-1),4)}, 0")
    for u in range(2): p(f"v_mfma_f32_16x16x32_bf16 {v(Oa(3,u),4)}, {v(Vp(u,2),4)}, {v(Pf(3),4)}, 0")
    for t in range(4):
        for u in range(2): p(pk(Of(t) + 2 * u, Oa(t, u)))
        p(f"s_add_u32 {s(sSO)}, {s(sOB)}, {32768*t}")
        p(f"buffer_store_dwordx4 {v(Of(t),4)}, {v(vL16)}, {s(rWS,4)}, {s(sSO)} offen sc1", "ost")
    st(p, "B.ostiss")
    vWA = 2
    p(f"v_bfe_u32 {v(t1)}, v0, 3, 2\nv_lshlrev_b32 {v(t1)}, 5, {v(t1)}\nv_and_b32 {v(t2)}, 3, v0\nv_lshl_add_u32 {v(t1)}, {v(t2)}, 3, {v(t1)}")
    p(f"v_lshrrev_b32 {v(t2)}, 2, v0\nv_lshl_add_u32 {v(t1)}, {v(t2)}, 7, {v(t1)}\ns_lshl_b32 {s(sT)}, {s(sTH)}, 11\nv_add_u32 {v(t1)}, {s(sT)}, {v(t1)}")
    for j in range(2):
        for u in range(4): p(f"v_xor_b32 {v(vWA+4*j+u)}, {2048*j + 32*u}, {v(t1)}")
    p(f"v_and_b32 {v(t1)}, 15, v0\ns_lshl_b32 {s(sT)}, {s(sRB4)}, 2\ns_add_u32 {s(sT)}, {s(sT)}, {s(wb)}\ns_lshl_b32 {s(sT+1)}, {s(sT)}, 5\nv_add_u32 {v(t1)}, {s(sT+1)}, {v(t1)}\nv_lshlrev_b32 {v(t1)}, 12, {v(t1)}")
    p(f"v_bfe_u32 {v(t2)}, v0, 4, 1\nv_lshl_add_u32 {v(t1)}, {v(t2)}, 5, {v(t1)}\nv_lshrrev_b32 {v(t2)}, 5, v0\nv_lshl_add_u32 {v(t1)}, {v(t2)}, 4, {v(t1)}")
    p(f"s_lshl_b32 {s(sT+1)}, {s(sCB)}, 7\ns_add_u32 {s(sT+1)}, {s(sT+1)}, 2048\nv_add_u32 {v(t0)}, {s(sT+1)}, {v(t1)}")
    vOUT = t0
    sO0, sO1, sPF = 88, 89, 90
    p(f"s_lshl_b32 {s(sO0)}, {s(sT)}, 16\ns_add_u32 {s(sO0)}, {s(sO0)}, {WS_O}")
    p(f"s_lshl_b32 {s(sPF)}, {s(sRB4)}, 1\ns_add_u32 {s(sPF)}, {s(sPF)}, {s(sTH)}\ns_lshl_b32 {s(sPF)}, {s(sPF)}, 12\ns_add_u32 {s(sPF)}, {s(sPF)}, {F_O}")
    p(f"v_lshrrev_b32 {v(t2)}, 1, v0\nv_lshlrev_b32 {v(t2)}, 8, {v(t2)}\nv_and_b32 {v(t1)}, 1, v0\nv_lshl_add_u32 {v(t2)}, {v(t1)}, 2, {v(t2)}")
    sR4 = 92
    p(f"s_and_b32 {s(sR4)}, {s(sRB4)}, 3\ns_lshl_b32 {s(sR4)}, {s(sR4)}, 13")
    if cfg.rotcb: p(f"s_and_b32 {s(sT)}, {s(sCB)}, {cfg.rotcb}\ns_lshl_b32 {s(sT)}, {s(sT)}, 12\ns_add_u32 {s(sR4)}, {s(sR4)}, {s(sT)}")
    p.wait_vm("ost")
    p(f"s_mov_b64 exec, 1\nbuffer_store_dword {v(vONE)}, {v(vZ)}, {s(rWS,4)}, {s(sFO)} offen sc1\ns_mov_b64 exec, -1")
    st(p, "B.oflag")
    A4 = 16; WF = [48, 64, 80]; OF = 96; NR = cfg.NR
    def wreads(stp):
        k = stp % 3; loc = wo_loc(stp); L = []
        base = 0 if stp < 16 else (65536 if stp < 24 else HB)
        for u in range(4):
            for j in range(2):
                if stp in (16, 24): L.append(f"v_add_u32 {v(vWA+4*j+u)}, {65536 if stp == 16 else HB - 65536}, {v(vWA+4*j+u)}")
                L.append(Ins(f"ds_read_b64_tr_b16 {v(WF[k]+4*u+2*j,2)}, {v(vWA+4*j+u)} offset:{loc-base}", f"w{stp}"))
        return L
    def oload(stp):
        L = []
        for tt in range(2):
            r = OF + 8 * (stp % NR) + 4 * tt
            if stp % 4 == 0:
                if tt == 0: L += [f"s_add_u32 {s(sO1)}, {s(sR4)}, {1024*stp}", f"s_and_b32 {s(sO1)}, {s(sO1)}, 0x7fff", f"s_add_u32 {s(sO1)}, {s(sO1)}, {s(sO0)}"]
                else: L.append(f"s_add_u32 {s(sO1+2)}, {s(sO1)}, 32768")
            L.append(Ins(f"buffer_load_dwordx4 {v(r,4)}, {v(vL16)}, {s(rWS,4)}, {s(sO1+2*tt)} offen offset:{1024*(stp%4)} {cfg.pol_o}", f"o{stp}"))
        return L
    lds_wait(p, "LB_s5", vCNT, S5, 4, t1)
    p("s_waitcnt vmcnt(0)\ns_mov_b64 exec, 0xffffffff")
    gpoll(p, cfg, "LB_po", rWS, t2, s(sPF), 1, t1)
    p("s_mov_b64 exec, -1")
    st(p, "B.opoll")
    for stp in range(NR - 1): p(oload(stp))
    p(f"s_setprio {cfg.prioB2}")
    lds_wait(p, "LB_s2", vCNT, S2, 4, t1, extra=wreads(0))
    p(wreads(1))
    for stp in range(32):
        k = stp % 3
        if stp == 1: st(p, "B.p4s1")
        if stp + 2 == 24: lds_wait(p, "LB_s4", vCNT, S4, 4, t1)
        p.wait_both(f"o{stp}", f"w{stp}")
        fill = []
        if stp - 1 + NR < 32 and not cfg.noo: fill += oload(stp - 1 + NR)
        if stp + 2 < 32: fill += wreads(stp + 2)
        M = [f"v_mfma_f32_16x16x32_bf16 {v(A4+16*tt+4*u,4)}, {v(WF[k]+4*u,4)}, {v(OF+8*(stp%NR)+4*tt,4)}, {'0' if stp == 0 else v(A4+16*tt+4*u,4)}" for tt in range(2) for u in range(4)]
        p(spread(M, fill))
    st(p, "B.p4end")
    PK = 48
    for tt in range(2):
        for pr in range(2):
            d = PK + 8 * tt + 4 * pr
            p(pk(d, A4 + 16 * tt + 8 * pr) + pk(d + 2, A4 + 16 * tt + 8 * pr + 4))
            p(f"v_permlane16_swap_b32 {v(d)}, {v(d+2)}\nv_permlane16_swap_b32 {v(d+1)}, {v(d+3)}")
            p(f"s_mov_b32 {s(sSO)}, {65536*tt}")
            p(f"buffer_store_dwordx4 {v(d,4)}, {v(vOUT)}, {s(rOUT,4)}, {s(sSO)} offen offset:{64*pr} {cfg.pol_out}")
    st(p, "B.outiss")
    if cfg.diag:
        p("s_waitcnt vmcnt(0)"); st(p, "B.end"); st(p, "B.real1", real=True); st.dump(p, t1, 1)
    p("s_endpgm")
    return p, slow

HEAD = open(__file__.rsplit("/", 1)[0] + "/head.txt").read() if "/" in __file__ else open("head.txt").read()

def generate(cfg, verbose=False):
    stA = Stamper(cfg, 255); stB = Stamper(cfg, 255)
    c = gen_common(cfg); a0 = gen_A0(cfg, stA)
    def fin(prefix, body, label):
        q = Prog(); q.L = prefix + body; q.finalize(verbose)
        i = 0 if label is None else next(k for k, y in enumerate(q.out) if y.text == label)
        return "\n".join(("" if y.kind == "label" else "    ") + y.text for y in q.out[i:])
    n0, names0 = stA.n, list(stA.names)
    parts = []
    for rho in range(4):
        stA.n, stA.names = n0, list(names0)
        a1 = gen_A1(cfg, stA, rho)
        parts.append(fin(c.L + a0.L, a1.L, None if rho == 0 else f"LA_c{rho}:"))
    a2, slowA = gen_A2(cfg, stA, a1.hc)
    parts.append(fin(c.L + a0.L + a1.L, a2.L, "LA_j:"))
    ta = "\n".join(parts)
    b, slow = gen_B(cfg, stB)
    tb = fin(c.L, b.L, "L_B:")
    ts = slowA.finalize() + "\n" + slow.finalize()
    txt = HEAD + f"; @launch grid=(256,1,1) block=(512,1,1) lds={LDS_BYTES}\n"
    txt += f""".amdgcn_target "amdgcn-amd-amdhsa--gfx950"
.text
.globl {NAME}_kernel
.p2align 8
.type {NAME}_kernel,@function
{NAME}_kernel:
{ta}
{tb}
{ts}
L_end:
    s_endpgm
.section .rodata,"a"
.p2align 6
.amdhsa_kernel {NAME}_kernel
  .amdhsa_next_free_vgpr 256
  .amdhsa_next_free_sgpr 102
  .amdhsa_accum_offset 256
  .amdhsa_group_segment_fixed_size 0
  .amdhsa_kernarg_size 96
  .amdhsa_user_sgpr_count 2
  .amdhsa_user_sgpr_kernarg_segment_ptr 1
  .amdhsa_system_sgpr_workgroup_id_x 1
.end_amdhsa_kernel
"""
    return txt, (stA.names, stB.names)

if __name__ == "__main__":
    cfg = Cfg(); out = None
    for arg in sys.argv[1:]:
        if "=" in arg:
            k, val = arg.split("=", 1)
            cur = getattr(cfg, k)
            setattr(cfg, k, (val not in ("0", "False")) if isinstance(cur, bool) else type(cur)(val.replace("+", " ")))
        else: out = arg
    txt, names = generate(cfg, True)
    if cfg.diag: txt = txt.replace(".amdgcn_target", f"; stamps A {' '.join(names[0])}\n; stamps B {' '.join(names[1])}\n.amdgcn_target", 1)
    open(out or f"/code/{NAME}.s", "w").write(txt)
```

```python
import sys, math, struct
from asmlib import *

NAME = "concat_heads__ssm_conv_h3__sliding_local_dilated__prompt"

class Cfg:
    diag = False
    nt_in = "nt"
    pol_x = ""
    pol_w = ""
    pol_wo = ""
    pol_out = "nt"
    prioB = 3
    spin = 200000
    codepf = True
    first = 7
    leadD = 3.5
    rot = 2
    KL = "1,2,3,3"
    NI = 5
    KF = 12
    HL = "10,10,11,11"
    cap = 16
    NR = 6
    prioA2 = 2; prioA3 = 0; prioB2 = 1
    nop1 = False
    both = False; allbar = False
    TL = "6,4,5,1"; boost = 3; touch = True
    qpos = "c"; ysig = 19; WD = 2
    lsleep = 1; noyst = False; pol_y = "sc1"
    p4st = False; nopoll = True
    prioAt = 3; prioA4 = 2; npre = 5; ndma = 8; ally = True
    mini = False
    QL = "4,5,1,2"; nat = 6; pre = False; oD = 1.5; ldsout = True; xtab = 0x76325410; hend = False; xperm = True; jx = 3; htouch = True; epoll = False; hone = True; defer = 60; first0 = 1; bdefer = False; snake = True; gapv = 5; capS = 99; stend = False; tpos = "xi"; nA = 8; wpos = "b15"; skipbad = True
    half = True; sigma = True; ctx = 0; late = True; sleep = 8
    notail = False; pol_o = "sc1"; rotcb = 0; noo = False; hlate = False; rdend = False
    probe = 0; probe_ptr = 16; probe_pol = ""
    enc = ""; encwg = 37; early = False; encbase = 10000; dbgdump = ""

WR = 0; XR = 73728; XS = 18432; HB = 129024; HS = 8320; CNT = 162304
XIMG = XR + XS; EXCH = 24576; NPRE = 6; PRE = [True]
LDS_BYTES = 163840
S1, S2, S3, S4, S5, S6, S7, S8, S9, S10 = 0, 8, 12, 16, 20, 24, 28, 32, 36, 40
KST = HB; VST = HB + 16896; SHW = CNT + 512
def wo_loc(st):
    if st >= 32 - NPRE:
        st -= 32 - NPRE
        if not PRE[0]: return HB + 4096 * st
    if st < 13: return 36864 + 4096 * st
    if st < 19: return 4096 * (st - 13)
    if st < 23: return XR + 2 * XS + 4096 * (st - 19)
    return EXCH + 4096 * (st - 23)
WS_KV = 0; WS_Y = 4 << 20; WS_O = 8 << 20; WS_F = 12 << 20; WS_DBG = 13 << 20
F_KV = WS_F; F_Y = WS_F + 65536; F_O = WS_F + 65536 + 262144
pQ, pK, pV, pSH, pH, pD, pX, pW, pWO, pOUT, pDBG, pWS = 4, 6, 8, 10, 12, 14, 16, 18, 20, 22, 24, 26
rX, rW, rK, rV, rSH, rH, rWS, rQ, rOUT, rWO, rDBG = 28, 32, 36, 40, 44, 48, 52, 56, 60, 64, 68
sWV = 3; sRB, sHG, sCT, sM, sRB4, sCB = 72, 73, 74, 75, 76, 77
sT = 78
sSTAMP = 84

def srd(p, r, ptr, nbytes):
    p(f"s_mov_b32 {s(r)}, {s(ptr)}\ns_mov_b32 {s(r+1)}, {s(ptr+1)}\ns_mov_b32 {s(r+2)}, {hex(nbytes)}\ns_mov_b32 {s(r+3)}, 0x20000")

def f2u(x): return struct.unpack("<I", struct.pack("<f", x))[0]

class Stamper:
    def __init__(self, cfg, vreg): self.cfg = cfg; self.n = 0; self.vreg = vreg; self.names = []
    def __call__(self, p, name, real=False):
        if not self.cfg.diag: return
        if self.cfg.mini and "real" not in name: return
        if self.cfg.mini and self.n == 0:
            p(f"s_memrealtime {s(sSTAMP,2)}"); self.names.append(name); self.n += 1; return
        if not (self.cfg.early and self.n == 0): p(f"{'s_memrealtime' if real else 's_memtime'} {s(sSTAMP,2)}")
        p(f"s_waitcnt lgkmcnt(0)\nv_writelane_b32 {v(self.vreg)}, {s(sSTAMP)}, {self.n}")
        if self.cfg.both: p(f"s_memrealtime {s(sSTAMP,2)}\ns_waitcnt lgkmcnt(0)\nv_writelane_b32 {v(self.vreg)}, {s(sSTAMP)}, {self.n+32}")
        self.names.append(name); self.n += 1
    def flush(self, p):
        if self.cfg.diag and self.cfg.mini: p(f"v_writelane_b32 {v(self.vreg)}, {s(sSTAMP)}, 0")
    def dump(self, p, vtmp, role):
        if not self.cfg.diag: return
        cfg = self.cfg; rn = "AB"[role]
        if cfg.dbgdump == rn or cfg.enc.startswith(rn) or (cfg.enc == "zero" and role == 0):
            p(f"s_cmp_lg_u32 s2, {cfg.encwg}\ns_cbranch_scc1 L_noenc{rn}\ns_cmp_lg_u32 {s(sWV)}, 0\ns_cbranch_scc1 L_noenc{rn}")
            if cfg.dbgdump == rn:
                srd(p, rDBG, pDBG, 256)
                p(f"v_readlane_b32 {s(sT)}, {v(self.vreg)}, 1\ns_nop 3\nv_subrev_u32 v1, {s(sT)}, {v(self.vreg)}\nv_lshlrev_b32 {v(vtmp)}, 2, v0\nv_subrev_u32 {v(vtmp)}, 4, {v(vtmp)}")
                p(f"s_mov_b64 exec, 0x1fffc\nbuffer_store_dword v1, {v(vtmp)}, {s(rDBG,4)}, 0 offen\ns_mov_b64 exec, -1")
            if cfg.enc.startswith(rn) or (cfg.enc == "zero" and role == 0):
                p(f"v_readlane_b32 {s(sT)}, {v(self.vreg)}, 0")
                if cfg.enc != "zero":
                    a, b = cfg.enc.split("-")
                    p(f"v_readlane_b32 {s(sT+1)}, {v(self.vreg)}, {self.names.index(a)}\nv_readlane_b32 {s(sT+2)}, {v(self.vreg)}, {self.names.index(b)}\ns_nop 3")
                    p(f"s_sub_u32 {s(sT+1)}, {s(sT+1)}, {s(sT+2)}")
                    if "real" not in a: p(f"s_mul_i32 {s(sT+1)}, {s(sT+1)}, 6554\ns_lshr_b32 {s(sT+1)}, {s(sT+1)}, 16")
                    p(f"s_add_u32 {s(sT)}, {s(sT)}, {s(sT+1)}")
                p(f"s_nop 3\ns_add_u32 {s(sT)}, {s(sT)}, {cfg.encbase}\nL_enc{rn}:\ns_memrealtime {s(sSTAMP,2)}\ns_waitcnt lgkmcnt(0)\ns_sub_u32 {s(sT+1)}, {s(sSTAMP)}, {s(sT)}\ns_cmp_lt_i32 {s(sT+1)}, 0\ns_cbranch_scc1 L_enc{rn}")
            p(f"L_noenc{rn}:")
        p(f"s_lshl_b32 {s(sT)}, s2, 3\ns_add_u32 {s(sT)}, {s(sT)}, {s(sWV)}\ns_add_u32 {s(sT)}, {s(sT)}, {4*role}\ns_lshl_b32 {s(sT)}, {s(sT)}, 8\ns_add_u32 {s(sT)}, {s(sT)}, {hex(WS_DBG)}")
        p(f"v_lshlrev_b32 {v(vtmp)}, 2, v0\nbuffer_store_dword {v(self.vreg)}, {v(vtmp)}, {s(rWS,4)}, {s(sT)} offen")

LSLEEP = [0]
def lds_wait(p, name, vcnt, off, target, vt, extra=None):
    if LSLEEP[0]: p(f"s_branch {name}_in\n{name}:\ns_sleep {LSLEEP[0]}\n{name}_in:")
    else: p(f"{name}:")
    p(f"ds_read_b32 {v(vt)}, {v(vcnt)} offset:{off}")
    if extra: p(extra)
    p(f"s_waitcnt lgkmcnt(0)\nv_readfirstlane_b32 {s(sT)}, {v(vt)}\ns_nop 0\ns_cmp_ge_u32 {s(sT)}, {target}\ns_cbranch_scc0 {name}")

def lds_arrive(p, vcnt, off, vone):
    p(f"s_mov_b64 exec, 1\nds_add_u32 {v(vcnt)}, {v(vone)} offset:{off}\ns_mov_b64 exec, -1")

def gpoll(p, cfg, name, srdr, vaddr, soff, want, vt, sleep=2):
    p(f"s_mov_b32 {s(sT+1)}, 0")
    p(f"{name}:")
    p(f"buffer_load_dword {v(vt)}, {v(vaddr)}, {s(srdr,4)}, {soff} offen sc1")
    p(f"s_add_u32 {s(sT+1)}, {s(sT+1)}, 1\ns_cmp_gt_u32 {s(sT+1)}, {cfg.spin}\ns_cbranch_scc1 {name}_x")
    p(f"s_waitcnt vmcnt(0)\nv_cmp_{'gt' if want > 1 else 'ne'}_u32 vcc, {want}, {v(vt)}\ns_cbranch_vccz {name}_x")
    p(f"s_mov_b64 exec, vcc\ns_sleep {cfg.sleep}\ns_branch {name}")
    p(f"{name}_x:\ns_waitcnt vmcnt(0)")

def gen_common(cfg):
    p = Prog()
    if cfg.early: p(f"s_memrealtime {s(sSTAMP,2)}")
    p("s_cmp_ge_u32 s2, 256\ns_cbranch_scc1 L_end")
    p(f"s_load_dwordx4 {s(pX,4)}, s[0:1], 48")
    p(f"s_load_dwordx8 {s(pQ,8)}, s[0:1], 0\ns_load_dwordx4 {s(pH,4)}, s[0:1], 32\ns_load_dwordx8 {s(pWO,8)}, s[0:1], 64")
    p(f"v_lshrrev_b32 v1, 6, v0\nv_and_b32 v0, 63, v0\nv_readfirstlane_b32 {s(sWV)}, v1")
    if cfg.codepf:
        p(f"s_cmp_lg_u32 {s(sWV)}, 4\ns_cbranch_scc1 L_nopf\ns_getpc_b64 {s(sT+2,2)}\nL_pc:")
        p(f"s_bfe_u32 {s(sT)}, s2, 0x40003\nv_lshl_add_u32 v1, v0, 4, {s(sT)}\nv_lshlrev_b32 v1, 7, v1")
        p(f"v_cmp_gt_u32 vcc, L_end-L_pc, v1\ns_and_saveexec_b64 {s(sT+4,2)}, vcc")
        p(f"global_load_dword v222, v1, {s(sT+2,2)}\ns_mov_b64 exec, -1\nL_nopf:")
    x, j = sT, sT + 1
    p(f"s_and_b32 {s(x)}, s2, 7\ns_lshr_b32 {s(j)}, s2, 3")
    if cfg.xperm:
        p(f"s_lshl_b32 {s(x)}, {s(x)}, 2\ns_lshr_b32 {s(x)}, {hex(cfg.xtab)}, {s(x)}\ns_and_b32 {s(x)}, {s(x)}, 7")
    a, b = sT + 2, sT + 3
    p(f"s_and_b32 {s(a)}, {s(x)}, 1\ns_lshl_b32 {s(a)}, {s(a)}, 3")
    p(f"s_lshr_b32 {s(b)}, {s(x)}, 1\ns_lshl_b32 {s(b)}, {s(b)}, 2")
    p(f"s_and_b32 {s(sRB)}, {s(j)}, 7\ns_add_u32 {s(sRB)}, {s(sRB)}, {s(a)}")
    p(f"s_lshr_b32 {s(sHG)}, {s(j)}, 3\ns_xor_b32 {s(sHG)}, {s(sHG)}, {cfg.jx}\ns_add_u32 {s(sHG)}, {s(sHG)}, {s(b)}")
    p(f"s_and_b32 {s(sRB4)}, {s(j)}, 3\ns_add_u32 {s(sRB4)}, {s(sRB4)}, {s(b)}")
    p(f"s_lshr_b32 {s(sCB)}, {s(j)}, 2\ns_add_u32 {s(sCB)}, {s(sCB)}, {s(a)}")
    p(f"s_lshr_b32 {s(sCT)}, {s(j)}, 4\ns_xor_b32 {s(x)}, {s(x)}, {cfg.ctx}\ns_lshl_b32 {s(x)}, {s(x)}, 1\ns_add_u32 {s(sCT)}, {s(sCT)}, {s(x)}")
    p(f"s_and_b32 {s(sM)}, {s(j)}, 15")
    if cfg.probe:
        p("s_waitcnt lgkmcnt(0)")
        srd(p, rDBG, cfg.probe_ptr, 4 << 20)
        p(f"s_lshl_b32 {s(sT)}, s2, 8\nv_mov_b32 v2, {s(sT)}\ns_mov_b32 {s(sT)}, 0\nL_probe:")
        p(f"buffer_load_dword v3, v2, {s(rDBG,4)}, 0 offen {cfg.probe_pol}\nv_add_u32 v2, 65536, v2\ns_waitcnt vmcnt(0)")
        p(f"s_add_u32 {s(sT)}, {s(sT)}, 1\ns_cmp_lt_u32 {s(sT)}, {cfg.probe}\ns_cbranch_scc1 L_probe")
    p(f"s_cmp_ge_u32 {s(sWV)}, 4\ns_cbranch_scc1 L_B")
    return p

def dma(m0base, m0off, vaddr, srdr, soff, pol, tag, imm=0, sSO=89):
    L = [f"s_add_u32 m0, {s(m0base)}, {m0off}"]
    if isinstance(soff, int): L.append(f"s_mov_b32 {s(sSO)}, {soff}")
    else: L.append(f"s_add_u32 {s(sSO)}, {s(soff[0])}, {soff[1]}")
    L.append(Ins(f"buffer_load_dwordx4 {v(vaddr)}, {s(srdr,4)}, {s(sSO)} offen {f'offset:{imm} ' if imm else ''}{pol} lds", tag))
    return L
def unp(dst, src, hi):
    return f"v_and_b32 {v(dst)}, 0xffff0000, {v(src)}" if hi else f"v_lshlrev_b32 {v(dst)}, 16, {v(src)}"
def lines(t): return [x for x in t.split("\n") if x.strip()]
def mix(groups, fill):
    if not groups: return list(fill)
    out = []
    for g in spread(groups, fill):
        if isinstance(g, list): out += g
        else: out.append(g)
    return out

class RA:
    wa = sWV
    vH = 3; vX = 240; vW = 244
    t0, t1, t2, t3 = 5, 6, 7, 8
    vQ, vKS, vKH, vST, vOUT, vXI, vL16, vSR, vWO, vCNT, vONE, vEP = 9, 10, 11, 12, 13, 14, 15, 16, 17, 18, 19, 20
    vAB = 21
    vBB = 25
    vSRo, vSP, vSPo = 231, 232, 233
    vTA, vFG, vSW = 33, 34, 35
    sMW, sMX, sMH, sSO = 86, 87, 88, 89
    sCH, sGRP, sD, sH0, sHBW, sWOB, s4096 = 90, 91, 92, 93, 94, 95, 96
    sCX, sROT, sCW, sR4 = 97, 98, 99, 100
    sTB, sVAR = 0, 101
    sMW0, sMW1, sHF, sHF1, sCW1 = 60, 61, 62, 63, 16
    Kr, Vr, SHr, G = 40, 68, 84, 100
    Ku, Vu, Wu, Ac = 116, 123, 127, 131
    TG, FG = 136, 137
    vTH, vTC, TC = 228, 229, 230
    Qr = 212
    DF = 236
    HE, HN = 140, 156

def gen_A0(cfg, st):
    p = Prog(); R = RA; wa = R.wa; t0, t1, t2, t3 = R.t0, R.t1, R.t2, R.t3; vX, vH, vW = R.vX, R.vH, R.vW
    st(p, "A.real0", real=True); st(p, "A.start")
    p(f"v_lshrrev_b32 {v(t0)}, 3, v0\nv_and_b32 {v(t1)}, 7, v0\nv_lshrrev_b32 {v(t2)}, 4, v0")
    p(f"s_lshl_b32 {s(sT+1)}, {s(sRB)}, 7\ns_lshl_b32 {s(sT+2)}, {s(wa)}, 5\ns_add_u32 {s(sT+3)}, {s(sT+1)}, {s(sT+2)}")
    p(f"v_xor_b32 {v(t3)}, {v(t2)}, {v(t1)}\nv_lshlrev_b32 {v(t3)}, 4, {v(t3)}")
    p(f"v_add_u32 {v(vX)}, {s(sT+3)}, {v(t0)}\nv_lshl_add_u32 {v(vX)}, {v(vX)}, 11, {v(t3)}")
    p(f"v_xor_b32 {v(vX+1)}, 64, {v(vX)}\nv_add_u32 {v(vX+1)}, 15360, {v(vX+1)}\nv_add_u32 {v(vX+2)}, 30720, {v(vX)}\nv_add_u32 {v(vX+3)}, 30720, {v(vX+1)}")
    p(f"s_and_b32 {s(sT)}, {s(wa)}, 1\ns_lshl_b32 {s(sT)}, {s(sT)}, 2\ns_lshl_b32 {s(sT+2)}, {s(wa)}, 3")
    p(f"v_and_b32 {v(t3)}, 1, {v(t2)}\nv_lshl_or_b32 {v(t3)}, {v(t3)}, 1, {s(sT)}\nv_xor_b32 {v(t3)}, {v(t3)}, {v(t1)}\nv_lshlrev_b32 {v(t3)}, 4, {v(t3)}")
    p(f"v_add_u32 {v(vW)}, {s(sT+2)}, {v(t0)}\nv_mul_u32_u24 {v(vW)}, 6144, {v(vW)}\ns_lshl_b32 {s(sT+4)}, {s(sHG)}, 7\nv_add3_u32 {v(vW)}, {v(vW)}, {v(t3)}, {s(sT+4)}")
    p(f"v_add_u32 {v(vW+1)}, 1024, {v(vW)}\nv_add_u32 {v(vW+2)}, 2048, {v(vW)}")
    p(f"s_lshl_b32 {s(sT)}, {s(wa)}, 1\ns_lshl_b32 {s(sT+2)}, {s(wa)}, 2\ns_add_u32 {s(sT+1)}, {s(sT+1)}, {s(sT+2)}\ns_sub_u32 {s(sT+1)}, {s(sT+1)}, 16")
    p(f"v_add_u32 {v(t3)}, {s(sT)}, {v(t2)}\nv_xor_b32 {v(t3)}, {v(t3)}, {v(t1)}\nv_and_b32 {v(t3)}, 7, {v(t3)}\nv_lshlrev_b32 {v(t3)}, 4, {v(t3)}")
    p(f"v_add_u32 {v(vH)}, {s(sT+1)}, {v(t0)}\nv_lshl_add_u32 {v(vH)}, {v(vH)}, 11, {v(t3)}")
    p(f"s_lshl_b32 {s(R.sMW)}, {s(wa)}, 10\ns_lshl_b32 {s(R.sMX)}, {s(wa)}, 12\ns_add_u32 {s(R.sMX)}, {s(R.sMX)}, {XR+2048}\ns_lshl_b32 {s(R.sMH)}, {s(wa)}, 9\ns_add_u32 {s(R.sMH)}, {s(R.sMH)}, {XR}")
    if cfg.rot:
        mC, mR = {1: (12, 8), 2: (0, 8), 3: (12, 0), 4: (8, 8)}[cfg.rot]
        p(f"s_and_b32 {s(R.sROT)}, {s(sHG)}, {mC}\ns_and_b32 {s(sT)}, {s(sRB)}, {mR}\ns_add_u32 {s(R.sROT)}, {s(R.sROT)}, {s(sT)}")
    else: p(f"s_mov_b32 {s(R.sROT)}, 0")
    p(f"s_add_u32 {s(R.sVAR)}, {s(sRB)}, {s(sHG)}\ns_and_b32 {s(R.sVAR)}, {s(R.sVAR)}, 3")
    def order(rho):
        o = sorted(range(16), key=lambda c: c - (cfg.leadD if c % 4 == rho else 0))
        return sum(c << (4 * t) for t, c in enumerate(o))
    p(f"s_mov_b32 {s(sT+4)}, {hex(order(0) & 0xffffffff)}\ns_mov_b32 {s(sT+5)}, {hex(order(0) >> 32)}")
    for rho in range(1, 4):
        p(f"s_cmp_eq_u32 {s(R.sVAR)}, {rho}\ns_cselect_b32 {s(sT+4)}, {hex(order(rho) & 0xffffffff)}, {s(sT+4)}\ns_cselect_b32 {s(sT+5)}, {hex(order(rho) >> 32)}, {s(sT+5)}")
    p(f"s_bfe_u32 {s(R.sHF)}, {s(sRB)}, {hex((1 << 16) | 2) if cfg.half else 0}\ns_mul_i32 {s(sT)}, {s(R.sHF)}, 12288\ns_mul_i32 {s(sT+1)}, {s(wa)}, 3072")
    p(f"s_add_u32 {s(R.sMW0)}, {s(sT+1)}, {s(sT)}\ns_sub_u32 {s(R.sMW1)}, {s(sT+1)}, {s(sT)}\ns_mul_i32 {s(R.sHF)}, {s(R.sHF)}, {32*6144}\ns_sub_u32 {s(R.sHF1)}, {32*6144}, {s(R.sHF)}")
    p(f"s_mov_b32 {s(rX+2)}, {hex(4 << 20)}\ns_mov_b32 {s(rX+3)}, 0x20000\ns_mov_b32 {s(rW+2)}, {hex(6 << 20)}\ns_mov_b32 {s(rW+3)}, 0x20000")
    p(f"s_waitcnt lgkmcnt(0)\ns_mov_b64 {s(rX,2)}, {s(pX,2)}\ns_mov_b64 {s(rW,2)}, {s(pW,2)}\ns_mov_b64 {s(R.sTB,2)}, {s(sT+4,2)}")
    st.flush(p)
    return p

def unit_table(cfg, p, dst):
    def uorder(j):
        o = sorted(range(8), key=lambda u: u - (cfg.oD if u == j else 0))
        return sum(u << (4 * t) for t, u in enumerate(o))
    p(f"s_and_b32 {s(sT)}, {s(sCB)}, 7\ns_mov_b32 {s(dst)}, {hex(uorder(0))}")
    if cfg.oD:
        for j in range(1, 8): p(f"s_cmp_eq_u32 {s(sT)}, {j}\ns_cselect_b32 {s(dst)}, {hex(uorder(j))}, {s(dst)}")
    p(f"s_and_b32 {s(sT)}, {s(sRB4)}, 3\ns_mul_i32 {s(sT)}, {s(sT)}, 0x22222222\ns_add_u32 {s(dst)}, {s(dst)}, {s(sT)}")

def flag_loads():
    R = RA
    return ["s_mov_b64 exec, 0xff", Ins(f"buffer_load_dword {v(R.TG)}, {v(R.vTA)}, {s(rDBG,4)}, 0 offen sc1"),
            Ins(f"buffer_load_dword {v(R.FG)}, {v(R.vFG)}, {s(rWS,4)}, 0 offen sc1", "fg"), "s_mov_b64 exec, -1"]

def gen_A1(cfg, st, rho):
    p = Prog(); R = RA; wa = R.wa; t0, t1, t2, t3 = R.t0, R.t1, R.t2, R.t3
    def chunk(c):
        sl = c % 3; tag = f"ch{c}"
        pre = [f"s_add_u32 {s(R.sCX)}, {s(R.sROT)}, {s(R.sTB)}", f"s_lshr_b64 {s(R.sTB,2)}, {s(R.sTB,2)}, 4", f"s_and_b32 {s(R.sCX)}, {s(R.sCX)}, 15"]
        if cfg.sigma: pre += [f"s_lshr_b32 {s(R.sCW)}, {s(R.sCX)}, 3", f"s_xor_b32 {s(R.sCX)}, {s(R.sCX)}, {s(R.sCW)}"]
        pre += [f"s_add_u32 m0, {s(R.sMX)}, {sl*XS}", f"s_lshl_b32 {s(R.sCX)}, {s(R.sCX)}, 7"]
        ld = lambda va, r, so, imm, pol: Ins(f"buffer_load_dwordx4 {v(va)}, {s(r,4)}, {s(so)} offen offset:{imm} {pol} lds", tag)
        xs = [[ld(R.vX + n, rX, R.sCX, 1024 * n, cfg.pol_x)] for n in range(4)]
        hl = [f"s_add_u32 m0, {s(R.sMH)}, {sl*XS}", "s_mov_b64 exec, 0xffffffff", ld(R.vH, rX, R.sCX, 0, cfg.pol_x), "s_mov_b64 exec, -1"]
        w0 = [[ld(R.vW + q_, rW, R.sCW, 1024 * q_, cfg.pol_w)] for q_ in range(3)]
        w1 = [[ld(R.vW + q_, rW, R.sCW1, 1024 * q_, cfg.pol_w)] for q_ in range(3)]
        w0[0] = [f"s_mul_i32 {s(R.sCW1)}, {s(R.sCX)}, {64*6144//128}", f"s_add_u32 m0, {s(R.sMW0)}, {sl*24576}", f"s_add_u32 {s(R.sCW)}, {s(R.sCW1)}, {s(R.sHF)}"] + w0[0]
        w1[0] = [f"s_add_u32 m0, {s(R.sMW1)}, {sl*24576 + 12288}", f"s_add_u32 {s(R.sCW1)}, {s(R.sCW1)}, {s(R.sHF1)}"] + w1[0]
        return [pre + xs[0]] + xs[1:] + [hl] + w0 + w1

    def setup():
        q = Prog()
        srd(q, rK, pK, 4 << 20); srd(q, rV, pV, 4 << 20); srd(q, rSH, pSH, 8192); srd(q, rWS, pWS, 16 << 20)
        q(f"v_lshlrev_b32 {v(R.vL16)}, 4, v0")
        q(f"v_and_b32 {v(t2)}, 7, v0\ns_lshl_b32 {s(sT+1)}, {s(sCT)}, 7\nv_lshl_add_u32 {v(t2)}, {v(t2)}, 4, {s(sT+1)}")
        q(f"s_lshl_b32 {s(sT)}, {s(sM)}, 7\ns_lshl_b32 {s(sT+2)}, {s(wa)}, 3\ns_add_u32 {s(sT+2)}, {s(sT+2)}, {s(sT)}")
        q(f"v_lshrrev_b32 {v(t0)}, 3, v0\ns_and_b32 {s(sT+1)}, {s(wa)}, 1\nv_xor_b32 {v(t0)}, {s(sT+1)}, {v(t0)}\nv_add_u32 {v(t0)}, {s(sT+2)}, {v(t0)}\nv_lshl_add_u32 {v(R.vKS)}, {v(t0)}, 11, {v(t2)}")
        q(f"s_xor_b32 {s(sT+2)}, {s(wa)}, 1\ns_add_u32 {s(sT+2)}, {s(sT)}, {s(sT+2)}\ns_sub_u32 {s(sT+2)}, {s(sT+2)}, 4\ns_lshl_b32 {s(sT+2)}, {s(sT+2)}, 11\nv_add_u32 {v(R.vKH)}, {s(sT+2)}, {v(t2)}")
        q(f"v_bfe_u32 {v(t0)}, v0, 3, 2\nv_lshrrev_b32 {v(t1)}, 5, v0\ns_lshl_b32 {s(sT+2)}, {s(wa)}, 5")
        q(f"v_lshlrev_b32 {v(t3)}, 3, {v(t0)}\nv_lshl_add_u32 {v(t3)}, {v(t1)}, 2, {v(t3)}\nv_add_u32 {v(t3)}, {s(sT+2)}, {v(t3)}")
        q(f"v_and_b32 {v(R.vSW)}, 7, v0\nv_lshlrev_b32 {v(R.vSR)}, 4, {v(R.vSW)}\nv_lshl_add_u32 {v(R.vSR)}, {v(t3)}, 7, {v(R.vSR)}\nv_add_u32 {v(R.vSP)}, {KST}, {v(R.vSR)}")
        q(f"v_and_b32 {v(R.vSRo)}, 1, {v(t0)}\nv_lshl_add_u32 {v(R.vSR)}, {v(R.vSRo)}, 7, {v(R.vSP)}")
        q(f"v_xor_b32 {v(R.vSPo)}, {v(R.vSRo)}, {v(t1)}\nv_xor_b32 {v(R.vSPo)}, 1, {v(R.vSPo)}\nv_lshl_add_u32 {v(R.vSP)}, {v(R.vSPo)}, 7, {v(R.vSP)}")
        q(f"v_xor_b32 {v(R.vSRo)}, 128, {v(R.vSR)}\nv_xor_b32 {v(R.vSPo)}, 128, {v(R.vSP)}")
        q(f"v_lshrrev_b32 {v(R.vTA)}, 2, {v(R.vSW)}\nv_lshlrev_b32 {v(R.vSW)}, 6, {v(R.vSW)}\nv_lshl_add_u32 {v(R.vSW)}, {v(R.vTA)}, 4, {v(R.vSW)}\nv_add_u32 {v(R.vSW)}, {SHW}, {v(R.vSW)}")
        q(f"v_add_u32 {v(t3)}, {s(sT)}, {v(t3)}\nv_lshl_add_u32 {v(R.vQ)}, {v(t3)}, 11, {v(t2)}\nv_lshl_add_u32 {v(R.vOUT)}, {v(t3)}, 12, {v(t2)}")
        q(f"v_bfe_u32 {v(t3)}, v0, 2, 1\nv_lshlrev_b32 {v(t3)}, 1, {v(t3)}\nv_add_u32 {v(t3)}, {v(t3)}, {v(t1)}\nv_lshlrev_b32 {v(t3)}, 16, {v(t3)}")
        q(f"v_lshl_add_u32 {v(t3)}, {v(t0)}, 6, {v(t3)}\nv_and_b32 {v(t2)}, 3, v0\nv_lshl_add_u32 {v(t3)}, {v(t2)}, 4, {v(t3)}")
        q(f"s_add_u32 {s(sT)}, {s(sT)}, {s(sT+2)}\ns_lshl_b32 {s(sT)}, {s(sT)}, 3\ns_lshl_b32 {s(sT+1)}, {s(sCT)}, 18\ns_add_u32 {s(sT)}, {s(sT)}, {s(sT+1)}\nv_add_u32 {v(R.vST)}, {s(sT)}, {v(t3)}")
        srd(q, rH, pH, 4 << 20); srd(q, rQ, pQ, 4 << 20); srd(q, rWO, pWO, 2 << 20)
        q(f"s_lshl_b32 {s(R.sGRP)}, {s(sCT)}, 4\ns_add_u32 {s(R.sGRP)}, {s(R.sGRP)}, {s(sM)}")
        q(f"s_lshr_b32 {s(sT)}, {s(R.sGRP)}, 3\ns_lshl_b32 {s(sT)}, {s(sT)}, 5\ns_and_b32 {s(sT+1)}, {s(R.sGRP)}, 7\ns_add_u32 {s(sT)}, {s(sT)}, {s(sT+1)}")
        q(f"s_lshl_b32 {s(sT+1)}, {s(wa)}, 3\ns_add_u32 {s(R.sCH)}, {s(sT)}, {s(sT+1)}\ns_lshl_b32 {s(R.sGRP)}, {s(R.sGRP)}, 14\ns_mov_b32 {s(R.s4096)}, 4096")
        q(f"s_lshl_b32 {s(sT)}, {s(R.sCH)}, 12\nv_lshl_add_u32 {v(R.vTH)}, v0, 7, {s(sT)}")
        q(f"s_lshr_b32 {s(sT)}, s2, 3\ns_lshl_b32 {s(sT)}, {s(sT)}, 2\ns_add_u32 {s(sT)}, {s(sT)}, {s(wa)}\ns_lshl_b32 {s(sT)}, {s(sT)}, 14\ns_and_b32 {s(sT+1)}, {s(sCB)}, 8\ns_lshl_b32 {s(sT+1)}, {s(sT+1)}, 7\ns_add_u32 {s(sT)}, {s(sT)}, {s(sT+1)}")
        q(f"v_and_b32 {v(t0)}, 7, v0\nv_lshlrev_b32 {v(t0)}, 7, {v(t0)}\nv_lshrrev_b32 {v(t3)}, 3, v0\nv_lshl_add_u32 {v(t0)}, {v(t3)}, 11, {v(t0)}\nv_add_u32 {v(R.vTC)}, {s(sT)}, {v(t0)}")
        if cfg.skipbad: q.L.append([f"s_and_b32 {s(sT)}, {s(sHG)}, 7", f"s_cmp_eq_u32 {s(sT)}, 3", f"s_cselect_b32 {s(sT)}, 0x40000000, 0", f"v_or_b32 {v(R.vTC)}, {s(sT)}, {v(R.vTC)}"])
        return q.L
    def setup1():
        q = Prog()
        srd(q, rDBG, pDBG, 256)
        q(f"v_lshrrev_b32 {v(t1)}, 5, v0\nv_and_b32 {v(t2)}, 3, v0")
        q(f"s_lshr_b32 {s(sT)}, {s(R.sCH)}, 1\ns_lshl_b32 {s(sT)}, {s(sT)}, 2")
        q(f"s_load_dword {s(R.sD)}, {s(pD,2)}, {s(sT)}")
        q(f"s_mul_i32 {s(R.sHBW)}, {s(wa)}, {HS}\ns_add_u32 {s(R.sHBW)}, {s(R.sHBW)}, {HB}")
        q(f"v_bfe_u32 {v(t0)}, v0, 2, 2\nv_lshlrev_b32 {v(t0)}, 1, {v(t0)}\nv_lshl_add_u32 {v(t0)}, {v(t1)}, 3, {v(t0)}\nv_bfe_u32 {v(t3)}, v0, 4, 1\nv_add_u32 {v(t0)}, {v(t0)}, {v(t3)}")
        q(f"s_and_b32 {s(sT)}, {s(wa)}, 1\ns_lshl_b32 {s(sT)}, {s(sT)}, 1\nv_add_u32 {v(t3)}, {s(sT)}, {v(t1)}\nv_xor_b32 {v(t3)}, {v(t3)}, {v(t2)}\nv_lshlrev_b32 {v(t3)}, 4, {v(t3)}")
        q(f"v_lshl_add_u32 {v(t0)}, {v(t0)}, 6, {v(t3)}\nv_add_u32 {v(R.vXI)}, {s(R.sMW)}, {v(t0)}")
        q(f"v_mov_b32 {v(R.vCNT)}, {CNT}\nv_mov_b32 {v(R.vONE)}, 1")
        return q.L
    def setup2():
        L = []
        L += lines(f"""v_and_b32 {v(t0)}, 3, v0
s_lshl_b32 {s(sT)}, {s(sCT)}, 4
s_add_u32 {s(sT)}, {s(sT)}, {s(wa)}
v_lshl_add_u32 {v(t1)}, {v(t0)}, 2, {s(sT)}
s_lshr_b32 {s(sT)}, {s(sRB4)}, 3
s_lshl_b32 {s(sT+1)}, {s(wa)}, 1
s_add_u32 {s(sT)}, {s(sT)}, {s(sT+1)}
s_xor_b32 {s(sT)}, {s(sT)}, {cfg.ctx}
s_lshl_b32 {s(sT)}, {s(sT)}, 5
s_and_b32 {s(sT+1)}, {s(sRB4)}, 7
s_add_u32 {s(sT)}, {s(sT)}, {s(sT+1)}
v_lshl_add_u32 {v(t2)}, {v(t0)}, 3, {s(sT)}
v_and_b32 {v(t3)}, 4, v0
v_cmp_eq_u32 vcc, 0, {v(t3)}
v_cndmask_b32 {v(t1)}, {v(t2)}, {v(t1)}, vcc
v_and_b32 {v(R.vTA)}, 0xf0, {v(t1)}
v_lshlrev_b32 {v(R.vFG)}, 8, {v(t1)}
v_add_u32 {v(R.vFG)}, {F_KV}, {v(R.vFG)}
v_and_b32 {v(t0)}, 15, v0""")
        L += lines(f"v_lshrrev_b32 {v(t1)}, 4, v0\nv_add_u32 {v(t2)}, 9, {v(t0)}\nv_and_b32 {v(t3)}, 1, {v(t2)}\nv_mul_u32_u24 {v(t3)}, 4160, {v(t3)}")
        L += lines(f"v_lshrrev_b32 {v(t2)}, 1, {v(t2)}\nv_lshl_add_u32 {v(t3)}, {v(t2)}, 2, {v(t3)}\nv_lshlrev_b32 {v(t2)}, 4, {v(t1)}\nv_sub_u32 {v(t3)}, {v(t3)}, {v(t2)}")
        L += [f"s_add_u32 {s(sT)}, {s(R.sHBW)}, 32", f"v_add_u32 {v(R.vAB)}, {s(sT)}, {v(t3)}"]
        L += [f"v_add_u32 {v(R.vAB+k)}, {1024*k}, {v(R.vAB)}" for k in range(1, 4)]
        def ximg(dsts):
            u = R.TG
            M = lines(f"""v_and_b32 {v(t3)}, 1, {v(t2)}
v_bfe_u32 {v(u)}, {v(t2)}, 1, 2
v_lshl_add_u32 {v(u)}, {v(t3)}, 2, {v(u)}
v_lshlrev_b32 {v(u)}, 6, {v(u)}
v_lshrrev_b32 {v(t2)}, 3, {v(t2)}
v_lshl_add_u32 {v(u)}, {v(t2)}, 9, {v(u)}""")
            for k, dst in enumerate(dsts):
                if k: M.append(f"v_subrev_u32 {v(t2)}, 1, {v(t2)}")
                M += [f"v_bitop3_b32 {v(t3)}, {v(t2)}, 3, {s(wa)} bitop3:0x6a", f"v_lshl_add_u32 {v(dst)}, {v(t3)}, 4, {v(u)}", f"v_add_u32 {v(dst)}, {XIMG - 512*k}, {v(dst)}"]
            return M
        for n in range(2):
            L += [f"v_lshl_add_u32 {v(t2)}, {v(t0)}, 1, {v(t1)}", f"v_add_u32 {v(t2)}, {30-4*n}, {v(t2)}"] + ximg([R.vBB + n + 2 * k for k in range(4)])
        L += [f"v_lshrrev_b32 {v(t2)}, 1, {v(t1)}", f"v_lshl_add_u32 {v(t2)}, {v(t0)}, 1, {v(t2)}", f"v_add_u32 {v(t2)}, 32, {v(t2)}"] + ximg([R.vEP])
        L += [f"v_and_b32 {v(t3)}, 1, {v(t1)}", f"v_xor_b32 {v(t3)}, 1, {v(t3)}", f"v_lshl_add_u32 {v(R.vEP)}, {v(t3)}, 3, {v(R.vEP)}"]
        L += lines(f"""s_waitcnt lgkmcnt(0)
s_and_b32 {s(sT)}, {s(R.sD)}, 0xffff0000
s_lshl_b32 {s(R.sD)}, {s(R.sD)}, 16""")
        L.append([f"s_bitcmp1_b32 {s(R.sCH)}, 0", f"s_cselect_b32 {s(R.sD)}, {s(sT)}, {s(R.sD)}"])
        L += lines(f"""v_lshlrev_b32 {v(t2)}, 3, {v(t1)}
v_sub_u32 {v(t2)}, {v(t2)}, {v(t0)}
v_subrev_u32 {v(t2)}, 9, {v(t2)}
v_and_b32 {v(t3)}, 1, {v(t2)}
v_xor_b32 {v(t3)}, 1, {v(t3)}
v_lshlrev_b32 {v(t3)}, 4, {v(t3)}
v_lshrrev_b32 {v(t3)}, {v(t3)}, {s(R.sD)}
v_ashrrev_i32 {v(t2)}, 1, {v(t2)}""")
        for d in range(4): L += [f"v_cmp_eq_u32 vcc, {d}, {v(t2)}", f"v_cndmask_b32 {v(R.DF+d)}, 0, {v(t3)}, vcc"]
        return L
    Kr, Vr, SHr, G, Ku, Vu, Wu, Ac = R.Kr, R.Vr, R.SHr, R.G, R.Ku, R.Vu, R.Wu, R.Ac
    def stage():
        L = []
        for n in range(4):
            L.append(dma(R.sMW, KST + 512 + n * 4096, R.vKS, rK, n * 65536, cfg.nt_in, "stg"))
            L.append(dma(R.sMW, VST + n * 4096, R.vKS, rV, n * 65536, cfg.nt_in, "stg"))
        L.append(["s_mov_b64 exec, 0xff", f"s_lshl_b32 {s(sT+4)}, {s(wa)}, 7"] + dma(sT + 4, KST, R.vKH, rK, 0, cfg.nt_in, "stg") +
                 [f"s_lshl_b32 {s(sT+5)}, {s(sCT)}, 9", f"s_add_u32 {s(sT+5)}, {s(sT+5)}, {s(sT+4)}", f"s_and_b32 {s(R.sSO)}, {s(wa)}, 2", f"s_lshl_b32 {s(R.sSO)}, {s(R.sSO)}, 3", f"s_add_u32 {s(sT+4)}, {s(sT+4)}, {s(R.sSO)}"] +
                 dma(sT + 4, SHW, R.vL16, rSH, (sT + 5, 0), "", "stg") + ["s_mov_b64 exec, -1"])
        return L
    def p1_reads():
        L = [f"ds_read_b128 {v(SHr+4*i,4)}, {v(R.vSW)} offset:{16*i}" for i in range(4)]
        L += [f"ds_read_b128 {v(Kr+4*j,4)}, {v(R.vSPo if (j+1)&1 else R.vSP)} offset:{256*((j+1)>>1)}" for j in range(3)]
        L += [f"ds_read_b128 {v(Kr+12+4*j,4)}, {v(R.vSRo if j&1 else R.vSR)} offset:{512+256*(j>>1)}" for j in range(4)]
        L += [f"ds_read_b128 {v(Vr+4*j,4)}, {v(R.vSRo if j&1 else R.vSR)} offset:{VST-KST+256*(j>>1)}" for j in range(4)]
        return L
    def p1_chan(c):
        L = []; d, hi = c >> 1, c & 1
        for j in range(7): L.append(unp(Ku + j, Kr + 4 * j + d, hi))
        for t in range(4): L.append(unp(Wu + t, SHr + 2 * c + (t >> 1), t & 1))
        for j in range(4): L.append(unp(Vu + j, Vr + 4 * j + d, hi))
        for j in range(4): L.append(f"v_mul_f32 {v(Ac+j)}, {v(Ku+j)}, {v(Wu+3)}")
        for t in (2, 1, 0):
            for j in range(4): L.append(f"v_fmac_f32 {v(Ac+j)}, {v(Ku+j+3-t)}, {v(Wu+t)}")
        for j in range(4): L.append(f"v_mul_f32 {v(Ac+j)}, {v(Ac+j)}, {v(Vu+j)}")
        dst = G + 4 * (c & 3) + (2 if c < 4 else 0)
        L.append(f"v_cvt_pk_bf16_f32 {v(dst)}, {v(Ac+3)}, {v(Ac+2)}")
        L.append(f"v_cvt_pk_bf16_f32 {v(dst+1)}, {v(Ac+1)}, {v(Ac+0)}")
        return L
    def p1_store(c):
        return [f"v_permlane32_swap_b32 {v(G+4*c+2+d)}, {v(G+4*c+d)}" for d in range(2)] + \
               [[f"s_mov_b32 {s(R.sSO)}, {WS_KV + c*16384}", Ins(f"buffer_store_dwordx4 {v(G+4*c,4)}, {v(R.vST)}, {s(rWS,4)}, {s(R.sSO)} offen sc1", "kvst")]]
    def h_dma():
        return [[f"s_add_u32 m0, {s(R.sHBW)}, 32", f"s_lshl_b32 {s(R.sSO)}, {s(R.sCH)}, 12",
                 Ins(f"buffer_load_dwordx4 {v(R.vL16)}, {s(rH,4)}, {s(R.sSO)} offen offset:{1024*n} {cfg.nt_in} lds", "hld")] for n in range(4)]
    def h_copy():
        L = [f"v_add_u32 {v(t0)}, {s(R.sHBW)}, {v(R.vL16)}"]
        for n in range(4):
            L += [f"ds_read_b128 {v(R.HE+4*n,4)}, {v(t0)} offset:{32+1024*n}", f"ds_read_b32 {v(R.HN+n)}, {v(t0)} offset:{48+1024*n}"]
        L += lines(f"""v_lshrrev_b32 {v(t1)}, 3, v0
v_mul_u32_u24 {v(t1)}, 4160, {v(t1)}
v_and_b32 {v(t2)}, 7, v0
v_lshl_add_u32 {v(t1)}, {v(t2)}, 2, {v(t1)}
v_add_u32 {v(t1)}, {s(R.sHBW)}, {v(t1)}
v_mov_b32 {v(t2)}, 0""")
        L0 = L; L = ["s_waitcnt lgkmcnt(0)", f"v_readfirstlane_b32 {s(R.sH0)}, {v(R.HE)}"]
        L += [f"s_lshl_b32 {s(R.sH0)}, {s(R.sH0)}, 16", f"v_writelane_b32 {v(t2)}, {s(R.sH0)}, 15"]
        W = ["s_mov_b64 exec, 0xffff", f"ds_write_b32 {v(t1)}, {v(t2)}", "s_mov_b64 exec, -1"]
        for n in range(4):
            e = R.HE + 4 * n
            for i in range(4): L.append(f"v_alignbit_b32 {v(e+i)}, {v(e+i+1 if i < 3 else R.HN+n)}, {v(e+i)}, 16")
            W.append(f"ds_write_b128 {v(t0)}, {v(e,4)} offset:{4160+32+1024*n}")
        L += lines(f"v_lshlrev_b32 {v(t3)}, 3, v0\ns_add_u32 {s(sT)}, {s(R.sMH)}, {XS}\nv_add_u32 {v(t3)}, {s(sT)}, {v(t3)}\nv_mov_b32 {v(R.HN)}, 0\nv_mov_b32 {v(R.HN+1)}, 0")
        W.append(f"ds_write_b64 {v(t3)}, {v(R.HN,2)}")
        return L0, L, W

    def boosted(L): return ([f"s_setprio {cfg.boost}"] + L + ["s_setprio 0"]) if cfg.boost else L
    KL = int(cfg.KL.split(",")[rho]); HL = int(cfg.HL.split(",")[rho]); NI = cfg.NI
    new = {c: (chunk(c + 2) if 1 <= c <= 13 else []) for c in range(16)}
    fill = {c: [] for c in range(16)}; tail = {c: [] for c in range(16)}
    c0, c1 = chunk(0), chunk(1)
    p(mix(c0 + c1[:cfg.first0], []))
    p(setup())
    if not cfg.defer: p(setup1() + setup2())
    p(mix(c1[cfg.first0:cfg.first], []))
    st(p, "A.iss0")
    for r in range(1, 4): p(f"s_cmp_eq_u32 {s(R.sVAR)}, {r}\ns_cbranch_scc1 LA_c{r}")
    p(f"LA_c{rho}:")
    new[0] = c1[cfg.first:] + chunk(2)
    hc = h_copy()
    if not cfg.nop1:
        new[KL] = stage() + new[KL]
        comp = []
        for c in range(4): comp += p1_chan(c) + p1_chan(c + 4) + (p1_store(c)[:2] if cfg.stend else p1_store(c))
        if cfg.stend: new[KL + 3 + NI] = [p1_store(c)[2] for c in range(4)] + new[KL + 3 + NI]
        per = (len(comp) + NI - 1) // NI
        if cfg.rdend: tail[KL + 2] = boosted(p1_reads())
        else: fill[KL + 2] += p1_reads()
        for i in range(NI): fill[KL + 3 + i] += comp[i * per:(i + 1) * per]
        assert KL >= 1 and KL + 3 + NI + (1 if cfg.stend else 0) <= cfg.KF and KL + 3 <= HL
    qld = [[Ins(f"buffer_load_dwordx4 {v(R.Qr+4*j,4)}, {v(R.vQ)}, {s(rQ,4)}, {s(R.s4096) if j >= 2 else 0} offen offset:{2048*(j&1)} {cfg.nt_in}", "qld")] for j in range(4)]
    if cfg.hend: HL = 99; new[99] = []; fill[101] = []; fill[102] = []
    new[HL] = h_dma() + (qld if cfg.qpos == "h" else []) + new[HL]
    if cfg.qpos == "e":
        QL = int(cfg.QL.split(",")[rho])
        th = [["s_mov_b64 exec, 0xffffffff", Ins(f"buffer_load_dword {v(R.TC)}, {v(R.vTH)}, {s(rH,4)}, 0 offen"), "s_mov_b64 exec, -1"]] if cfg.htouch else []
        new[QL] = qld + th + new[QL]
    if cfg.touch:
        TL = int(cfg.TL.split(",")[rho])
        new[TL] = [[Ins(f"buffer_load_dword {v(R.TC)}, {v(R.vTC)}, {s(rWO,4)}, 0 offen {cfg.pol_wo}")]] + new[TL]
    fill[HL + 2] += hc[0]; fill[HL + (2 if cfg.hone else 3)] += hc[1]; p.hc = (hc[2], qld, hc[0] + hc[1])
    if cfg.defer:
        rest = setup1() + setup2()
        for c in range(1, min(HL, 13)):
            if not fill[c] and rest: fill[c] = rest[:cfg.defer]; rest = rest[cfg.defer:]
        assert not rest, len(rest)
    new[13] += [flag_loads()] + (new[99] if cfg.hend else [])
    back = []
    for c in range(15):
        p.wait_vm(f"ch{c}")
        if c == cfg.KF:
            assert not any(isinstance(y, Ins) and y.tag == "kvst" for g in back for y in g)
            p.wait_vm("kvst")
        if c == KL + 2: p.wait_vm("stg")
        if c == HL + 2: p.wait_vm("hld")
        if c == KL + 3: p("s_waitcnt lgkmcnt(0)")
        p("s_barrier")
        if not cfg.allbar and c in (0, 1, 4, 8, 12, 14): st(p, f"A.bar{c}")
        if c == 14: break
        must = len(back)
        back += new[c]
        cap = min(cfg.cap, must + len(new[c]) - 11 + cfg.capS) if len(new[c]) > 11 and c > 0 else cfg.cap
        k = len(back) if c == 13 else max(must, min(len(back), cap))
        f = fill[c]
        if cfg.gapv and len(f) > cfg.gapv * k: p(mix(back[:k], f[:cfg.gapv * k])); p(f[cfg.gapv * k:])
        else: p(mix(back[:k], f))
        back = back[k:]
        p(tail[c])
    assert not back and not fill[14]
    p.wait_vm("fg")
    if rho < 3: p("s_branch LA_j")
    return p

def gen_A2(cfg, st, hc):
    p = Prog(); slow = Prog(); R = RA; wa = R.wa; t0, t1, t2, t3 = R.t0, R.t1, R.t2, R.t3
    vCNT, vONE, sSO, G = R.vCNT, R.vONE, R.sSO, R.G
    p("LA_j:")
    chk = f"v_cmp_ne_u32 vcc, {v(R.TG)}, {v(R.FG)}\nv_cmp_gt_u32 {s(sT+2,2)}, {s(R.s4096)}, {v(R.TG)}\ns_nop 0\ns_or_b64 vcc, vcc, {s(sT+2,2)}"
    lds_arrive(p, vCNT, S6, vONE)
    p("s_mov_b64 exec, 0xff\n" + chk + "\ns_cbranch_vccnz LA_slow\nLA_back:\ns_mov_b64 exec, -1")
    slow(f"LA_slow:\ns_mov_b32 {s(sT+1)}, 0\nLA_slow1:\ns_mov_b64 exec, vcc\ns_sleep {cfg.sleep}")
    slow(f"buffer_load_dword {v(R.TG)}, {v(R.vTA)}, {s(rDBG,4)}, 0 offen sc1\nbuffer_load_dword {v(R.FG)}, {v(R.vFG)}, {s(rWS,4)}, 0 offen sc1")
    slow(f"s_add_u32 {s(sT+1)}, {s(sT+1)}, 1\ns_cmp_gt_u32 {s(sT+1)}, {cfg.spin}\ns_waitcnt vmcnt(0)\ns_cbranch_scc1 LA_back")
    slow(chk + "\ns_cbranch_vccnz LA_slow1\ns_branch LA_back")
    if cfg.p4st: st(p, "A.back")
    for nn in range(4): p(dma(R.sMW, XIMG + 2048 + nn * 4096, R.vXI, rWS, (R.sGRP, WS_KV + nn * 4096), "sc1", "xi"))
    if cfg.qpos == "x": p(hc[1])
    if cfg.hend: p.wait_vm("hld"); p(hc[2])
    p(hc[0])
    if cfg.p4st: st(p, "A.wr")
    ACC = 36; FA = [68, 132]; FB = [100, 164]
    def conv_reads(n, which="ab"):
        k = n & 1; L = []
        def ra(nu):
            o = 16 * n + 128 * (nu & 1)
            return [f"ds_read2_b32 {v(FA[k]+4*nu,2)}, {v(R.vAB+(nu>>1))} offset0:{o} offset1:{o+1}",
                    f"ds_read2_b32 {v(FA[k]+4*nu+2,2)}, {v(R.vAB+(nu>>1))} offset0:{o+2} offset1:{o+3}"]
        def rb(ka): return [f"ds_read_b128 {v(FB[k]+4*ka,4)}, {v(R.vBB+n)} offset:{2048*ka}"]
        if "a" in which: L += ra(0)
        if "b" in which:
            for i in range(8): L += rb(i)
        if "a" in which:
            for i in range(1, 8): L += ra(i)
        return L
    def conv_mfma(n):
        k = n & 1; L = []
        for nu in range(8):
            for ka in range(8 - nu):
                a = v(ACC + 4 * (nu + ka), 4)
                L.append(f"v_mfma_f32_16x16x32_bf16 {a}, {v(FA[k]+4*nu,4)}, {v(FB[k]+4*ka,4)}, {a}")
        if n == 0: L = [f"v_mfma_f32_16x16x32_bf16 {v(ACC+4*ka,4)}, {v(R.DF,4)}, {v(FB[0]+4*ka,4)}, 0" for ka in range(8)] + L
        return L
    p(conv_reads(0, "a"))
    p.wait_vm("xi")
    if cfg.p4st: st(p, "A.xi")
    lds_arrive(p, vCNT, S5, vONE)
    if cfg.qpos == "c": p(hc[1])
    lds_wait(p, "LA_s5", vCNT, S5, 4, t1)
    lds_arrive(p, vCNT, S2, vONE)
    p(conv_reads(0, "b"))
    st(p, "A.conv0")
    Qr = R.Qr
    extra = {n: [] for n in range(8)}
    if cfg.qpos.isdigit(): extra[int(cfg.qpos)] += [y[0] for y in hc[1]]
    qu = lambda j, c: (196 if j < 2 else 240 - 16) + 8 * j + c
    if cfg.diag: qu = lambda j, c: 2 if (j, c) == (3, 7) else (196 if j < 2 else 240 - 16) + 8 * j + c
    qun = [unp(qu(j, c), Qr + 4 * j + (c >> 1), c & 1) for j in range(4) for c in range(8)]
    if not cfg.pre:
        q = Prog(); unit_table(cfg, q, R.sCX)
        q(f"s_bfe_u32 {s(R.sCW)}, {s(R.sCX)}, {hex((3 << 16) | 28)}\ns_lshl_b32 {s(R.sCW)}, {s(R.sCW)}, 18\ns_bfe_u32 {s(R.sCX)}, {s(R.sCX)}, {hex((3 << 16) | 24)}\ns_lshl_b32 {s(R.sCX)}, {s(R.sCX)}, 18")
        extra[3] += q.L; q = Prog()
        q(f"v_lshrrev_b32 {v(t0)}, 4, v0\nv_lshlrev_b32 {v(t0)}, 1, {v(t0)}\nv_and_b32 {v(t3)}, 7, v0\nv_xor_b32 {v(t0)}, {v(t0)}, {v(t3)}\nv_lshlrev_b32 {v(t0)}, 4, {v(t0)}")
        q(f"v_lshrrev_b32 {v(t3)}, 3, v0\nv_lshl_add_u32 {v(t0)}, {v(t3)}, 11, {v(t0)}\ns_lshl_b32 {s(sT)}, {s(sCB)}, 7\ns_lshl_b32 {s(sT+1)}, {s(wa)}, 14\ns_add_u32 {s(sT)}, {s(sT)}, {s(sT+1)}\nv_add_u32 {v(R.vWO)}, {s(sT)}, {v(t0)}")
        extra[4] += q.L
    qn = 5 if not cfg.qpos.isdigit() else None
    if qn: extra[qn] += qun[:16]; extra[qn + 1] += qun[16:]
    YP = 68
    def fin(t):
        a = ACC + 4 * t; y = YP + 2 * t
        return [f"v_cvt_pk_bf16_f32 {v(y)}, {v(a+3)}, {v(a+2)}", f"v_cvt_pk_bf16_f32 {v(y+1)}, {v(a+1)}, {v(a+0)}", f"ds_write_b64 {v(R.vEP)}, {v(y,2)} offset:{2048*t}"]
    p(f"s_setprio {cfg.prioA2}")
    for n in range(8):
        M = conv_mfma(n); out = []
        if n < 7:
            rd = conv_reads(n + 1); ri = ei = 0; E = extra[n]; nr = len(M) - 4
            for i, m in enumerate(M):
                out.append(m)
                tgt = min(len(rd), ((i + 1) * len(rd) + nr - 1) // nr)
                while ri < tgt: out.append(rd[ri]); ri += 1
                tgt = ((i + 1) * len(E) + len(M) - 1) // len(M)
                while ei < tgt: out.append(E[ei]); ei += 1
        else:
            done = [sum(8 - k for k in range(t)) for t in range(8)]; nxt = 0; pend = []
            for i, m in enumerate(M):
                out.append(m)
                while nxt < 8 and i >= done[nxt] + 8: pend += fin(nxt); nxt += 1
                out += pend[:2]; pend = pend[2:]
            out += pend
            for t in range(nxt, 8): out += fin(t)
        p(out)
        if cfg.p4st and n < 7: st(p, f"A.c{n}")
    st(p, "A.convend")
    if cfg.notail:
        st(p, "A.end"); st(p, "A.real1", real=True); st.dump(p, t0, 0); p("s_endpgm")
        return p, slow
    lds_arrive(p, vCNT, S3, vONE)
    YR = 84
    p(f"s_add_u32 {s(sT+2)}, {s(R.sMW)}, {XIMG+2048}\nv_add_u32 {v(t0)}, {s(sT+2)}, {v(R.vL16)}")
    lds_wait(p, "LA_s3", vCNT, S3, 4, t1, extra=[f"ds_read_b128 {v(YR+4*nn,4)}, {v(t0)} offset:{4096*nn}" for nn in range(4)])
    for nn in range(4):
        p(f"s_add_u32 {s(sSO)}, {s(R.sGRP)}, {WS_Y + nn*4096}")
        if not cfg.noyst: p(f"buffer_store_dwordx4 {v(YR+4*nn,4)}, {v(R.vXI)}, {s(rWS,4)}, {s(sSO)} offen {cfg.pol_y}", "yst")
    st(p, "A.ystiss")
    if not cfg.pre:
        for stp in range(26, 32): p(dma(R.sMW, wo_loc(stp), R.vWO, rWO, ((R.sCX, R.sCW)[stp >= 28], (stp & 3) * 65536), cfg.pol_wo, "wo2"))
    p(f"s_setprio {cfg.prioA3}")
    srd(p, rOUT, pOUT, 8 << 20)
    p(f"s_lshr_b32 {s(sT+3)}, {s(R.sGRP)}, 4\ns_lshl_b32 {s(sT+4)}, {s(wa)}, 8\ns_add_u32 {s(sT+3)}, {s(sT+3)}, {s(sT+4)}\ns_add_u32 {s(sT+3)}, {s(sT+3)}, {F_Y}")
    p(f"s_lshl_b32 {s(sT+2)}, {s(sCT)}, 14\ns_and_b32 {s(sT+4)}, {s(sM)}, 3\ns_lshl_b32 {s(sT+4)}, {s(sT+4)}, 8\ns_add_u32 {s(sT+2)}, {s(sT+2)}, {s(sT+4)}\ns_add_u32 {s(sT+2)}, {s(sT+2)}, {F_Y}")
    if cfg.ally: p(f"v_mov_b32 {v(t0)}, 0\nv_lshlrev_b32 {v(t2)}, 10, v0")
    else: p(f"v_mov_b32 {v(t0)}, 0\nv_lshlrev_b32 {v(t2)}, 12, v0\nv_add_u32 {v(t2)}, {s(R.sMW)}, {v(t2)}")
    if not qn: p(qun)
    p.wait_vm("yst")
    p(f"s_mov_b64 exec, 1\nbuffer_store_dword {v(vONE)}, {v(t0)}, {s(rWS,4)}, {s(sT+3)} offen sc1\ns_mov_b64 exec, {'0xffff' if cfg.ally else '0xf'}")
    st(p, "A.yflag")
    if not cfg.pre:
        p.wait_vm("wo2"); lds_arrive(p, vCNT, S8, vONE); p(f"s_mov_b64 exec, {'0xffff' if cfg.ally else '0xf'}")
    p("s_waitcnt vmcnt(0)")
    if cfg.nopoll: lds_wait(p, "LA_s7a", vCNT, S7, 4, t1)
    p(f"s_setprio {cfg.prioA4}")
    gpoll(p, cfg, "LA_py", rWS, t2, s(sT + 2), 1, t1)
    if cfg.ally: p("s_mov_b64 exec, -1")
    else:
        lds_arrive(p, vCNT, S7, vONE)
        lds_wait(p, "LA_s7", vCNT, S7, 8 if cfg.ysig >= 0 else 4, t1)
    st(p, "A.ypoll")
    for c in range(4):
        p(f"s_mov_b32 {s(sSO)}, {WS_Y + c*16384}")
        p(f"buffer_load_dwordx4 {v(G+4*c,4)}, {v(R.vST)}, {s(rWS,4)}, {s(sSO)} offen sc1")
    p([f"v_permlane32_swap_b32 {v(G+4*c+2+d)}, {v(G+4*c+d)}" for c in range(4) for d in range(2)])
    OR = 36; T = 68
    for j in range(4):
        for c in range(8):
            src = G + 4 * (c & 3) + (2 if c < 4 else 0) + (0 if j >= 2 else 1)
            p(unp(T + c, src, 1 - (j & 1)))
        for c in range(8): p(f"v_mul_f32 {v(T+c)}, {v(T+c)}, {v(qu(j, c))}")
        for d in range(4): p(f"v_cvt_pk_bf16_f32 {v(OR+4*j+d)}, {v(T+2*d)}, {v(T+2*d+1)}")
        p(f"s_mov_b32 {s(sSO)}, {4096*j}")
        p(f"buffer_store_dwordx4 {v(OR+4*j,4)}, {v(R.vOUT)}, {s(rOUT,4)}, {s(sSO)} offen {cfg.pol_out}")
    st(p, "A.outiss")
    if cfg.diag:
        p("s_waitcnt vmcnt(0)"); st(p, "A.end"); st(p, "A.real1", real=True); st.dump(p, t0, 0)
    p("s_endpgm")
    return p, slow

def gen_B(cfg, st):
    p = Prog(); slow = Prog()
    wb = sWV
    p("L_B:")
    p(f"s_setprio {cfg.prioB}\ns_and_b32 {s(wb)}, {s(wb)}, 3")
    st(p, "B.real0", real=True); st(p, "B.start")
    sTH, sHH = 86, 87
    mPar, mLe0, mLe1 = 88, 90, 92
    sOB, sSO, sFK = 94, 95, 96
    vXh, vXo, vWq, vWv = 2, 4, 6, 8
    vCNT, vONE, vL16 = 10, 11, 12
    t0, t1, t2 = 13, 14, 15
    ACC = 16
    accQ = lambda t, u: ACC + 8 * t + 4 * u
    accK = lambda t, u: ACC + 32 + 8 * t + 4 * u
    accV = lambda t, u: ACC + 64 + 8 * t + 4 * u
    accHK, accHV = ACC + 96, ACC + 100
    FS = [120, 164]
    fx = lambda k, t: FS[k] + 4 * t
    fw = lambda k, part, u: FS[k] + 20 + 8 * part + 4 * u
    SEL, NEG, vEh, vE3, vEr, vZ, vFA = 208, 212, 216, 217, 218, 220, 221
    t3, t4 = 222, 223
    p(f"s_lshr_b32 {s(sTH)}, {s(wb)}, 1\ns_and_b32 {s(sHH)}, {s(wb)}, 1")
    p(f"v_mov_b32 {v(vCNT)}, {CNT}\nv_mov_b32 {v(vONE)}, 1\nv_lshlrev_b32 {v(vL16)}, 4, v0")
    p(f"v_lshl_add_u32 {v(t0)}, v0, 2, {v(vCNT)}\nv_mov_b32 {v(t1)}, 0\nds_write_b32 {v(t0)}, {v(t1)}")
    sFO = 97
    p(f"s_lshl_b32 {s(sT)}, {s(sCT)}, 4\ns_add_u32 {s(sT)}, {s(sT)}, {s(sM)}\ns_lshl_b32 {s(sFK)}, {s(sT)}, 8\ns_add_u32 {s(sFK)}, {s(sFK)}, {F_KV}")
    p(f"s_lshl_b32 {s(sT)}, {s(sT)}, 2\ns_add_u32 {s(sT)}, {s(sT)}, {s(wb)}\ns_lshl_b32 {s(sT)}, {s(sT)}, 8\ns_add_u32 {s(sT+2)}, {s(sT)}, {F_Y}")
    p(f"s_lshl_b32 {s(sT+3)}, {s(sRB)}, 1\ns_add_u32 {s(sT+3)}, {s(sT+3)}, {s(sTH)}")
    p(f"s_lshl_b32 {s(sFO)}, {s(sT+3)}, 4\ns_add_u32 {s(sFO)}, {s(sFO)}, {s(sHG)}\ns_lshl_b32 {s(sFO)}, {s(sFO)}, 8\ns_add_u32 {s(sFO)}, {s(sFO)}, {F_O-128}")
    p(f"v_mov_b32 {v(t2)}, {s(sT+2)}\nv_mov_b32 {v(t4)}, {s(sFO)}\nv_cmp_gt_u32 vcc, 8, v0\nv_cndmask_b32 {v(t2)}, {v(t4)}, {v(t2)}, vcc\nv_add_u32 {v(vFA)}, {v(t2)}, {v(vL16)}")
    p(f"s_lshl_b32 {s(sT)}, {s(sHH)}, 2\ns_add_u32 {s(sT)}, {s(sT)}, 128\ns_add_u32 {s(sFO)}, {s(sFO)}, {s(sT)}")
    p(f"s_lshl_b32 {s(sT+4)}, {s(sHG)}, 1\ns_add_u32 {s(sT+4)}, {s(sT+4)}, {s(sHH)}")
    p(f"s_lshl_b32 {s(sT)}, {s(sT+3)}, 7\ns_add_u32 {s(sT)}, {s(sT)}, {s(sT+4)}\ns_lshl_b32 {s(sOB)}, {s(sT)}, 10\ns_add_u32 {s(sOB)}, {s(sOB)}, {WS_O}")
    for r in range(4): p(f"v_mov_b32 {v(NEG+r)}, 0")
    p(f"v_mov_b32 {v(vZ)}, 0")
    p("s_waitcnt lgkmcnt(0)")
    st.flush(p)
    srd(p, rWS, pWS, 16 << 20); srd(p, rDBG, pDBG, 256)
    sTA = 98
    p(f"s_lshl_b32 {s(sTA)}, {s(sCT)}, 4\ns_or_b32 {s(sT)}, {s(sM)}, {s(wb)}\ns_cmp_lg_u32 {s(sT)}, 0\ns_cbranch_scc1 LB_notag")
    p(f"s_mov_b64 exec, 0xffff\nv_lshlrev_b32 {v(t2)}, 8, v0\nbuffer_load_dword {v(t4)}, {v(t2)}, {s(rWS,4)}, {s(sFK)} offen sc1\ns_waitcnt vmcnt(0)")
    p(f"v_lshrrev_b32 {v(t4)}, v0, {v(t4)}\nv_and_b32 {v(t4)}, 1, {v(t4)}\nv_cmp_eq_u32 vcc, 0, {v(t4)}\ns_nop 1\ns_or_b32 {s(sT)}, vcc_lo, 0x10000")
    p(f"s_mov_b64 exec, 1\nv_mov_b32 {v(t4)}, {s(sT)}\nbuffer_store_dword {v(t4)}, {v(vZ)}, {s(rDBG,4)}, {s(sTA)} offen sc1\nLB_notag:")
    p(f"s_lshl_b32 {s(sT)}, {s(sHH)}, 3\ns_lshr_b32 exec_lo, 0xffff, {s(sT)}\ns_mov_b32 exec_hi, 0")
    p(f"buffer_store_dwordx4 {v(NEG,4)}, {v(vFA)}, {s(rWS,4)}, 0 offen sc1\ns_mov_b64 exec, -1")
    c_, g_ = t0, t1
    p(f"v_and_b32 {v(c_)}, 15, v0\nv_lshrrev_b32 {v(g_)}, 4, v0")
    p(f"v_lshrrev_b32 {v(t2)}, 1, {v(c_)}\nv_xor_b32 {v(t2)}, {v(t2)}, {v(g_)}\nv_lshlrev_b32 {v(t2)}, 4, {v(t2)}\nv_lshl_add_u32 {v(t2)}, {v(c_)}, 7, {v(t2)}")
    p(f"v_add_u32 {v(vXh)}, {XR}, {v(t2)}\nv_xor_b32 {v(vXh+1)}, 64, {v(vXh)}")
    p(f"s_lshl_b32 {s(sT)}, {s(sTH)}, 13\ns_add_u32 {s(sT)}, {s(sT)}, 2048\nv_add_u32 {v(vXo)}, {s(sT)}, {v(vXh)}\nv_add_u32 {v(vXo+1)}, {s(sT)}, {v(vXh+1)}")
    p(f"v_bfe_u32 {v(t2)}, v0, 3, 2")
    p(f"s_lshl_b32 {s(sT)}, {s(sHH)}, 1\ns_add_u32 {s(sT)}, {s(sT)}, {s(sTH)}\nv_xor_b32 {v(t2)}, {s(sT)}, {v(t2)}\nv_lshlrev_b32 {v(t2)}, 5, {v(t2)}")
    p(f"v_and_b32 {v(t4)}, 3, v0\nv_lshl_add_u32 {v(t2)}, {v(t4)}, 3, {v(t2)}\nv_bfe_u32 {v(t4)}, v0, 2, 2\nv_lshl_add_u32 {v(t2)}, {v(t4)}, 7, {v(t2)}")
    p(f"v_mul_u32_u24 {v(t4)}, 3072, {v(g_)}\nv_add_u32 {v(vWq)}, {v(t4)}, {v(t2)}\nv_xor_b32 {v(vWq+1)}, 32, {v(vWq)}")
    pmain = p
    if cfg.bdefer: p = Prog()
    srd(p, rOUT, pOUT, 8 << 20)
    p(f"v_and_b32 {v(t2)}, 1, {v(c_)}\nv_cmp_eq_u32 {s(mPar,2)}, 1, {v(t2)}")
    p(f"v_lshl_add_u32 {v(t2)}, {v(g_)}, 2, {v(t2)}\nv_cmp_le_u32 {s(mLe0,2)}, {v(t2)}, {v(c_)}\nv_add_u32 {v(t2)}, 2, {v(t2)}\nv_cmp_le_u32 {s(mLe1,2)}, {v(t2)}, {v(c_)}")
    p(f"v_mov_b32 {v(NEG)}, 0x0c0c0c0c")
    for j, m in ((0, mLe0), (1, mLe1)):
        lo = 0x0c0c0000 | ((2*j+1) << 8) | (2*j); hi = ((2*j+1) << 24) | ((2*j) << 16) | 0x0c0c
        p(f"v_mov_b32 {v(t2)}, {hex(lo)}\nv_mov_b32 {v(t4)}, {hex(hi)}\nv_cndmask_b32 {v(t2)}, {v(t2)}, {v(t4)}, {s(mPar,2)}")
        p(f"v_cndmask_b32 {v(SEL+j)}, {v(t2)}, {v(NEG)}, {s(m,2)}\nv_cndmask_b32 {v(SEL+2+j)}, {v(NEG)}, {v(t2)}, {s(m,2)}")
    p(f"s_or_b32 {s(sT)}, {s(sRB)}, {s(sTH)}\ns_cmp_eq_u32 {s(sT)}, 0\ns_cselect_b32 {s(sT)}, {hex(f2u(-1e30))}, 0")
    for r in range(4): p(f"v_mov_b32 {v(NEG+r)}, {s(sT)}")
    p(f"s_lshl_b32 {s(sT)}, {s(sHH)}, 12\ns_add_u32 {s(sT)}, {s(sT)}, {EXCH}\ns_lshl_b32 {s(sT+1)}, {s(sTH)}, 9\ns_add_u32 {s(sT+1)}, {s(sT+1)}, {s(sT)}")
    p(f"v_lshlrev_b32 {v(t2)}, 3, v0\nv_add_u32 {v(vEh)}, {s(sT+1)}, {v(t2)}")
    p(f"s_lshl_b32 {s(sT+2)}, {s(sTH)}, 11\nv_add_u32 {v(vEr)}, {s(sT+2)}, {v(vEh)}\nv_xor_b32 {v(vEr+1)}, 512, {v(vEr)}")
    p(f"s_add_u32 {s(sT)}, {s(sT)}, 2048\ns_cmp_eq_u32 {s(sTH)}, 0\ns_cselect_b32 {s(sT)}, {s(sT)}, {EXCH+8192}\nv_add_u32 {v(vE3)}, {s(sT)}, {v(t2)}")

    vW0, vWO1, vOUT, vPF = 244, 245, 246, 247
    sO0, sO1, sPF, sR4 = 28, 29, 30, 32
    p(f"v_bfe_u32 {v(t1)}, v0, 3, 2\nv_lshlrev_b32 {v(t1)}, 5, {v(t1)}\nv_and_b32 {v(t2)}, 3, v0\nv_lshl_add_u32 {v(t1)}, {v(t2)}, 3, {v(t1)}")
    p(f"v_lshrrev_b32 {v(t2)}, 2, v0\nv_lshl_add_u32 {v(t1)}, {v(t2)}, 7, {v(t1)}\ns_lshl_b32 {s(sT)}, {s(sTH)}, 11\nv_add_u32 {v(vW0)}, {s(sT)}, {v(t1)}")
    srd(p, rWO, pWO, 2 << 20)
    p(f"v_lshrrev_b32 {v(t1)}, 4, v0\nv_lshlrev_b32 {v(t1)}, 1, {v(t1)}\nv_and_b32 {v(t2)}, 7, v0\nv_xor_b32 {v(t1)}, {v(t1)}, {v(t2)}\nv_lshlrev_b32 {v(t1)}, 4, {v(t1)}")
    p(f"v_lshrrev_b32 {v(t2)}, 3, v0\nv_lshl_add_u32 {v(t1)}, {v(t2)}, 11, {v(t1)}\ns_lshl_b32 {s(sT)}, {s(sCB)}, 7\ns_lshl_b32 {s(sT+1)}, {s(wb)}, 14\ns_add_u32 {s(sT)}, {s(sT)}, {s(sT+1)}\nv_add_u32 {v(vWO1)}, {s(sT)}, {v(t1)}")
    p(f"v_and_b32 {v(t1)}, 15, v0\ns_lshl_b32 {s(sT)}, {s(sRB4)}, 2\ns_add_u32 {s(sT)}, {s(sT)}, {s(wb)}\ns_lshl_b32 {s(sT+1)}, {s(sT)}, 5\nv_add_u32 {v(t1)}, {s(sT+1)}, {v(t1)}\nv_lshlrev_b32 {v(t1)}, 12, {v(t1)}")
    p(f"v_bfe_u32 {v(t2)}, v0, 4, 1\nv_lshl_add_u32 {v(t1)}, {v(t2)}, 5, {v(t1)}\nv_lshrrev_b32 {v(t2)}, 5, v0\nv_lshl_add_u32 {v(t1)}, {v(t2)}, 4, {v(t1)}")
    p(f"s_lshl_b32 {s(sT+1)}, {s(sCB)}, 7\ns_add_u32 {s(sT+1)}, {s(sT+1)}, 2048\nv_add_u32 {v(vOUT)}, {s(sT+1)}, {v(t1)}")
    p(f"s_lshl_b32 {s(sO0)}, {s(sT)}, 16\ns_add_u32 {s(sO0)}, {s(sO0)}, {WS_O}")
    p(f"s_lshl_b32 {s(sPF)}, {s(sRB4)}, 1\ns_add_u32 {s(sPF)}, {s(sPF)}, {s(sTH)}\ns_lshl_b32 {s(sPF)}, {s(sPF)}, 12\ns_add_u32 {s(sPF)}, {s(sPF)}, {F_O}")
    p(f"v_lshrrev_b32 {v(t2)}, 1, v0\nv_lshlrev_b32 {v(t2)}, 8, {v(t2)}\nv_and_b32 {v(t1)}, 1, v0\nv_lshl_add_u32 {v(vPF)}, {v(t1)}, 2, {v(t2)}")
    sUO, sUW, sW1, sW2 = 36, 44, 34, 35
    unit_table(cfg, p, sT + 1)
    for t in range(8):
        p(f"s_bfe_u32 {s(sT)}, {s(sT+1)}, {hex((3 << 16) | (4 * t))}\ns_lshl_b32 {s(sUW+t)}, {s(sT)}, 18\ns_lshl_b32 {s(sT)}, {s(sT)}, 12\ns_add_u32 {s(sUO+t)}, {s(sT)}, {s(sO0)}")
    p(f"s_lshl_b32 {s(sW1)}, {s(wb)}, 10")
    if cfg.ldsout:
        vOW, vOR = 248, 250
        p(f"v_bfe_u32 {v(t1)}, v0, 4, 1\nv_lshrrev_b32 {v(t2)}, 5, v0\nv_lshl_add_u32 {v(t1)}, {v(t1)}, 1, {v(t2)}\nv_and_b32 {v(t2)}, 7, v0\nv_xor_b32 {v(t1)}, {v(t1)}, {v(t2)}\nv_lshlrev_b32 {v(t1)}, 4, {v(t1)}")
        p(f"v_and_b32 {v(t4)}, 15, v0\nv_lshl_add_u32 {v(t1)}, {v(t4)}, 7, {v(t1)}\ns_lshl_b32 {s(sT)}, {s(wb)}, 12\nv_add_u32 {v(vOW)}, {s(sT)}, {v(t1)}\nv_xor_b32 {v(vOW+1)}, 64, {v(vOW)}\nv_add_u32 {v(vOR)}, {s(sT)}, {v(vL16)}")
        p(f"v_lshrrev_b32 {v(t1)}, 3, v0\nv_xor_b32 {v(t2)}, {v(t2)}, {v(t1)}\nv_lshlrev_b32 {v(t2)}, 4, {v(t2)}\nv_lshl_add_u32 {v(t1)}, {v(t1)}, 12, {v(t2)}")
        p(f"s_lshl_b32 {s(sT)}, {s(sRB4)}, 2\ns_add_u32 {s(sT)}, {s(sT)}, {s(wb)}\ns_lshl_b32 {s(sT)}, {s(sT)}, 17\ns_lshl_b32 {s(sT+1)}, {s(sCB)}, 7\ns_add_u32 {s(sT)}, {s(sT)}, {s(sT+1)}\ns_add_u32 {s(sT)}, {s(sT)}, 2048\nv_add_u32 {v(vOUT)}, {s(sT)}, {v(t1)}")
    late = p.L if cfg.bdefer else []
    p = pmain
    def step(M, rd):
        out = []; ri = 0
        for i, m in enumerate(M):
            out.append(m)
            if ri < len(rd): out.append(rd[ri]); ri += 1; n = 1
            else: n = 2 if i < len(M) - 1 else 0
            for _ in range(n):
                if late: out.append(late.pop(0))
        return out + rd[ri:]

    def reads(c, ks):
        k = ks; sl = c % 3; L = []
        X = [f"ds_read_b128 {v(fx(k,t),4)}, {v(vXo+ks)} offset:{sl*XS + 2048*t}" for t in range(4)]
        X.append(f"ds_read_b128 {v(fx(k,4),4)}, {v(vXh+ks)} offset:{sl*XS}")
        W = []
        for part in range(3):
            for u in range(2):
                for j in range(2):
                    base = vWq + u
                    off = sl * 24576 + ks * 12288 + part * 1024 + j * 512
                    W.append(f"ds_read_b64_tr_b16 {v(fw(k,part,u)+2*j,2)}, {v(base)} offset:{off}")
        return X + W
    def mfmas(k, first, last=False):
        def mm(a, A, B): return f"v_mfma_f32_16x16x32_bf16 {v(a,4)}, {v(A,4)}, {v(B,4)}, {'0' if first else v(a,4)}"
        H = [mm(accHK, fw(k,1,0), fx(k,4)), mm(accHV, fx(k,4), fw(k,2,0))]
        Q = lambda t: [mm(accQ(t,u), fw(k,0,u), fx(k,t)) for u in range(2)]
        K = lambda t: [mm(accK(t,u), fw(k,1,u), fx(k,t)) for u in range(2)]
        V = lambda t: [mm(accV(t,u), fx(k,t), fw(k,2,u)) for u in range(2)]
        if cfg.snake and not last:
            r = lambda L: L[::-1]
            return Q(0) + r(K(0)) + K(1) + r(Q(1)) + Q(2) + r(K(2)) + [H[0]] + K(3) + r(Q(3)) + V(3) + r(V(2)) + V(1) + r(V(0)) + [H[1]]
        return H + K(3) + V(3) + Q(3) + K(2) + Q(2) + K(1) + Q(1) + K(0) + Q(0) + V(2) + V(1) + V(0)

    p("s_waitcnt lgkmcnt(0)\ns_barrier")
    st(p, "B.bar0")
    p(reads(0, 0))
    vP = t3
    for c in range(16):
        p("s_waitcnt lgkmcnt(0)")
        extra = []
        if c == cfg.KF - 3: extra = [f"buffer_load_dword {v(vP)}, {v(vZ)}, {s(rDBG,4)}, {s(sTA)} offen sc1"]
        if c == 14: extra = ["s_nop 0"] * 4 + [f"ds_read_b32 {v(t4)}, {v(vCNT)} offset:{S6}"]
        p(step(mfmas(0, c == 0), reads(c, 1) + extra))
        if c == 0: p("s_waitcnt vmcnt(0)")
        p("s_waitcnt lgkmcnt(0)")
        if c < 14: p("s_barrier")
        elif c == 14:
            p(f"v_cmp_gt_u32 vcc, 4, {v(t4)}\ns_cbranch_vccnz LB_w15\nLB_g15:")
            slow("LB_w15:"); lds_wait(slow, "LB_s6", vCNT, S6, 4, t4); slow("s_branch LB_g15")
        if cfg.allbar or c in (0, 3, 7, 11, 15): st(p, f"B.bar{c+1}")
        if c + 1 == cfg.KF:
            p(f"s_cmp_lg_u32 {s(wb)}, 0\ns_cbranch_scc1 LB_sk\ns_waitcnt vmcnt(0)\nv_cmp_eq_u32 vcc, 0, {v(vP)}\ns_cbranch_vccnz LB_slow\nLB_back:")
            p(f"s_mov_b64 exec, 1\nbuffer_store_dword {v(vP)}, {v(vZ)}, {s(rWS,4)}, {s(sFK)} offen sc1\ns_mov_b64 exec, -1\nLB_sk:")
            slow("LB_slow:"); gpoll(slow, cfg, "LB_pt", rDBG, vZ, s(sTA), 4096, vP); slow("s_branch LB_back")
        if c < 15: p(step(mfmas(1, False), reads(c + 1, 0)))
    Qp = lambda t: 120 + 4 * t
    Kp = lambda t: 136 + 4 * (t + 1)
    Vp = lambda u, t: 224 + 10 * u + 2 * (t + 1)
    Hp = 156
    def pk(dst, a): return [f"v_cvt_pk_bf16_f32 {v(dst)}, {v(a)}, {v(a+1)}", f"v_cvt_pk_bf16_f32 {v(dst+1)}, {v(a+2)}, {v(a+3)}"]
    M = mfmas(1, False, True)
    fill = pk(Hp, accHK) + pk(Hp + 2, accHV)
    for u in range(2): fill += pk(Kp(3) + 2 * u, accK(3, u))
    for u in range(2): fill += pk(Vp(u, 3), accV(3, u))
    fill += [f"ds_write_b64 {v(vEh)}, {v(Hp,2)}", f"ds_write_b64 {v(vEh)}, {v(Hp+2,2)} offset:1024"]
    for u in range(2):
        fill += [f"ds_write_b64 {v(vE3)}, {v(Kp(3)+2*u,2)} offset:{512*u}", f"ds_write_b64 {v(vE3)}, {v(Vp(u,3),2)} offset:{1024+512*u}"]
    for t in (3,):
        for u in range(2): fill += pk(Qp(t) + 2 * u, accQ(t, u))
    for t in (2, 1):
        for u in range(2): fill += pk(Kp(t) + 2 * u, accK(t, u))
        for u in range(2): fill += pk(Qp(t) + 2 * u, accQ(t, u))
    p(weave(M, fill, per_gap=2, start=9))
    lds_arrive(p, vCNT, S1, vONE)
    if cfg.prioAt != cfg.prioB: p(f"s_setprio {cfg.prioAt}")
    st(p, "B.T0")
    for u in range(2): p(pk(Kp(0) + 2 * u, accK(0, u)))
    for u in range(2): p(pk(Qp(0) + 2 * u, accQ(0, u)))
    Sp = lambda t: ACC + 8 * t; Sc = lambda t: ACC + 8 * t + 4
    def smm(d, kt, qt, c="0"): return f"v_mfma_f32_16x16x32_bf16 {v(d,4)}, {v(Kp(kt),4)}, {v(Qp(qt),4)}, {c}"
    SM = [smm(Sc(3), 3, 3), smm(Sp(3), 2, 3), smm(Sc(2), 2, 2), smm(Sp(2), 1, 2), smm(Sc(1), 1, 1), smm(Sp(1), 0, 1), smm(Sc(0), 0, 0)]
    fill = []
    for t in (2, 1, 0):
        for u in range(2): fill += pk(Vp(u, t), accV(t, u))
    p(weave(SM, fill, per_gap=2))
    ex = [f"ds_read_b64 {v(Kp(-1)+2*u,2)}, {v(vEr+u)}" for u in range(2)] + [f"ds_read_b64 {v(Vp(u,-1),2)}, {v(vEr+u)} offset:1024" for u in range(2)]
    lds_wait(p, "LB_s1", vCNT, S1, 4, t1, extra=ex)
    p(smm(Sp(0), -1, 0, v(NEG, 4)))
    def wdma(stp, tag=None):
        return [f"s_add_u32 m0, {s(sW1)}, {wo_loc(stp)}", f"s_add_u32 {s(sW2)}, {s(sUW+(stp>>2))}, {(stp&3)*65536}",
                Ins(f"buffer_load_dwordx4 {v(vWO1)}, {s(rWO,4)}, {s(sW2)} offen {cfg.pol_wo} lds", tag)]
    pmain = p; p = Prog()
    Xv = lambda t, j: ACC + 32 + 2 * t + j
    Mx = lambda t: ACC + 40 + t
    Tm = ACC + 44
    for t in (3, 2, 1, 0):
        for j, m in ((0, mLe0), (1, mLe1)):
            p(f"v_cndmask_b32 {v(Tm)}, {v(Sc(t)+2*j)}, {v(Sc(t)+2*j+1)}, {s(mPar,2)}")
            p(f"v_cndmask_b32 {v(Tm+1)}, {v(Sp(t)+2*j)}, {v(Sp(t)+2*j+1)}, {s(mPar,2)}")
            p(f"v_cndmask_b32 {v(Xv(t,j))}, {v(Tm+1)}, {v(Tm)}, {s(m,2)}")
        p(f"v_max_f32 {v(Mx(t))}, {v(Xv(t,0))}, {v(Xv(t,1))}")
    def allred(op, mid):
        m0, m1, m2, m3 = (Mx(t) for t in range(4))
        p(f"v_permlane32_swap_b32 {v(m2)}, {v(m3)}\nv_permlane32_swap_b32 {v(m0)}, {v(m1)}")
        p(f"{op} {v(m2)}, {v(m2)}, {v(m3)}\n{op} {v(m0)}, {v(m0)}, {v(m1)}")
        p(f"v_permlane16_swap_b32 {v(m0)}, {v(m2)}\n{op} {v(m0)}, {v(m0)}, {v(m2)}")
        p(mid(m0))
        p(f"v_mov_b32 {v(m2)}, {v(m0)}\nv_permlane16_swap_b32 {v(m0)}, {v(m2)}")
        p(f"v_mov_b32 {v(m1)}, {v(m0)}\nv_mov_b32 {v(m3)}, {v(m2)}")
        p(f"v_permlane32_swap_b32 {v(m0)}, {v(m1)}\nv_permlane32_swap_b32 {v(m2)}, {v(m3)}")
    cs = (32 ** -0.5) * math.log2(math.e)
    p(f"s_mov_b32 {s(sT+2)}, {hex(f2u(cs))}")
    allred("v_max_f32", lambda m: f"v_mul_f32 {v(m)}, {s(sT+2)}, {v(m)}")
    for t in range(4):
        for j in range(2): p(f"v_fma_f32 {v(Xv(t,j))}, {v(Xv(t,j))}, {s(sT+2)}, -{v(Mx(t))}")
    for t in range(4):
        for j in range(2): p(f"v_exp_f32 {v(Xv(t,j))}, {v(Xv(t,j))}")
    for t in range(4): p(f"v_add_f32 {v(Mx(t))}, {v(Xv(t,0))}, {v(Xv(t,1))}")
    allred("v_add_f32", lambda m: f"v_rcp_f32 {v(m)}, {v(m)}")
    Pf = lambda t: ACC + 48 + 4 * t
    Oa = lambda t, u: ACC + 8 * t + 4 * u
    Of = lambda t: ACC + 64 + 4 * t
    for t in range(4):
        for j in range(2): p(f"v_mul_f32 {v(Xv(t,j))}, {v(Xv(t,j))}, {v(Mx(t))}")
        p(f"v_cvt_pk_bf16_f32 {v(Xv(t,0))}, {v(Xv(t,0))}, {v(Xv(t,1))}")
        for k in range(4): p(f"v_perm_b32 {v(Pf(t)+k)}, {v(Xv(t,0))}, {v(Xv(t,0))}, {v(SEL+k)}")
        if t > 0:
            for u in range(2): p(f"v_mfma_f32_16x16x32_bf16 {v(Oa(t-1,u),4)}, {v(Vp(u,t-2),4)}, {v(Pf(t-1),4)}, 0")
    for u in range(2): p(f"v_mfma_f32_16x16x32_bf16 {v(Oa(3,u),4)}, {v(Vp(u,2),4)}, {v(Pf(3),4)}, 0")
    body = p.L; p = pmain
    p(spread(body, [wdma(x, "wB" if x < NPRE else None) for x in range(cfg.nat)]))
    for t in range(4):
        for u in range(2): p(pk(Of(t) + 2 * u, Oa(t, u)))
        p(f"s_add_u32 {s(sSO)}, {s(sOB)}, {32768*t}")
        p(f"buffer_store_dwordx4 {v(Of(t),4)}, {v(vL16)}, {s(rWS,4)}, {s(sSO)} offen sc1", "ost")
    st(p, "B.ostiss")
    vWA, vWB = 2, 224
    A4 = 16; WF = 48; OF = WF + 16 * NPRE; NR = cfg.NR; assert OF + 8 * NR <= 220
    p([wdma(x, "wB") for x in range(cfg.nat, NPRE)])
    n0 = max(cfg.nat, NPRE); n1 = min(23, n0 + cfg.ndma)
    p(mix([wdma(x) for x in range(n0, n0 + 2)], [f"v_xor_b32 {v(vWA+4*j+u)}, {2048*j + 32*u}, {v(vW0)}" for j in range(2) for u in range(4)]))
    p.wait_vm("wB"); lds_arrive(p, vCNT, S2, vONE)
    p(mix([wdma(x) for x in range(n0 + 2, n1)], [f"v_add_u32 {v(vWB+i)}, 65536, {v(vWA+i)}" for i in range(8)] + [f"v_add_u32 {v(t2)}, 32768, {v(vL16)}"]))
    def wreads(stp):
        k = stp % NPRE; loc = wo_loc(stp); hi = loc >= 65536
        if loc >= HB:
            L = []
            for u in range(4):
                for j in range(2):
                    if stp == 26: L.append(f"v_add_u32 {v(vWA+4*j+u)}, {HB}, {v(vWA+4*j+u)}")
                    L.append(Ins(f"ds_read_b64_tr_b16 {v(WF+16*k+4*u+2*j,2)}, {v(vWA+4*j+u)} offset:{loc - HB}", f"w{stp}"))
            return L
        return [Ins(f"ds_read_b64_tr_b16 {v(WF+16*k+4*u+2*j,2)}, {v((vWB if hi else vWA)+4*j+u)} offset:{loc & 65535}", f"w{stp}") for u in range(4) for j in range(2)]
    pre = []
    for stp in range(NPRE): pre += wreads(stp)
    p.wait_vm("ost")
    p(f"s_mov_b64 exec, 1\nbuffer_store_dword {v(vONE)}, {v(vZ)}, {s(rWS,4)}, {s(sFO)} offen sc1\ns_mov_b64 exec, -1")
    st(p, "B.oflag")
    lds_wait(p, "LB_s2", vCNT, S2, 8, t1)
    if cfg.pre:
        p(mix([wdma(x) for x in range(n1, 32 - NPRE)], pre))
        p("s_waitcnt lgkmcnt(0)")
        lds_arrive(p, vCNT, S8, vONE)
        if cfg.epoll: p(f"s_mov_b64 exec, 0xffffffff\nbuffer_load_dword {v(t0)}, {v(vPF)}, {s(rWS,4)}, {s(sPF)} offen sc1\ns_mov_b64 exec, -1", "pl")
        lds_wait(p, "LB_s8", vCNT, S8, 4, t1)
        for stp in range(32 - NPRE, 32): p(wdma(stp, "wC"))
    else:
        p(mix([wdma(x, "wC") for x in range(n1, 32 - NPRE)], pre[:8 * cfg.WD]))
        if cfg.epoll: p(f"s_mov_b64 exec, 0xffffffff\nbuffer_load_dword {v(t0)}, {v(vPF)}, {s(rWS,4)}, {s(sPF)} offen sc1\ns_mov_b64 exec, -1", "pl")
    def oload(stp):
        L = []
        for tt in range(2):
            r = OF + 8 * (stp % NR) + 4 * tt
            L.append(Ins(f"buffer_load_dwordx4 {v(r,4)}, {v(t2 if tt else vL16)}, {s(rWS,4)}, {s(sUO+(stp>>2))} offen offset:{1024*(stp%4)} {cfg.pol_o}", f"o{stp}"))
        return L
    if cfg.epoll:
        p.wait_vm("pl")
        p(f"s_mov_b64 exec, 0xffffffff\nv_cmp_ne_u32 vcc, 1, {v(t0)}\ns_cbranch_vccnz LB_pw\nLB_pg:\ns_mov_b64 exec, -1")
        slow(f"LB_pw:\ns_mov_b64 exec, vcc"); gpoll(slow, cfg, "LB_po", rWS, vPF, s(sPF), 1, t1); slow("s_branch LB_pg")
    else:
        p("s_waitcnt vmcnt(0)\ns_mov_b64 exec, 0xffffffff")
        gpoll(p, cfg, "LB_po", rWS, vPF, s(sPF), 1, t1)
        p("s_mov_b64 exec, -1")
    st(p, "B.opoll")
    for stp in range(NR - 1): p(oload(stp))
    p(f"s_setprio {cfg.prioB2}")
    p.wait_vm("wC"); lds_arrive(p, vCNT, S4, vONE)
    lds_wait(p, "LB_s4", vCNT, S4, 4, t1)
    for stp in range(32):
        k = stp % NPRE
        if stp == 1: st(p, "B.p4s1")
        if cfg.p4st and stp % 4 == 0 and stp: st(p, f"B.s{stp}")
        p.wait_both(f"o{stp}", f"w{stp}")
        if stp == cfg.ysig: lds_arrive(p, vCNT, S7, vONE)
        fill = []
        if stp - 1 + NR < 32 and not cfg.noo: fill += oload(stp - 1 + NR)
        if not cfg.pre and stp + cfg.WD == 25: fill += [f"ds_read_b32 {v(t4)}, {v(vCNT)} offset:{S8}"]
        if not cfg.pre and stp + cfg.WD == 26:
            p(f"v_cmp_gt_u32 vcc, 4, {v(t4)}\ns_cbranch_vccnz LB_w8\nLB_g8:")
            slow("LB_w8:"); lds_wait(slow, "LB_s8", vCNT, S8, 4, t4); slow("s_branch LB_g8")
        if (NPRE if cfg.pre else cfg.WD) <= stp + cfg.WD < 32: fill += wreads(stp + cfg.WD)
        if cfg.ldsout and stp == 30: fill += [f"ds_read_b32 {v(t4)}, {v(vCNT)} offset:{S7}"]
        M = [f"v_mfma_f32_16x16x32_bf16 {v(A4+16*tt+4*u,4)}, {v(WF+16*k+4*u,4)}, {v(OF+8*(stp%NR)+4*tt,4)}, {'0' if stp == 0 else v(A4+16*tt+4*u,4)}" for tt in range(2) for u in range(4)]
        p(spread(M, fill))
    st(p, "B.p4end")
    PK = 96
    if cfg.ldsout:
        assert 16 < cfg.ysig < 30 and cfg.ally
        p(f"v_cmp_gt_u32 vcc, 4, {v(t4)}\ns_cbranch_vccnz LB_w7\nLB_g7:")
        slow("LB_w7:"); lds_wait(slow, "LB_s7", vCNT, S7, 4, t4); slow("s_branch LB_g7")
    for tt in range(2):
        for pr in range(2):
            d = PK + 8 * tt + 4 * pr
            p(pk(d, A4 + 16 * tt + 8 * pr) + pk(d + 2, A4 + 16 * tt + 8 * pr + 4))
            p(f"v_permlane16_swap_b32 {v(d)}, {v(d+2)}\nv_permlane16_swap_b32 {v(d+1)}, {v(d+3)}")
            if cfg.ldsout: p(f"ds_write_b128 {v(vOW+pr)}, {v(d,4)} offset:{2048*tt}")
            else:
                p(f"s_mov_b32 {s(sSO)}, {65536*tt}")
                p(f"buffer_store_dwordx4 {v(d,4)}, {v(vOUT)}, {s(rOUT,4)}, {s(sSO)} offen offset:{64*pr} {cfg.pol_out}")
        if cfg.ldsout:
            for n in (2 * tt, 2 * tt + 1): p(f"ds_read_b128 {v(PK+16+4*n,4)}, {v(vOR)} offset:{1024*n}")
    if cfg.ldsout:
        for n in range(4):
            p(f"s_mov_b32 {s(sSO)}, {32768*n}")
            p(f"buffer_store_dwordx4 {v(PK+16+4*n,4)}, {v(vOUT)}, {s(rOUT,4)}, {s(sSO)} offen {cfg.pol_out}")
    st(p, "B.outiss")
    if cfg.diag:
        p("s_waitcnt vmcnt(0)"); st(p, "B.end"); st(p, "B.real1", real=True); st.dump(p, t1, 1)
    p("s_endpgm")
    return p, slow

HEAD = open(__file__.rsplit("/", 1)[0] + "/head.txt").read() if "/" in __file__ else open("head.txt").read()

def generate(cfg, verbose=False):
    LSLEEP[0] = cfg.lsleep; PRE[0] = cfg.pre
    stA = Stamper(cfg, 255); stB = Stamper(cfg, 255)
    c = gen_common(cfg); a0 = gen_A0(cfg, stA)
    def fin(prefix, body, label):
        q = Prog(); q.L = prefix + body; q.finalize(verbose)
        i = 0 if label is None else next(k for k, y in enumerate(q.out) if y.text == label)
        return "\n".join(("" if y.kind == "label" else "    ") + y.text for y in q.out[i:])
    n0, names0 = stA.n, list(stA.names)
    parts = []
    for rho in range(4):
        stA.n, stA.names = n0, list(names0)
        a1 = gen_A1(cfg, stA, rho)
        parts.append(fin(c.L + a0.L, a1.L, None if rho == 0 else f"LA_c{rho}:"))
    a2, slowA = gen_A2(cfg, stA, a1.hc)
    parts.append(fin(c.L + a0.L + a1.L, a2.L, "LA_j:"))
    ta = "\n".join(parts)
    b, slow = gen_B(cfg, stB)
    tb = fin(c.L, b.L, "L_B:")
    ts = slowA.finalize() + "\n" + slow.finalize()
    txt = HEAD + f"; @launch grid=(256,1,1) block=(512,1,1) lds={LDS_BYTES}\n"
    txt += f""".amdgcn_target "amdgcn-amd-amdhsa--gfx950"
.text
.globl {NAME}_kernel
.p2align 8
.type {NAME}_kernel,@function
{NAME}_kernel:
{ta}
{tb}
{ts}
L_end:
    s_endpgm
.section .rodata,"a"
.p2align 6
.amdhsa_kernel {NAME}_kernel
  .amdhsa_next_free_vgpr 256
  .amdhsa_next_free_sgpr 102
  .amdhsa_accum_offset 256
  .amdhsa_group_segment_fixed_size 0
  .amdhsa_kernarg_size 96
  .amdhsa_user_sgpr_count 2
  .amdhsa_user_sgpr_kernarg_segment_ptr 1
  .amdhsa_system_sgpr_workgroup_id_x 1
.end_amdhsa_kernel
"""
    return txt, (stA.names, stB.names)

if __name__ == "__main__":
    cfg = Cfg(); out = None
    for arg in sys.argv[1:]:
        if "=" in arg:
            k, val = arg.split("=", 1)
            cur = getattr(cfg, k)
            setattr(cfg, k, (val not in ("0", "False")) if isinstance(cur, bool) else (int(val, 0) if isinstance(cur, int) else type(cur)(val.replace("+", " "))))
        else: out = arg
    txt, names = generate(cfg, True)
    if cfg.diag: txt = txt.replace(".amdgcn_target", f"; cfg {' '.join(a for a in sys.argv[1:] if '=' in a and a not in ('diag=1', 'mini=1'))}\n; stamps A {' '.join(names[0])}\n; stamps B {' '.join(names[1])}\n.amdgcn_target", 1)
    open(out or f"/code/{NAME}.s", "w").write(txt)
```

```python
import re

def v(n, c=1):
    return f"v{n}" if c == 1 else f"v[{n}:{n+c-1}]"
def s(n, c=1):
    return f"s{n}" if c == 1 else f"s[{n}:{n+c-1}]"

_REG = re.compile(r"^-?\|?(?:abs\()?([vsa])(?:(\d+)|\[(\d+):(\d+)\])\)?\|?$")
def regs_of(tok):
    tok = tok.strip()
    if tok in ("vcc", "exec", "m0", "scc"):
        return {tok}
    if tok in ("vcc_lo", "vcc_hi"): return {"vcc"}
    if tok in ("exec_lo", "exec_hi"): return {"exec"}
    m = _REG.match(tok)
    if not m: return set()
    k = m.group(1)
    if m.group(2) is not None: return {k + m.group(2)}
    return {k + str(i) for i in range(int(m.group(3)), int(m.group(4)) + 1)}

TRANS = ("v_exp_f32", "v_log_f32", "v_rcp_f32", "v_rsq_f32", "v_sqrt_f32", "v_sin_f32", "v_cos_f32")

class Ins:
    __slots__ = ("text", "op", "kind", "rd", "wr", "tag", "ops", "srcc", "srcab", "wide", "meta")
    def __init__(self, text, tag=None):
        self.text = text.strip(); self.tag = tag; self.meta = None
        t = self.text.split(";")[0].strip()
        self.rd = set(); self.wr = set(); self.srcc = set(); self.srcab = set(); self.wide = set()
        if t.endswith(":"):
            self.op = t; self.kind = "label"; self.ops = []; return
        parts = t.split(None, 1)
        op = self.op = parts[0]
        rest = parts[1] if len(parts) > 1 else ""
        ops = [x.strip() for x in rest.split(",")] if rest else []
        mods = []
        if ops:
            last = ops[-1].split()
            if last:
                ops[-1] = last[0]; mods = last[1:]
        self.ops = ops
        R = [regs_of(x) for x in ops]
        allr = lambda a: set().union(*R[a:]) if R[a:] else set()
        if op.startswith("v_mfma"):
            self.kind = "mfma"; self.wr = R[0]; self.rd = allr(1); self.srcc = R[3]; self.srcab = R[1] | R[2]
        elif op.startswith("ds_read") or op.startswith("ds_bpermute") or op.startswith("ds_swizzle") or "_rtn" in op:
            self.kind = "ds"; self.wr = R[0]; self.rd = allr(1)
        elif op.startswith("ds_"):
            self.kind = "ds"; self.rd = allr(0)
        elif op.startswith("buffer_load") or op.startswith("global_load"):
            self.kind = "vm"
            if "lds" in mods: self.rd = allr(0) | {"m0"}
            else: self.wr = R[0]; self.rd = allr(1)
        elif op.startswith("buffer_store") or op.startswith("global_store") or op.startswith("buffer_atomic"):
            self.kind = "vm"; self.rd = allr(0)
            if op.endswith("x4") or op.endswith("x3"):
                self.wide = R[0] if op.startswith("buffer") else R[1]
            if op.startswith("buffer_atomic") and "sc0" in mods: self.wr = R[0]
        elif op.startswith("s_load") or op.startswith("s_memtime") or op.startswith("s_memrealtime"):
            self.kind = "smem"; self.wr = R[0]; self.rd = allr(1)
        elif op == "s_waitcnt": self.kind = "wait"
        elif op == "s_barrier": self.kind = "barrier"
        elif op == "s_nop": self.kind = "nop"
        elif op.startswith("s_cbranch") or op == "s_branch" or op == "s_endpgm": self.kind = "branch"
        elif op in ("s_setprio", "s_sleep"): self.kind = "other"
        elif op.startswith("s_cmp") or op.startswith("s_bitcmp"):
            self.kind = "salu"; self.rd = allr(0); self.wr = {"scc"}
        elif op.startswith("s_"):
            self.kind = "salu"; self.wr = R[0] | {"scc"}; self.rd = allr(1)
            if "saveexec" in op: self.wr |= {"exec"}
        elif op.startswith("v_"):
            self.kind = "valu"
            self.wr = set(R[0]); self.rd = allr(1)
            if op.startswith("v_permlane") and "swap" in op:
                self.wr = R[0] | R[1]; self.rd = R[0] | R[1]
            if op.startswith("v_fmac") or op.startswith("v_dot2c") or "_dpp" in op or op.startswith("v_writelane"):
                self.rd |= R[0]
            if "_co_" in op: self.wr |= R[1]
        else:
            raise ValueError("unknown instruction: " + text)
    def is_trans(self):
        return any(self.op.startswith(x) for x in TRANS)
    def states(self):
        if self.kind == "nop": return int(self.ops[0], 0) + 1
        if self.kind == "label": return 0
        return 1

class Pseudo:
    def __init__(self, what, tag=None): self.what = what; self.tag = tag; self.kind = "pseudo"

class Prog:
    def __init__(self): self.L = []
    def __call__(self, text, tag=None):
        if isinstance(text, (Ins, Pseudo)): self.L.append(text); return
        if isinstance(text, (list, tuple)):
            for x in text: self(x, tag)
            return
        for line in text.split("\n"):
            if line.strip(): self.L.append(Ins(line, tag))
    def wait_vm(self, tag): self.L.append(Pseudo("wait_vm", tag))
    def wait_ds(self, tag): self.L.append(Pseudo("wait_ds", tag))
    def wait_both(self, vtag, dtag): self.L.append(Pseudo("wait_both", (vtag, dtag)))

    def finalize(self, verbose=False):
        out = []
        vmq = []; dsq = []; smem = []
        nwait = 0
        def emit_wait(vm=None, lg=None):
            nonlocal vmq, dsq, smem, nwait
            parts = []
            if vm is not None:
                vm = min(vm, 62); parts.append(f"vmcnt({vm})"); vmq = vmq[len(vmq) - vm:] if vm < len(vmq) else vmq
                if vm == 0: vmq = []
            if lg is not None:
                if smem: lg = 0
                lg = min(lg, 14); parts.append(f"lgkmcnt({lg})"); dsq = dsq[len(dsq) - lg:] if lg < len(dsq) else dsq
                if lg == 0: dsq = []; smem = []
            out.append(Ins("s_waitcnt " + " ".join(parts))); nwait += 1
        def last_idx(q, pred):
            for i in range(len(q) - 1, -1, -1):
                if pred(q[i]): return i
            return None
        for x in self.L:
            if x.kind == "pseudo" and x.what == "wait_both":
                i = last_idx(vmq, lambda y: x.tag[0] is not None and y.tag == x.tag[0]); k = last_idx(dsq, lambda y: x.tag[1] is not None and y.tag == x.tag[1])
                if i is not None or k is not None:
                    emit_wait(None if i is None else len(vmq) - 1 - i, None if k is None else len(dsq) - 1 - k)
                continue
            if x.kind == "pseudo":
                q = vmq if x.what == "wait_vm" else dsq
                i = last_idx(q, lambda y: y.tag == x.tag)
                if i is not None:
                    n = len(q) - 1 - i
                    emit_wait(vm=n) if x.what == "wait_vm" else emit_wait(lg=n)
                continue
            if x.kind == "wait":
                m = re.search(r"vmcnt\((\d+)\)", x.text)
                if m:
                    n = int(m.group(1)); vmq = vmq[len(vmq) - n:] if 0 < n < len(vmq) else ([] if n == 0 else vmq)
                m = re.search(r"lgkmcnt\((\d+)\)", x.text)
                if m:
                    n = int(m.group(1))
                    if n == 0: dsq = []; smem = []
                    elif not smem and n < len(dsq): dsq = dsq[len(dsq) - n:]
                out.append(x); continue
            touch = x.rd | x.wr
            vm = lg = None
            i = last_idx(vmq, lambda y: y.wr & touch)
            if i is not None and not (x.kind == "vm" and not (vmq[i].wr & x.rd)): vm = len(vmq) - 1 - i
            i = last_idx(dsq, lambda y: y.wr & touch)
            if i is not None and not (x.kind == "ds" and not (dsq[i].wr & x.rd)): lg = len(dsq) - 1 - i
            if any(y.wr & touch for y in smem): lg = 0
            if vm is not None or lg is not None: emit_wait(vm, lg)
            out.append(x)
            if x.kind == "vm": vmq.append(x)
            elif x.kind == "ds": dsq.append(x)
            elif x.kind == "smem": smem.append(x)
        res = []; nnop = 0
        def need(prev, cur):
            isv = lambda S: {r for r in S if r[0] in "va" and r != "vcc"}
            iss = lambda S: {r for r in S if (r[0] == "s" and r != "scc") or r == "vcc"}
            n = 0
            if prev.kind == "valu":
                w = isv(prev.wr)
                if cur.kind == "mfma" and w & cur.rd: n = max(n, 2)
                if cur.kind == "valu":
                    if (cur.op.startswith("v_permlane") or "_dpp" in cur.op) and w & cur.rd: n = max(n, 2)
                    if cur.op.startswith("v_readlane") or cur.op.startswith("v_readfirstlane"):
                        if w & cur.rd: n = max(n, 1)
                    if prev.is_trans() and w & cur.rd: n = max(n, 1)
                ws = iss(prev.wr)
                if ws & cur.rd:
                    if cur.kind == "valu": n = max(n, 4 if cur.op.startswith(("v_readlane", "v_writelane")) else 2)
                    if cur.kind == "vm": n = max(n, 5)
                    if cur.kind == "salu": n = max(n, 1)
            if prev.kind == "mfma":
                big = "32x32" in prev.op
                d = prev.wr
                if cur.kind == "mfma":
                    if d & cur.srcab: n = max(n, 12 if big else 8)
                    if d & cur.srcc and not (d == cur.srcc and prev.op == cur.op): n = max(n, 10 if big else 6)
                    if d & cur.wr and not (d & cur.srcc): n = max(n, 12 if big else 8)
                elif cur.kind in ("valu", "vm", "ds"):
                    if d & (cur.rd | cur.wr): n = max(n, 12 if big else 8)
                    if cur.kind == "valu" and prev.srcc & cur.wr: n = max(n, 7 if big else 3)
            if prev.kind == "salu" and "m0" in prev.wr and cur.kind == "vm" and "m0" in cur.rd: n = max(n, 1)
            if prev.kind == "vm" and prev.wide and (prev.wide & cur.wr): n = max(n, 2)
            return n
        for x in out:
            dist = 0; pad = 0
            for p in reversed(res):
                if dist >= 12: break
                pad = max(pad, need(p, x) - dist)
                dist += p.states()
            if pad > 0:
                res.append(Ins(f"s_nop {pad-1}")); nnop += 1
            res.append(x)
        if verbose: print(f"; {len(res)} instrs, {nwait} auto waits, {nnop} nops")
        self.out = res
        return "\n".join(("" if y.kind == "label" else "    ") + y.text for y in res)

def weave(main, fill, per_gap=2, start=0):
    out = []; f = 0
    for i, m in enumerate(main):
        out.append(m)
        if i >= start:
            for _ in range(per_gap):
                if f < len(fill): out.append(fill[f]); f += 1
    out.extend(fill[f:])
    return out

def spread(main, fill, start=0, end=None):
    end = len(main) if end is None else end
    n = end - start; out = []; f = 0
    for i, m in enumerate(main):
        out.append(m)
        if start <= i < end:
            tgt = ((i - start + 1) * len(fill) + n - 1) // n
            while f < tgt: out.append(fill[f]); f += 1
    out.extend(fill[f:])
    return out

class Item:
    def __init__(self, x, rd=(), wr=(), after=0):
        self.ins = [y if isinstance(y, Ins) else Ins(y) for y in (x if isinstance(x, (list, tuple)) else [x])]
        skip = {"exec", "scc"}
        self.rd = set().union(*[y.rd for y in self.ins]) - skip | set(rd)
        self.wr = set().union(*[y.wr for y in self.ins]) - skip | set(wr)
        self.m = len(self.ins) == 1 and self.ins[0].kind == "mfma"
        self.ds = any(y.kind == "ds" and y.wr for y in self.ins)
        self.after = after

def sched(ref, per_gap=2, ds_lat=150):
    it = [x if isinstance(x, Item) else Item(x) for x in ref]
    for i, x in enumerate(it):
        x.deps = [y for y in it[:i] if (y.wr & (x.rd | x.wr)) or (y.rd & x.wr)]
        x.pos = None
    M = [x for x in it if x.m]; F = [x for x in it if not x.m]
    out = []; n = 0; t = 0; nm = 0
    def ready(x, strict=True):
        for y in x.deps:
            if y.pos is None: return False
            if not strict: continue
            raw = y.wr & (x.rd | x.wr)
            if y.m and raw and not (x.m and x.ins[0].srcc == y.wr and not (x.ins[0].srcab & y.wr)) and n - y.pos < 8: return False
            if y.m and not x.m and (y.ins[0].srcc & x.wr) and n - y.pos < 3: return False
            if y.ds and raw and t - y.t < ds_lat: return False
            if x.m and not y.m and not y.ds and raw and n - y.pos < 2: return False
        return not strict or nm >= x.after
    def emit(x):
        nonlocal n
        out.extend(x.ins); n += sum(1 for y in x.ins if y.kind != "label"); x.pos = n; x.t = t
    while M or F:
        if M and ready(M[0]):
            emit(M.pop(0)); nm += 1; k = 0
            while F and k < per_gap and ready(F[0]):
                k += len(F[0].ins); emit(F.pop(0))
            if F and k < per_gap and ready(F[0], False) and any(y.m and n - y.pos < 8 for y in F[0].deps):
                out.append(Ins(f"s_nop {per_gap-k-1}")); n += per_gap - k
            t += max(16, 8 + 4 * k)
        elif F and ready(F[0]): t += 8 * len(F[0].ins); emit(F.pop(0))
        elif M and ready(M[0], False): emit(M.pop(0)); nm += 1; t += 16
        else:
            assert F and ready(F[0], False)
            t += 8 * len(F[0].ins); emit(F.pop(0))
    return out
```

```python
import sys, math, struct
from asmlib import *

NAME = "concat_heads__ssm_conv_h3__sliding_local_dilated__prompt"

class Cfg:
    diag = False
    nt_in = "nt"
    pol_x = ""
    pol_w = ""
    pol_wo = ""
    pol_out = "nt sc1"
    prioB = 3
    spin = 200000
    codepf = True
    first = 11
    leadD = 3.5
    rot = 1
    KL = "1,1,2,2"
    NI = 3
    KF = 9
    HL = "7,8,9,10"
    cap = 16
    NR = 6
    prioA2 = 2; prioA3 = 0; prioB2 = 1
    nop1 = False
    both = False; allbar = False
    TL = "1,4,0,0"; boost = 3; touch = True
    qpos = "t"; ysig = 15; WD = 2
    lsleep = 1; noyst = False; pol_y = "sc1"
    p4st = False; nopoll = True
    prioAt = 3; prioA4 = 2; npre = 5; ndma = 5; ally = True
    mini = False
    QL = "4,5,1,2"; nat = 6; cmap = 1; radd = 5; x2e = False; wfirst = False; gchain = True; first2 = 13; bpos = 6; natp = 0; cchain = True; oini = 10; olead = 16; pchain = True; abl = ""; p48 = True; ksplit = False; slim = False; dlate = True; tlate = True; fast = True; dly = ""; wreg = True; wrpos = "x"; help = True; ilv = True; wot = False; ordb = "104238567c9abdef,0152349678dabcef,1023456789aebcdf,0132456789abfcde"; rs = ""; s4e = True; osleep = 4; HC = 12; deep = 0; dsig = 5; leadG = 1.0; leadO = -1.5; showord = False; ord = "104238567c9abdef,0152349678dabcef,1026345a789ebcdf,01327456b89afcde"; pre = False; oD = 1.5; ldsout = True; xtab = 0x76543210; hend = False; xperm = True; jx = 3; htouch = False; epoll = False; hone = True; defer = 52; first0 = 1; bdefer = False; snake = True; gapv = 5; capS = 99; stend = False; tpos = "xi"; nA = 8; wpos = "b15"; skipbad = True
    half = True; sigma = False; ctx = 2; late = True; sleep = 8
    notail = False; pol_o = "sc1"; rotcb = 0; noo = False; hlate = False; rdend = False
    probe = 0; probe_ptr = 16; probe_pol = ""
    enc = ""; encwg = 37; early = False; encbase = 10000; dbgdump = ""

WR = 0; XR = 73728; XS = 18432; HB = 129024; HS = 8320; CNT = 162304
XIMG = XR + XS; EXCH = 24576; NPRE = 6; PRE = [True]
LDS_BYTES = 163840
S1, S2, S3, S4, S5, S6, S7, S8, S9, S10 = 0, 8, 12, 16, 20, 24, 28, 32, 36, 40
KST = HB; VST = HB + 16896; SHW = CNT + 512
def wo_loc(st):
    if st >= 32 - NPRE:
        st -= 32 - NPRE
        if not PRE[0]: return HB + 4096 * st
    if st < 13: return 36864 + 4096 * st
    if st < 19: return 4096 * (st - 13)
    if st < 23: return XR + 2 * XS + 4096 * (st - 19)
    return EXCH + 4096 * (st - 23)
WS_KV = 0; WS_Y = 4 << 20; WS_O = 8 << 20; WS_F = 12 << 20; WS_DBG = 13 << 20
F_KV = WS_F; F_Y = WS_F + 65536; F_O = WS_F + 65536 + 262144
pQ, pK, pV, pSH, pH, pD, pX, pW, pWO, pOUT, pDBG, pWS = 4, 6, 8, 10, 12, 14, 16, 18, 20, 22, 24, 26
rX, rW, rK, rV, rSH, rH, rWS, rQ, rOUT, rWO, rDBG = 28, 32, 36, 40, 44, 48, 52, 56, 60, 64, 68
sWV = 3; sRB, sHG, sCT, sM, sRB4, sCB = 72, 73, 74, 75, 76, 77
sT = 78
sSTAMP = 84

def srd(p, r, ptr, nbytes):
    p(f"s_mov_b32 {s(r)}, {s(ptr)}\ns_mov_b32 {s(r+1)}, {s(ptr+1)}\ns_mov_b32 {s(r+2)}, {hex(nbytes)}\ns_mov_b32 {s(r+3)}, 0x20000")

def f2u(x): return struct.unpack("<I", struct.pack("<f", x))[0]

class Stamper:
    def __init__(self, cfg, vreg): self.cfg = cfg; self.n = 0; self.vreg = vreg; self.names = []
    def __call__(self, p, name, real=False):
        if not self.cfg.diag: return
        if name in self.cfg.dly.split(","): p("s_sleep 24")
        if self.cfg.mini and name in self.cfg.rs.split(","): real = True
        elif self.cfg.mini and "real" not in name: return
        if self.cfg.mini and self.n == 0:
            self.names.append(name); self.n += 1; return
        if not (self.cfg.early and self.n == 0): p(f"{'s_memrealtime' if real else 's_memtime'} {s(sSTAMP,2)}")
        p(f"s_waitcnt lgkmcnt(0)\nv_writelane_b32 {v(self.vreg)}, {s(sSTAMP)}, {self.n}")
        if self.cfg.both: p(f"s_memrealtime {s(sSTAMP,2)}\ns_waitcnt lgkmcnt(0)\nv_writelane_b32 {v(self.vreg)}, {s(sSTAMP)}, {self.n+32}")
        self.names.append(name); self.n += 1
    def flush(self, p):
        if self.cfg.diag and self.cfg.mini: p(f"v_writelane_b32 {v(self.vreg)}, {s(sSTAMP)}, 0")
    def dump(self, p, vtmp, role):
        if not self.cfg.diag: return
        cfg = self.cfg; rn = "AB"[role]
        if cfg.dbgdump == rn or cfg.enc.startswith(rn) or (cfg.enc == "zero" and role == 0):
            p(f"s_cmp_lg_u32 s2, {cfg.encwg}\ns_cbranch_scc1 L_noenc{rn}\ns_cmp_lg_u32 {s(sWV)}, 0\ns_cbranch_scc1 L_noenc{rn}")
            if cfg.dbgdump == rn:
                srd(p, rDBG, pDBG, 256)
                p(f"v_readlane_b32 {s(sT)}, {v(self.vreg)}, 1\ns_nop 3\nv_subrev_u32 v1, {s(sT)}, {v(self.vreg)}\nv_lshlrev_b32 {v(vtmp)}, 2, v0\nv_subrev_u32 {v(vtmp)}, 4, {v(vtmp)}")
                p(f"s_mov_b64 exec, 0x1fffc\nbuffer_store_dword v1, {v(vtmp)}, {s(rDBG,4)}, 0 offen\ns_mov_b64 exec, -1")
            if cfg.enc.startswith(rn) or (cfg.enc == "zero" and role == 0):
                p(f"v_readlane_b32 {s(sT)}, {v(self.vreg)}, 0")
                if cfg.enc != "zero":
                    a, b = cfg.enc.split("-")
                    p(f"v_readlane_b32 {s(sT+1)}, {v(self.vreg)}, {self.names.index(a)}\nv_readlane_b32 {s(sT+2)}, {v(self.vreg)}, {self.names.index(b)}\ns_nop 3")
                    p(f"s_sub_u32 {s(sT+1)}, {s(sT+1)}, {s(sT+2)}")
                    if cfg.mini: p(f"s_lshl_b32 {s(sT+1)}, {s(sT+1)}, 3")
                    elif "real" not in a: p(f"s_mul_i32 {s(sT+1)}, {s(sT+1)}, 6554\ns_lshr_b32 {s(sT+1)}, {s(sT+1)}, 16")
                    p(f"s_add_u32 {s(sT)}, {s(sT)}, {s(sT+1)}")
                p(f"s_nop 3\ns_add_u32 {s(sT)}, {s(sT)}, {cfg.encbase}\nL_enc{rn}:\ns_memrealtime {s(sSTAMP,2)}\ns_waitcnt lgkmcnt(0)\ns_sub_u32 {s(sT+1)}, {s(sSTAMP)}, {s(sT)}\ns_cmp_lt_i32 {s(sT+1)}, 0\ns_cbranch_scc1 L_enc{rn}")
            p(f"L_noenc{rn}:")
        p(f"s_lshl_b32 {s(sT)}, s2, 3\ns_add_u32 {s(sT)}, {s(sT)}, {s(sWV)}\ns_add_u32 {s(sT)}, {s(sT)}, {4*role}\ns_lshl_b32 {s(sT)}, {s(sT)}, 8\ns_add_u32 {s(sT)}, {s(sT)}, {hex(WS_DBG)}")
        p(f"v_lshlrev_b32 {v(vtmp)}, 2, v0\nbuffer_store_dword {v(self.vreg)}, {v(vtmp)}, {s(rWS,4)}, {s(sT)} offen")

LSLEEP = [0]
def lds_wait(p, name, vcnt, off, target, vt, extra=None):
    if LSLEEP[0]: p(f"s_branch {name}_in\n{name}:\ns_sleep {LSLEEP[0]}\n{name}_in:")
    else: p(f"{name}:")
    p(f"ds_read_b32 {v(vt)}, {v(vcnt)} offset:{off}")
    if extra: p(extra)
    p(f"s_waitcnt lgkmcnt(0)\nv_readfirstlane_b32 {s(sT)}, {v(vt)}\ns_nop 0\ns_cmp_ge_u32 {s(sT)}, {target}\ns_cbranch_scc0 {name}")

def lds_arrive(p, vcnt, off, vone):
    p(f"s_mov_b64 exec, 1\nds_add_u32 {v(vcnt)}, {v(vone)} offset:{off}\ns_mov_b64 exec, -1")

def gpoll(p, cfg, name, srdr, vaddr, soff, want, vt, sleep=None):
    p(f"s_mov_b32 {s(sT+1)}, 0")
    p(f"{name}:")
    p(f"buffer_load_dword {v(vt)}, {v(vaddr)}, {s(srdr,4)}, {soff} offen sc1")
    p(f"s_add_u32 {s(sT+1)}, {s(sT+1)}, 1\ns_cmp_gt_u32 {s(sT+1)}, {cfg.spin}\ns_cbranch_scc1 {name}_x")
    p(f"s_waitcnt vmcnt(0)\nv_cmp_{'gt' if want > 1 else 'ne'}_u32 vcc, {want}, {v(vt)}\ns_cbranch_vccz {name}_x")
    p(f"s_mov_b64 exec, vcc\ns_sleep {cfg.sleep if sleep is None else sleep}\ns_branch {name}")
    p(f"{name}_x:\ns_waitcnt vmcnt(0)")

KREST = f"s_load_dwordx8 {s(pQ,8)}, s[0:1], 0\ns_load_dwordx4 {s(pH,4)}, s[0:1], 32\ns_load_dwordx8 {s(pWO,8)}, s[0:1], 64"
def gen_common(cfg):
    p = Prog()
    if cfg.early or (cfg.diag and cfg.mini): p(f"s_memrealtime {s(sSTAMP,2)}")
    p("s_cmp_ge_u32 s2, 256\ns_cbranch_scc1 L_end")
    p(f"s_load_dwordx2 {s(rX,2)}, s[0:1], 48\ns_load_dwordx2 {s(rW,2)}, s[0:1], 56")
    if not cfg.ksplit: p(KREST)
    p(f"v_lshrrev_b32 v1, 6, v0\nv_and_b32 v0, 63, v0\nv_readfirstlane_b32 {s(sWV)}, v1")
    if cfg.codepf:
        p(f"s_cmp_lg_u32 {s(sWV)}, 4\ns_cbranch_scc1 L_nopf\ns_getpc_b64 {s(sT+2,2)}\nL_pc:")
        p(f"s_bfe_u32 {s(sT)}, s2, 0x40003\nv_lshl_add_u32 v1, v0, 4, {s(sT)}\nv_lshlrev_b32 v1, 7, v1")
        p(f"v_cmp_gt_u32 vcc, L_end-L_pc, v1\ns_and_saveexec_b64 {s(sT+4,2)}, vcc")
        p(f"global_load_dword v222, v1, {s(sT+2,2)}\ns_mov_b64 exec, -1\nL_nopf:")
    x, j = sT, sT + 1
    p(f"s_and_b32 {s(x)}, s2, 7\ns_lshr_b32 {s(j)}, s2, 3")
    if cfg.xperm and cfg.xtab != 0x76543210:
        p(f"s_lshl_b32 {s(x)}, {s(x)}, 2\ns_lshr_b32 {s(x)}, {hex(cfg.xtab)}, {s(x)}\ns_and_b32 {s(x)}, {s(x)}, 7")
    a, b = sT + 2, sT + 3
    p(f"s_and_b32 {s(a)}, {s(x)}, 1\ns_lshl_b32 {s(a)}, {s(a)}, 3")
    p(f"s_lshr_b32 {s(b)}, {s(x)}, 1\ns_lshl_b32 {s(b)}, {s(b)}, 2")
    p(f"s_and_b32 {s(sRB)}, {s(j)}, 7\ns_add_u32 {s(sRB)}, {s(sRB)}, {s(a)}")
    p(f"s_lshr_b32 {s(sHG)}, {s(j)}, 3\ns_xor_b32 {s(sHG)}, {s(sHG)}, {cfg.jx}\ns_add_u32 {s(sHG)}, {s(sHG)}, {s(b)}")
    if cfg.probe:
        p("s_waitcnt lgkmcnt(0)")
        srd(p, rDBG, cfg.probe_ptr, 4 << 20)
        p(f"s_lshl_b32 {s(sT)}, s2, 8\nv_mov_b32 v2, {s(sT)}\ns_mov_b32 {s(sT)}, 0\nL_probe:")
        p(f"buffer_load_dword v3, v2, {s(rDBG,4)}, 0 offen {cfg.probe_pol}\nv_add_u32 v2, 65536, v2\ns_waitcnt vmcnt(0)")
        p(f"s_add_u32 {s(sT)}, {s(sT)}, 1\ns_cmp_lt_u32 {s(sT)}, {cfg.probe}\ns_cbranch_scc1 L_probe")
    p(f"s_cmp_ge_u32 {s(sWV)}, 4\ns_cbranch_scc1 L_B")
    return p

def ids2(cfg):
    j, a = sT, sT + 1
    if cfg.cmap:
        head = f"""s_add_u32 {s(a)}, {s(sRB)}, {s(sHG)}
s_add_u32 {s(j)}, {s(sRB)}, {cfg.radd}
s_and_b32 {s(j)}, {s(j)}, 7
s_lshl_b32 {s(j)}, {s(j)}, 1
s_and_b32 {s(sM)}, {s(a)}, 1
s_add_u32 {s(j)}, {s(j)}, {s(sM)}
s_andn2_b32 {s(a)}, 2, {s(a)}
s_lshl_b32 {s(a)}, {s(a)}, 3
s_add_u32 {s(j)}, {s(j)}, {s(a)}"""
    else: head = f"s_lshr_b32 {s(j)}, s2, 3"
    return lines(head + f"""
s_and_b32 {s(sRB4)}, {s(j)}, 3
s_and_b32 {s(a)}, {s(sHG)}, 12
s_add_u32 {s(sRB4)}, {s(sRB4)}, {s(a)}
s_lshr_b32 {s(sCT)}, {s(j)}, 4
s_add_u32 {s(sCT)}, {s(sCT)}, {s(a)}
s_and_b32 {s(a)}, {s(sRB)}, 8
s_lshr_b32 {s(sCB)}, {s(j)}, 2
s_add_u32 {s(sCB)}, {s(sCB)}, {s(a)}
s_lshr_b32 {s(a)}, {s(a)}, 2
s_add_u32 {s(sCT)}, {s(sCT)}, {s(a)}
s_xor_b32 {s(sCT)}, {s(sCT)}, {2*cfg.ctx}
s_and_b32 {s(sM)}, {s(j)}, 15""")

def dma(m0base, m0off, vaddr, srdr, soff, pol, tag, imm=0, sSO=89):
    L = [f"s_add_u32 m0, {s(m0base)}, {m0off}"]
    if isinstance(soff, int): L.append(f"s_mov_b32 {s(sSO)}, {soff}")
    else: L.append(f"s_add_u32 {s(sSO)}, {s(soff[0])}, {soff[1]}")
    L.append(Ins(f"buffer_load_dwordx4 {v(vaddr)}, {s(srdr,4)}, {s(sSO)} offen {f'offset:{imm} ' if imm else ''}{pol} lds", tag))
    return L
def unp(dst, src, hi):
    return f"v_and_b32 {v(dst)}, 0xffff0000, {v(src)}" if hi else f"v_lshlrev_b32 {v(dst)}, 16, {v(src)}"
def lines(t): return [x for x in t.split("\n") if x.strip()]
def mix(groups, fill):
    if not groups: return list(fill)
    out = []
    for g in spread(groups, fill):
        if isinstance(g, list): out += g
        else: out.append(g)
    return out

class RA:
    wa = sWV
    vH = 3; vX = 240; vW = 244
    t0, t1, t2, t3 = 5, 6, 7, 8
    vQ, vKS, vKH, vST, vOUT, vXI, vL16, vSR, vWO, vCNT, vONE, vEP = 9, 10, 11, 12, 13, 14, 15, 16, 17, 18, 19, 20
    vAB = 21
    vBB = 25
    vSRo, vSP, vSPo = 231, 232, 233
    vTA, vFG, vSW = 33, 34, 35
    sMW, sMX, sMH, sSO = 86, 87, 88, 89
    sCH, sGRP, sD, sH0, sHBW, sWOB, s4096 = 90, 91, 92, 93, 94, 95, 96
    sCX, sROT, sCW, sR4 = 97, 98, 99, 100
    rT = 4
    sU6, sU7 = 95, 100
    WR_ = [228, 232, 240, 244, 248, 196]
    sTB, sVAR = 0, 101
    sMW0, sMW1, sHF, sHF1, sCW1 = 60, 61, 62, 63, 16
    Kr, Vr, SHr, G = 40, 68, 84, 100
    Ku, Vu, Wu, Ac = 116, 123, 127, 131
    TG, FG = 136, 137
    vTH, vTC, TC = 228, 229, 230
    Qr = 212
    DF = 236
    HE, HN = 140, 156

def gen_A0(cfg, st):
    p = Prog(); R = RA; wa = R.wa; t0, t1, t2, t3 = R.t0, R.t1, R.t2, R.t3; vX, vH, vW = R.vX, R.vH, R.vW
    st(p, "A.real0", real=True); st(p, "A.start")
    p(f"v_lshrrev_b32 {v(t0)}, 3, v0\nv_and_b32 {v(t1)}, 7, v0\nv_lshrrev_b32 {v(t2)}, 4, v0")
    p(f"s_lshl_b32 {s(sT+1)}, {s(sRB)}, 7\ns_lshl_b32 {s(sT+2)}, {s(wa)}, 5\ns_add_u32 {s(sT+3)}, {s(sT+1)}, {s(sT+2)}")
    p(f"v_xor_b32 {v(t3)}, {v(t2)}, {v(t1)}\nv_lshlrev_b32 {v(t3)}, 4, {v(t3)}")
    p(f"v_add_u32 {v(vX)}, {s(sT+3)}, {v(t0)}\nv_lshl_add_u32 {v(vX)}, {v(vX)}, 11, {v(t3)}")
    p(f"v_xor_b32 {v(vX+1)}, 64, {v(vX)}\nv_add_u32 {v(vX+1)}, 15360, {v(vX+1)}\nv_add_u32 {v(vX+2)}, 30720, {v(vX)}\nv_add_u32 {v(vX+3)}, 30720, {v(vX+1)}")
    p(f"s_lshl_b32 {s(R.sMX)}, {s(wa)}, 12\ns_add_u32 {s(R.sMX)}, {s(R.sMX)}, {XR+2048}")
    if cfg.rot:
        mC, mR = {1: (12, 8), 2: (0, 8), 3: (12, 0), 4: (8, 8)}[cfg.rot]
        p(f"s_and_b32 {s(R.sROT)}, {s(sHG)}, {mC}\ns_and_b32 {s(sT)}, {s(sRB)}, {mR}\ns_add_u32 {s(R.sROT)}, {s(R.sROT)}, {s(sT)}")
    else: p(f"s_mov_b32 {s(R.sROT)}, 0")
    p(f"s_add_u32 {s(R.sVAR)}, {s(sRB)}, {s(sHG)}\ns_and_b32 {s(R.sVAR)}, {s(R.sVAR)}, 3")
    def order(rho):
        D = lambda c: min(cfg.leadD, cfg.leadG * c + cfg.leadO) if cfg.leadG else cfg.leadD
        o = sorted(range(16), key=lambda c: c - (D(c) if c % 4 == rho else 0))
        if cfg.ord: o = [int(ch, 16) for ch in cfg.ord.split(",")[rho]]; assert sorted(o) == list(range(16))
        if cfg.showord: print(rho, o)
        return sum(c << (4 * t) for t, c in enumerate(o))
    firsts = sum((order(r) & 15) << (4 * r) for r in range(4))
    p(f"s_lshl_b32 {s(sT)}, {s(R.sVAR)}, 2\ns_lshr_b32 {s(R.sCX)}, {hex(firsts)}, {s(sT)}\ns_add_u32 {s(R.sCX)}, {s(R.sCX)}, {s(R.sROT)}\ns_and_b32 {s(R.sCX)}, {s(R.sCX)}, 15")
    if cfg.sigma: p(f"s_lshr_b32 {s(R.sCW)}, {s(R.sCX)}, 3\ns_xor_b32 {s(R.sCX)}, {s(R.sCX)}, {s(R.sCW)}")
    p(f"s_mov_b32 m0, {s(R.sMX)}\ns_lshl_b32 {s(R.sCX)}, {s(R.sCX)}, 7\ns_mov_b32 {s(rX+2)}, {hex(4 << 20)}\ns_mov_b32 {s(rX+3)}, 0x20000")
    q = Prog()
    q(f"s_and_b32 {s(sT)}, {s(wa)}, 1\ns_lshl_b32 {s(sT)}, {s(sT)}, 2\ns_lshl_b32 {s(sT+2)}, {s(wa)}, 3")
    q(f"v_and_b32 {v(t3)}, 1, {v(t2)}\nv_lshl_or_b32 {v(t3)}, {v(t3)}, 1, {s(sT)}\nv_xor_b32 {v(t3)}, {v(t3)}, {v(t1)}\nv_lshlrev_b32 {v(t3)}, 4, {v(t3)}")
    q(f"v_add_u32 {v(vW)}, {s(sT+2)}, {v(t0)}\nv_mul_u32_u24 {v(vW)}, 6144, {v(vW)}\ns_lshl_b32 {s(sT+4)}, {s(sHG)}, 7\nv_add3_u32 {v(vW)}, {v(vW)}, {v(t3)}, {s(sT+4)}")
    q(f"v_add_u32 {v(vW+1)}, 1024, {v(vW)}\nv_add_u32 {v(vW+2)}, 2048, {v(vW)}")
    q(f"s_bfe_u32 {s(R.sHF)}, {s(sRB)}, {hex((1 << 16) | 2) if cfg.half else 0}\ns_mul_i32 {s(sT)}, {s(R.sHF)}, 12288\ns_mul_i32 {s(sT+2)}, {s(wa)}, 3072")
    q(f"s_add_u32 {s(R.sMW0)}, {s(sT+2)}, {s(sT)}\ns_sub_u32 {s(R.sMW1)}, {s(sT+2)}, {s(sT)}\ns_mul_i32 {s(R.sHF)}, {s(R.sHF)}, {32*6144}\ns_sub_u32 {s(R.sHF1)}, {32*6144}, {s(R.sHF)}")
    q(f"s_mov_b32 {s(rW+2)}, {hex(6 << 20)}\ns_mov_b32 {s(rW+3)}, 0x20000")
    fw = q.L; q = Prog()
    q(f"s_lshl_b32 {s(sT)}, {s(wa)}, 1\ns_lshl_b32 {s(sT+2)}, {s(wa)}, 2\ns_add_u32 {s(sT+1)}, {s(sT+1)}, {s(sT+2)}\ns_sub_u32 {s(sT+1)}, {s(sT+1)}, 16")
    q(f"v_add_u32 {v(t3)}, {s(sT)}, {v(t2)}\nv_xor_b32 {v(t3)}, {v(t3)}, {v(t1)}\nv_and_b32 {v(t3)}, 7, {v(t3)}\nv_lshlrev_b32 {v(t3)}, 4, {v(t3)}")
    q(f"v_add_u32 {v(vH)}, {s(sT+1)}, {v(t0)}\nv_lshl_add_u32 {v(vH)}, {v(vH)}, 11, {v(t3)}")
    q(f"s_lshl_b32 {s(R.sMW)}, {s(wa)}, 10\ns_lshl_b32 {s(R.sMH)}, {s(wa)}, 9\ns_add_u32 {s(R.sMH)}, {s(R.sMH)}, {XR}")
    fh = q.L; q = Prog()
    TB = R.sTB; lo = lambda x: hex((x >> 4) & 0xffffffff); hi = lambda x: hex(x >> 36)
    q(f"s_mov_b32 {s(TB)}, {lo(order(0))}\ns_mov_b32 {s(TB+1)}, {hi(order(0))}")
    for rho in range(1, 4):
        q(f"s_cmp_eq_u32 {s(R.sVAR)}, {rho}\ns_cselect_b32 {s(TB)}, {lo(order(rho))}, {s(TB)}\ns_cselect_b32 {s(TB+1)}, {hi(order(rho))}, {s(TB+1)}")
    if cfg.help:
        tb = [sum(int(ch, 16) << (4 * t) for t, ch in enumerate(o)) for o in cfg.ordb.split(",")]
        assert all(tb[r] & 15 == order(r) & 15 for r in range(4)) and all(sorted(o) == sorted("0123456789abcdef") for o in cfg.ordb.split(","))
        q(f"s_and_b32 {s(sT)}, {s(sHG)}, 7\ns_cmp_lg_u32 {s(sT)}, 3\ns_cbranch_scc1 LA_nb")
        for rho in range(4):
            if tb[rho] != order(rho): q(f"s_cmp_eq_u32 {s(R.sVAR)}, {rho}\ns_cselect_b32 {s(TB)}, {lo(tb[rho])}, {s(TB)}\ns_cselect_b32 {s(TB+1)}, {hi(tb[rho])}, {s(TB+1)}")
        q("LA_nb:")
    ft = q.L + ids2(cfg)
    if cfg.wfirst: p(fw); fw = []
    if not cfg.fast: p(fw + fh); fw = fh = []
    if cfg.ksplit: fw = lines(KREST) + fw; ft = ["s_waitcnt lgkmcnt(0)"] + ft
    p("s_waitcnt lgkmcnt(0)")
    st.flush(p)
    st(p, "A.karg")
    p.rest = (fw, fh, ft)
    return p

def unit_table(cfg, p, dst):
    def uorder(j):
        o = sorted(range(8), key=lambda u: u - (cfg.oD if u == j else 0))
        return sum(u << (4 * t) for t, u in enumerate(o))
    p(f"s_and_b32 {s(sT)}, {s(sCB)}, 7\ns_mov_b32 {s(dst)}, {hex(uorder(0))}")
    if cfg.oD:
        for j in range(1, 8): p(f"s_cmp_eq_u32 {s(sT)}, {j}\ns_cselect_b32 {s(dst)}, {hex(uorder(j))}, {s(dst)}")
    p(f"s_and_b32 {s(sT)}, {s(sRB4)}, 3\ns_mul_i32 {s(sT)}, {s(sT)}, 0x22222222\ns_add_u32 {s(dst)}, {s(dst)}, {s(sT)}")

def wo_tail_setup(cfg):
    R = RA; t0, t3, wa = R.TG, R.FG, R.wa
    q = Prog(); unit_table(cfg, q, R.sU6)
    q(f"s_bfe_u32 {s(R.sU7)}, {s(R.sU6)}, {hex((3 << 16) | 28)}\ns_lshl_b32 {s(R.sU7)}, {s(R.sU7)}, 18\ns_bfe_u32 {s(R.sU6)}, {s(R.sU6)}, {hex((3 << 16) | 24)}\ns_lshl_b32 {s(R.sU6)}, {s(R.sU6)}, 18")
    a_ = q.L; q = Prog()
    if not cfg.wreg: t0, t3 = R.t0, R.t3
    q(f"v_lshrrev_b32 {v(t0)}, 4, v0\nv_lshlrev_b32 {v(t0)}, 1, {v(t0)}\nv_and_b32 {v(t3)}, 7, v0\nv_xor_b32 {v(t0)}, {v(t0)}, {v(t3)}\nv_lshlrev_b32 {v(t0)}, 4, {v(t0)}")
    q(f"v_lshrrev_b32 {v(t3)}, 3, v0\nv_lshl_add_u32 {v(t0)}, {v(t3)}, 11, {v(t0)}\ns_lshl_b32 {s(sT)}, {s(sCB)}, 7\ns_lshl_b32 {s(sT+1)}, {s(wa)}, 14\ns_add_u32 {s(sT)}, {s(sT)}, {s(sT+1)}\nv_add_u32 {v(R.vWO)}, {s(sT)}, {v(t0)}")
    return a_, q.L

def wo_tail_loads(cfg):
    R = RA
    return [[f"s_add_u32 {s(R.sSO)}, {s((R.sU6, R.sU7)[stp >= 28])}, {(stp & 3) * 65536}", Ins(f"buffer_load_dwordx4 {v(R.WR_[stp-26],4)}, {v(R.vWO)}, {s(rWO,4)}, {s(R.sSO)} offen {cfg.pol_wo}", "wo2")] for stp in range(26, 32)]

def flag_loads():
    R = RA
    return ["s_mov_b64 exec, 0xff", Ins(f"buffer_load_dword {v(R.TG)}, {v(R.vTA)}, {s(rDBG,4)}, 0 offen sc1"),
            Ins(f"buffer_load_dword {v(R.FG)}, {v(R.vFG)}, {s(rWS,4)}, 0 offen sc1", "fg"), "s_mov_b64 exec, -1"]

def gen_A1(cfg, st, rho, rest):
    p = Prog(); R = RA; wa = R.wa; t0, t1, t2, t3 = R.t0, R.t1, R.t2, R.t3
    def chunk(c):
        sl = c % 3; tag = f"ch{c}"
        pre = [f"s_add_u32 {s(R.sCX)}, {s(R.sROT)}, {s(R.sTB)}", f"s_lshr_b64 {s(R.sTB,2)}, {s(R.sTB,2)}, 4", f"s_and_b32 {s(R.sCX)}, {s(R.sCX)}, 15"]
        if cfg.sigma: pre += [f"s_lshr_b32 {s(R.sCW)}, {s(R.sCX)}, 3", f"s_xor_b32 {s(R.sCX)}, {s(R.sCX)}, {s(R.sCW)}"]
        pre += [f"s_add_u32 m0, {s(R.sMX)}, {sl*XS}", f"s_lshl_b32 {s(R.sCX)}, {s(R.sCX)}, 7"]
        ld = lambda va, r, so, imm, pol: Ins(f"buffer_load_dwordx4 {v(va)}, {s(r,4)}, {s(so)} offen offset:{imm} {pol} lds", tag)
        xs = [[ld(R.vX + n, rX, R.sCX, 1024 * n, cfg.pol_x)] for n in range(4)]
        hl = [f"s_add_u32 m0, {s(R.sMH)}, {sl*XS}", "s_mov_b64 exec, 0xffffffff", ld(R.vH, rX, R.sCX, 0, cfg.pol_x), "s_mov_b64 exec, -1"]
        if "halo" in cfg.abl: hl = ["s_nop 0"]
        w0 = [[ld(R.vW + q_, rW, R.sCW, 1024 * q_, cfg.pol_w)] for q_ in range(3)]
        w1 = [[ld(R.vW + q_, rW, R.sCW1, 1024 * q_, cfg.pol_w)] for q_ in range(3)]
        w0[0] = [f"s_mul_i32 {s(R.sCW1)}, {s(R.sCX)}, {64*6144//128}", f"s_add_u32 m0, {s(R.sMW0)}, {sl*24576}", f"s_add_u32 {s(R.sCW)}, {s(R.sCW1)}, {s(R.sHF)}"] + w0[0]
        w1[0] = [f"s_add_u32 m0, {s(R.sMW1)}, {sl*24576 + 12288}", f"s_add_u32 {s(R.sCW1)}, {s(R.sCW1)}, {s(R.sHF1)}"] + w1[0]
        if "ring" in cfg.abl and c >= 3: return [pre + xs[0]] + [["s_nop 0"]] * 10
        if cfg.gchain:
            for g in xs + [hl]:
                for y in g:
                    if isinstance(y, Ins): y.tag = f"ch{c-1}"
            if c == 0:
                for g in xs + [hl] + w0 + w1:
                    for y in g:
                        if isinstance(y, Ins): y.tag = "chP"
            else: return [pre + xs[0]] + xs[1:] + [hl], w0 + w1
        if c == 0 and cfg.wfirst: return mix(w0, rest[1]) + [f"s_mov_b32 m0, {s(R.sMX)}", "s_nop 0"] + mix(xs, []) + hl + mix(w1, []) + rest[2]
        if c == 0: return mix(xs, rest[0]) + mix(w0, rest[1]) + hl + mix(w1, []) + rest[2]
        if cfg.ilv: return [pre + xs[0], xs[1]] + w0 + [[f"s_add_u32 m0, {s(R.sMX)}, {sl*XS}", "s_nop 0"] + xs[2], xs[3], hl] + w1
        return [pre + xs[0]] + xs[1:] + [hl] + w0 + w1

    def setup():
        q = Prog()
        srd(q, rK, pK, 4 << 20); srd(q, rV, pV, 4 << 20); srd(q, rSH, pSH, 8192)
        q(f"v_lshlrev_b32 {v(R.vL16)}, 4, v0")
        q(f"v_and_b32 {v(t2)}, 7, v0\ns_lshl_b32 {s(sT+1)}, {s(sCT)}, 7\nv_lshl_add_u32 {v(t2)}, {v(t2)}, 4, {s(sT+1)}")
        q(f"s_lshl_b32 {s(sT)}, {s(sM)}, 7\ns_lshl_b32 {s(sT+2)}, {s(wa)}, 3\ns_add_u32 {s(sT+2)}, {s(sT+2)}, {s(sT)}")
        q(f"v_lshrrev_b32 {v(t0)}, 3, v0\ns_and_b32 {s(sT+1)}, {s(wa)}, 1\nv_xor_b32 {v(t0)}, {s(sT+1)}, {v(t0)}\nv_add_u32 {v(t0)}, {s(sT+2)}, {v(t0)}\nv_lshl_add_u32 {v(R.vKS)}, {v(t0)}, 11, {v(t2)}")
        q(f"s_xor_b32 {s(sT+2)}, {s(wa)}, 1\ns_add_u32 {s(sT+2)}, {s(sT)}, {s(sT+2)}\ns_sub_u32 {s(sT+2)}, {s(sT+2)}, 4\ns_lshl_b32 {s(sT+2)}, {s(sT+2)}, 11\nv_add_u32 {v(R.vKH)}, {s(sT+2)}, {v(t2)}")
        s0 = q.L; q = Prog()
        srd(q, rWS, pWS, 16 << 20)
        q(f"v_and_b32 {v(t2)}, 7, v0\ns_lshl_b32 {s(sT+1)}, {s(sCT)}, 7\nv_lshl_add_u32 {v(t2)}, {v(t2)}, 4, {s(sT+1)}\ns_lshl_b32 {s(sT)}, {s(sM)}, 7")
        q(f"v_bfe_u32 {v(t0)}, v0, 3, 2\nv_lshrrev_b32 {v(t1)}, 5, v0\ns_lshl_b32 {s(sT+2)}, {s(wa)}, 5")
        q(f"v_lshlrev_b32 {v(t3)}, 3, {v(t0)}\nv_lshl_add_u32 {v(t3)}, {v(t1)}, 2, {v(t3)}\nv_add_u32 {v(t3)}, {s(sT+2)}, {v(t3)}")
        if cfg.p48:
            q(f"v_and_b32 {v(R.vSW)}, 7, v0\nv_lshl_add_u32 {v(R.vSR)}, {v(R.vSW)}, 1, {v(t1)}\nv_lshlrev_b32 {v(R.vSP)}, 5, {v(R.vSR)}\nv_lshlrev_b32 {v(R.vSR)}, 3, {v(R.vSR)}")
            q(f"v_lshl_add_u32 {v(R.vSR)}, {v(t0)}, 10, {v(R.vSR)}\nv_and_b32 {v(R.vSRo)}, 1, {v(t0)}\nv_lshl_add_u32 {v(R.vSR)}, {v(R.vSRo)}, 7, {v(R.vSR)}")
            q(f"s_lshl_b32 {s(sT+1)}, {s(wa)}, 12\ns_add_u32 {s(sT+1)}, {s(sT+1)}, {KST}\nv_add_u32 {v(R.vSR)}, {s(sT+1)}, {v(R.vSR)}\nv_xor_b32 {v(R.vSRo)}, 128, {v(R.vSR)}")
            q(f"v_lshrrev_b32 {v(R.vSW)}, 2, {v(R.vSW)}\nv_lshl_add_u32 {v(R.vSW)}, {v(R.vSW)}, 4, {v(R.vSP)}\nv_add_u32 {v(R.vSW)}, {SHW}, {v(R.vSW)}")
        qq = q
        if cfg.p48: q = Prog()
        q(f"v_and_b32 {v(R.vSW)}, 7, v0\nv_lshlrev_b32 {v(R.vSR)}, 4, {v(R.vSW)}\nv_lshl_add_u32 {v(R.vSR)}, {v(t3)}, 7, {v(R.vSR)}\nv_add_u32 {v(R.vSP)}, {KST}, {v(R.vSR)}")
        q(f"v_and_b32 {v(R.vSRo)}, 1, {v(t0)}\nv_lshl_add_u32 {v(R.vSR)}, {v(R.vSRo)}, 7, {v(R.vSP)}")
        q(f"v_xor_b32 {v(R.vSPo)}, {v(R.vSRo)}, {v(t1)}\nv_xor_b32 {v(R.vSPo)}, 1, {v(R.vSPo)}\nv_lshl_add_u32 {v(R.vSP)}, {v(R.vSPo)}, 7, {v(R.vSP)}")
        q(f"v_xor_b32 {v(R.vSRo)}, 128, {v(R.vSR)}\nv_xor_b32 {v(R.vSPo)}, 128, {v(R.vSP)}")
        q(f"v_lshrrev_b32 {v(R.vTA)}, 2, {v(R.vSW)}\nv_lshlrev_b32 {v(R.vSW)}, 6, {v(R.vSW)}\nv_lshl_add_u32 {v(R.vSW)}, {v(R.vTA)}, 4, {v(R.vSW)}\nv_add_u32 {v(R.vSW)}, {SHW}, {v(R.vSW)}")
        q = qq
        q(f"v_add_u32 {v(t3)}, {s(sT)}, {v(t3)}\nv_lshl_add_u32 {v(R.vQ)}, {v(t3)}, 11, {v(t2)}\nv_lshl_add_u32 {v(R.vOUT)}, {v(t3)}, 12, {v(t2)}")
        q(f"v_bfe_u32 {v(t3)}, v0, 2, 1\nv_lshlrev_b32 {v(t3)}, 1, {v(t3)}\nv_add_u32 {v(t3)}, {v(t3)}, {v(t1)}\nv_lshlrev_b32 {v(t3)}, 16, {v(t3)}")
        q(f"v_lshl_add_u32 {v(t3)}, {v(t0)}, 6, {v(t3)}\nv_and_b32 {v(t2)}, 3, v0\nv_lshl_add_u32 {v(t3)}, {v(t2)}, 4, {v(t3)}")
        q(f"s_add_u32 {s(sT)}, {s(sT)}, {s(sT+2)}\ns_lshl_b32 {s(sT)}, {s(sT)}, 3\ns_lshl_b32 {s(sT+1)}, {s(sCT)}, 18\ns_add_u32 {s(sT)}, {s(sT)}, {s(sT+1)}\nv_add_u32 {v(R.vST)}, {s(sT)}, {v(t3)}")
        sP = q.L; q = Prog()
        srd(q, rH, pH, 4 << 20); srd(q, rQ, pQ, 4 << 20); srd(q, rWO, pWO, 2 << 20)
        q(f"s_lshl_b32 {s(R.sGRP)}, {s(sCT)}, 4\ns_add_u32 {s(R.sGRP)}, {s(R.sGRP)}, {s(sM)}")
        q(f"s_lshr_b32 {s(sT)}, {s(R.sGRP)}, 3\ns_lshl_b32 {s(sT)}, {s(sT)}, 5\ns_and_b32 {s(sT+1)}, {s(R.sGRP)}, 7\ns_add_u32 {s(sT)}, {s(sT)}, {s(sT+1)}")
        q(f"s_lshl_b32 {s(sT+1)}, {s(wa)}, 3\ns_add_u32 {s(R.sCH)}, {s(sT)}, {s(sT+1)}\ns_lshl_b32 {s(R.sGRP)}, {s(R.sGRP)}, 14\ns_mov_b32 {s(R.s4096)}, 4096")
        q(f"s_mul_i32 {s(R.sHBW)}, {s(wa)}, {HS}\ns_add_u32 {s(R.sHBW)}, {s(R.sHBW)}, {HB}")
        sI = q.L; q = Prog()
        if not cfg.help: q(f"s_lshl_b32 {s(sT)}, {s(R.sCH)}, 12\nv_lshl_add_u32 {v(R.vTH)}, v0, 7, {s(sT)}")
        if cfg.help and not cfg.wot: q(f"v_mov_b32 {v(R.vTC)}, 0")
        if not cfg.help or cfg.wot: q(f"s_lshr_b32 {s(sT)}, s2, 3\ns_lshl_b32 {s(sT)}, {s(sT)}, 2\ns_add_u32 {s(sT)}, {s(sT)}, {s(wa)}\ns_lshl_b32 {s(sT)}, {s(sT)}, 14\ns_and_b32 {s(sT+1)}, {s(sCB)}, 8\ns_lshl_b32 {s(sT+1)}, {s(sT+1)}, 7\ns_add_u32 {s(sT)}, {s(sT)}, {s(sT+1)}")
        if not cfg.help or cfg.wot: q(f"v_and_b32 {v(t0)}, 7, v0\nv_lshlrev_b32 {v(t0)}, 7, {v(t0)}\nv_lshrrev_b32 {v(t3)}, 3, v0\nv_lshl_add_u32 {v(t0)}, {v(t3)}, 11, {v(t0)}\nv_add_u32 {v(R.vTC)}, {s(sT)}, {v(t0)}")
        if cfg.help:
            OOB = 0x40000000; rT = R.rT
            def actual(r):
                q(f"s_add_u32 {s(r)}, {s(r)}, {s(R.sROT)}\ns_and_b32 {s(r)}, {s(r)}, 15")
                if cfg.sigma: q(f"s_lshr_b32 {s(sT+5)}, {s(r)}, 3\ns_xor_b32 {s(r)}, {s(r)}, {s(sT+5)}")
            q(f"s_mov_b64 {s(rT,2)}, {s(rWO,2)}\ns_mov_b32 {s(rT+2)}, {hex((2 << 20) if cfg.wot else 0)}\ns_mov_b32 {s(rT+3)}, 0x20000\nv_mov_b32 {v(R.vTH)}, {hex(OOB)}")
            q(f"s_bitcmp1_b32 {s(sHG)}, 2\ns_cbranch_scc1 LA_nh{rho if cfg.slim else 0}")
            q(f"s_mov_b64 {s(rT,2)}, {s(rX,2)}\ns_mov_b32 {s(rT+2)}, {hex(4 << 20)}\nv_mov_b32 {v(R.vTC)}, {hex(OOB)}")
            q(f"s_and_b32 {s(sT)}, {s(sHG)}, 3\ns_cmp_eq_u32 {s(sT)}, 3\ns_cbranch_scc1 LA_nh{rho if cfg.slim else 0}")
            q(f"s_and_b32 {s(sT+1)}, {s(R.sVAR)}, 2\ns_add_u32 {s(sT)}, {s(sRB)}, 1\ns_add_u32 {s(sT)}, {s(sT)}, {s(sT+1)}\ns_and_b32 {s(sT)}, {s(sT)}, 3\ns_bfe_u32 {s(sT+2)}, {s(sRB)}, 0x10002")
            q(f"s_and_b32 {s(sT+3)}, {s(R.sVAR)}, 1\ns_lshl_b32 {s(sT+3)}, {s(sT+3)}, 2\ns_add_u32 {s(sT+3)}, {s(sT+3)}, {s(sT+1)}\ns_lshl_b32 {s(sT+4)}, {s(sT)}, 1")
            q(f"s_cmp_lt_u32 {s(sT)}, 2\ns_cselect_b32 {s(sT+1)}, 12, 24\ns_cselect_b32 {s(sT+4)}, {s(sT+4)}, 0\ns_cselect_b32 {s(sT+5)}, 6, 7")
            q(f"s_add_u32 {s(sT+3)}, {s(sT+3)}, {s(sT+5)}\ns_add_u32 {s(sT+2)}, {s(sT+2)}, {s(sT+4)}\ns_lshl_b32 {s(sT+2)}, {s(sT+2)}, 2\ns_add_u32 {s(sT+2)}, {s(sT+2)}, {s(wa)}\ns_mul_i32 {s(sT+2)}, {s(sT+2)}, {s(sT+1)}")
            q(f"s_add_u32 {s(sT+4)}, {s(sT+3)}, {s(sT)}")
            actual(sT + 3)
            q(f"s_mul_i32 {s(sT+3)}, {s(sT+3)}, 192\ns_add_u32 {s(sT+2)}, {s(sT+2)}, {s(sT+3)}\ns_or_b32 {s(sT+3)}, {s(sHG)}, 3\ns_lshl_b32 {s(sT+3)}, {s(sT+3)}, 7")
            q(f"v_add_u32 {v(t0)}, {s(sT+2)}, v0\nv_lshl_add_u32 {v(t0)}, {v(t0)}, 11, {s(sT+3)}\nv_cmp_gt_u32 vcc, {s(sT+1)}, v0\nv_cndmask_b32 {v(R.vTH)}, {v(R.vTH)}, {v(t0)}, vcc")
            q(f"s_cmp_ge_u32 {s(sT)}, 2\ns_cbranch_scc1 LA_nh{rho if cfg.slim else 0}")
            actual(sT + 4)
            q(f"s_lshl_b32 {s(sT)}, {s(sT+4)}, 7\ns_lshl_b32 {s(sT+1)}, {s(sRB)}, 7\ns_mul_i32 {s(sT+2)}, {s(wa)}, 36\ns_add_u32 {s(sT+1)}, {s(sT+1)}, {s(sT+2)}\ns_sub_u32 {s(sT+1)}, {s(sT+1)}, 16")
            q(f"v_add_u32 {v(t0)}, {s(sT+1)}, v0\nv_lshl_add_u32 {v(t0)}, {v(t0)}, 11, {s(sT)}\nv_cmp_gt_u32 vcc, 36, v0\nv_cndmask_b32 {v(R.vTC)}, {v(R.vTC)}, {v(t0)}, vcc")
            q(f"LA_nh{rho if cfg.slim else 0}:")
        elif cfg.skipbad: q.L.append([f"s_and_b32 {s(sT)}, {s(sHG)}, 7", f"s_cmp_eq_u32 {s(sT)}, 3", f"s_cselect_b32 {s(sT)}, 0x40000000, 0", f"v_or_b32 {v(R.vTC)}, {s(sT)}, {v(R.vTC)}"])
        return s0, sP, sI, q.L
    def setup1():
        q = Prog()
        srd(q, rDBG, pDBG, 256)
        q(f"v_lshrrev_b32 {v(t1)}, 5, v0\nv_and_b32 {v(t2)}, 3, v0")
        q(f"s_lshr_b32 {s(sT)}, {s(R.sCH)}, 1\ns_lshl_b32 {s(sT)}, {s(sT)}, 2")
        q(f"s_load_dword {s(R.sD)}, {s(pD,2)}, {s(sT)}")
        q(f"v_bfe_u32 {v(t0)}, v0, 2, 2\nv_lshlrev_b32 {v(t0)}, 1, {v(t0)}\nv_lshl_add_u32 {v(t0)}, {v(t1)}, 3, {v(t0)}\nv_bfe_u32 {v(t3)}, v0, 4, 1\nv_add_u32 {v(t0)}, {v(t0)}, {v(t3)}")
        q(f"s_and_b32 {s(sT)}, {s(wa)}, 1\ns_lshl_b32 {s(sT)}, {s(sT)}, 1\nv_add_u32 {v(t3)}, {s(sT)}, {v(t1)}\nv_xor_b32 {v(t3)}, {v(t3)}, {v(t2)}\nv_lshlrev_b32 {v(t3)}, 4, {v(t3)}")
        q(f"v_lshl_add_u32 {v(t0)}, {v(t0)}, 6, {v(t3)}\nv_add_u32 {v(R.vXI)}, {s(R.sMW)}, {v(t0)}")
        q(f"v_mov_b32 {v(R.vCNT)}, {CNT}\nv_mov_b32 {v(R.vONE)}, 1")
        return q.L
    def setup2():
        L = []
        if cfg.cmap: prod = f"""s_add_u32 {s(sT+1)}, {s(sRB4)}, {cfg.radd}
s_and_b32 {s(sT+1)}, {s(sT+1)}, 7
s_lshl_b32 {s(sT+1)}, {s(sT+1)}, 1
s_add_u32 {s(sT)}, {s(sT)}, {s(sT+1)}
v_mul_u32_u24 {v(t2)}, 9, {v(t0)}
v_and_b32 {v(t2)}, 17, {v(t2)}
v_add_u32 {v(t2)}, {s(sT)}, {v(t2)}"""
        else: prod = f"""s_and_b32 {s(sT+1)}, {s(sRB4)}, 7
s_add_u32 {s(sT)}, {s(sT)}, {s(sT+1)}
v_lshl_add_u32 {v(t2)}, {v(t0)}, 3, {s(sT)}"""
        L += lines(f"""v_and_b32 {v(t0)}, 3, v0
s_lshl_b32 {s(sT)}, {s(sCT)}, 4
s_add_u32 {s(sT)}, {s(sT)}, {s(wa)}
v_lshl_add_u32 {v(t1)}, {v(t0)}, 2, {s(sT)}
s_lshr_b32 {s(sT)}, {s(sRB4)}, 3
s_lshl_b32 {s(sT+1)}, {s(wa)}, 1
s_add_u32 {s(sT)}, {s(sT)}, {s(sT+1)}
s_xor_b32 {s(sT)}, {s(sT)}, {cfg.ctx}
s_lshl_b32 {s(sT)}, {s(sT)}, 5
{prod}
v_and_b32 {v(t3)}, 4, v0
v_cmp_eq_u32 vcc, 0, {v(t3)}
v_cndmask_b32 {v(t1)}, {v(t2)}, {v(t1)}, vcc
v_and_b32 {v(R.vTA)}, 0xf0, {v(t1)}
v_lshlrev_b32 {v(R.vFG)}, 8, {v(t1)}
v_add_u32 {v(R.vFG)}, {F_KV}, {v(R.vFG)}
v_and_b32 {v(t0)}, 15, v0""")
        L += lines(f"v_lshrrev_b32 {v(t1)}, 4, v0\nv_add_u32 {v(t2)}, 9, {v(t0)}\nv_and_b32 {v(t3)}, 1, {v(t2)}\nv_mul_u32_u24 {v(t3)}, 4160, {v(t3)}")
        L += lines(f"v_lshrrev_b32 {v(t2)}, 1, {v(t2)}\nv_lshl_add_u32 {v(t3)}, {v(t2)}, 2, {v(t3)}\nv_lshlrev_b32 {v(t2)}, 4, {v(t1)}\nv_sub_u32 {v(t3)}, {v(t3)}, {v(t2)}")
        L += [f"s_add_u32 {s(sT)}, {s(R.sHBW)}, 32", f"v_add_u32 {v(R.vAB)}, {s(sT)}, {v(t3)}"]
        L += [f"v_add_u32 {v(R.vAB+k)}, {1024*k}, {v(R.vAB)}" for k in range(1, 4)]
        def ximg(dsts):
            u = R.TG
            M = lines(f"""v_and_b32 {v(t3)}, 1, {v(t2)}
v_bfe_u32 {v(u)}, {v(t2)}, 1, 2
v_lshl_add_u32 {v(u)}, {v(t3)}, 2, {v(u)}
v_lshlrev_b32 {v(u)}, 6, {v(u)}
v_lshrrev_b32 {v(t2)}, 3, {v(t2)}
v_lshl_add_u32 {v(u)}, {v(t2)}, 9, {v(u)}""")
            for k, dst in enumerate(dsts):
                if k: M.append(f"v_subrev_u32 {v(t2)}, 1, {v(t2)}")
                M += [f"v_bitop3_b32 {v(t3)}, {v(t2)}, 3, {s(wa)} bitop3:0x6a", f"v_lshl_add_u32 {v(dst)}, {v(t3)}, 4, {v(u)}", f"v_add_u32 {v(dst)}, {XIMG - 512*k}, {v(dst)}"]
            return M
        for n in range(2):
            L += [f"v_lshl_add_u32 {v(t2)}, {v(t0)}, 1, {v(t1)}", f"v_add_u32 {v(t2)}, {30-4*n}, {v(t2)}"] + ximg([R.vBB + n + 2 * k for k in range(4)])
        L += [f"v_lshrrev_b32 {v(t2)}, 1, {v(t1)}", f"v_lshl_add_u32 {v(t2)}, {v(t0)}, 1, {v(t2)}", f"v_add_u32 {v(t2)}, 32, {v(t2)}"] + ximg([R.vEP])
        L += [f"v_and_b32 {v(t3)}, 1, {v(t1)}", f"v_xor_b32 {v(t3)}, 1, {v(t3)}", f"v_lshl_add_u32 {v(R.vEP)}, {v(t3)}, 3, {v(R.vEP)}"]
        L += lines(f"""s_waitcnt lgkmcnt(0)
s_and_b32 {s(sT)}, {s(R.sD)}, 0xffff0000
s_lshl_b32 {s(R.sD)}, {s(R.sD)}, 16""")
        L.append([f"s_bitcmp1_b32 {s(R.sCH)}, 0", f"s_cselect_b32 {s(R.sD)}, {s(sT)}, {s(R.sD)}"])
        L += lines(f"""v_lshlrev_b32 {v(t2)}, 3, {v(t1)}
v_sub_u32 {v(t2)}, {v(t2)}, {v(t0)}
v_subrev_u32 {v(t2)}, 9, {v(t2)}
v_and_b32 {v(t3)}, 1, {v(t2)}
v_xor_b32 {v(t3)}, 1, {v(t3)}
v_lshlrev_b32 {v(t3)}, 4, {v(t3)}
v_lshrrev_b32 {v(t3)}, {v(t3)}, {s(R.sD)}
v_ashrrev_i32 {v(t2)}, 1, {v(t2)}""")
        for d in range(4): L += [f"v_cmp_eq_u32 vcc, {d}, {v(t2)}", f"v_cndmask_b32 {v(R.DF+d)}, 0, {v(t3)}, vcc"]
        return L
    Kr, Vr, SHr, G, Ku, Vu, Wu, Ac = R.Kr, R.Vr, R.SHr, R.G, R.Ku, R.Vu, R.Wu, R.Ac
    def stage():
        L = []
        for n in range(4):
            L.append(dma(R.sMW, KST + 512 + n * 4096, R.vKS, rK, n * 65536, cfg.nt_in, "stg"))
            L.append(dma(R.sMW, VST + n * 4096, R.vKS, rV, n * 65536, cfg.nt_in, "stg"))
        L.append(["s_mov_b64 exec, 0xff", f"s_lshl_b32 {s(sT+4)}, {s(wa)}, 7"] + dma(sT + 4, KST, R.vKH, rK, 0, cfg.nt_in, "stg") +
                 [f"s_lshl_b32 {s(sT+5)}, {s(sCT)}, 9", f"s_add_u32 {s(sT+5)}, {s(sT+5)}, {s(sT+4)}", f"s_and_b32 {s(R.sSO)}, {s(wa)}, 2", f"s_lshl_b32 {s(R.sSO)}, {s(R.sSO)}, 3", f"s_add_u32 {s(sT+4)}, {s(sT+4)}, {s(R.sSO)}"] +
                 dma(sT + 4, SHW, R.vL16, rSH, (sT + 5, 0), "", "stg") + ["s_mov_b64 exec, -1"])
        return L
    def p1_reads():
        if cfg.p48:
            L = [f"ds_read_b128 {v(SHr+4*i,4)}, {v(R.vSW)} offset:{16*i}" for i in range(2)]
            L += [f"ds_read_b64 {v(Kr+2*j,2)}, {v(R.vSR if (j+1)&1 else R.vSRo)} offset:{256*((j+1)>>1)}" for j in range(3)]
            L += [f"ds_read_b64 {v(Kr+6+2*j,2)}, {v(R.vSRo if j&1 else R.vSR)} offset:{512+256*(j>>1)}" for j in range(8)]
            L += [f"ds_read_b64 {v(Vr+2*j,2)}, {v(R.vSRo if j&1 else R.vSR)} offset:{VST-KST+256*(j>>1)}" for j in range(8)]
            return L
        L = [f"ds_read_b128 {v(SHr+4*i,4)}, {v(R.vSW)} offset:{16*i}" for i in range(4)]
        L += [f"ds_read_b128 {v(Kr+4*j,4)}, {v(R.vSPo if (j+1)&1 else R.vSP)} offset:{256*((j+1)>>1)}" for j in range(3)]
        L += [f"ds_read_b128 {v(Kr+12+4*j,4)}, {v(R.vSRo if j&1 else R.vSR)} offset:{512+256*(j>>1)}" for j in range(4)]
        L += [f"ds_read_b128 {v(Vr+4*j,4)}, {v(R.vSRo if j&1 else R.vSR)} offset:{VST-KST+256*(j>>1)}" for j in range(4)]
        return L
    def p1_chan(c):
        L = []; d, hi = c >> 1, c & 1
        for j in range(7): L.append(unp(Ku + j, Kr + 4 * j + d, hi))
        for t in range(4): L.append(unp(Wu + t, SHr + 2 * c + (t >> 1), t & 1))
        for j in range(4): L.append(unp(Vu + j, Vr + 4 * j + d, hi))
        for j in range(4): L.append(f"v_mul_f32 {v(Ac+j)}, {v(Ku+j)}, {v(Wu+3)}")
        for t in (2, 1, 0):
            for j in range(4): L.append(f"v_fmac_f32 {v(Ac+j)}, {v(Ku+j+3-t)}, {v(Wu+t)}")
        for j in range(4): L.append(f"v_mul_f32 {v(Ac+j)}, {v(Ac+j)}, {v(Vu+j)}")
        dst = G + 4 * (c & 3) + (2 if c < 4 else 0)
        L.append(f"v_cvt_pk_bf16_f32 {v(dst)}, {v(Ac+3)}, {v(Ac+2)}")
        L.append(f"v_cvt_pk_bf16_f32 {v(dst+1)}, {v(Ac+1)}, {v(Ac+0)}")
        return L
    def p1_chan48(c):
        L = []; d, hi = c >> 1, c & 1; K8, W8, V8, A8 = 160, 172, 176, 184
        for j in range(11): L.append(unp(K8 + j, Kr + 2 * j + d, hi))
        for t in range(4): L.append(unp(W8 + t, SHr + 2 * c + (t >> 1), t & 1))
        for j in range(8): L.append(unp(V8 + j, Vr + 2 * j + d, hi))
        for j in range(8): L.append(f"v_mul_f32 {v(A8+j)}, {v(K8+j)}, {v(W8+3)}")
        for t in (2, 1, 0):
            for j in range(8): L.append(f"v_fmac_f32 {v(A8+j)}, {v(K8+j+3-t)}, {v(W8+t)}")
        for j in range(8): L.append(f"v_mul_f32 {v(A8+j)}, {v(A8+j)}, {v(V8+j)}")
        for i in range(4): L.append(f"v_cvt_pk_bf16_f32 {v(G+4*c+i)}, {v(A8+7-2*i)}, {v(A8+6-2*i)}")
        return L
    def p1_store(c):
        return [f"v_permlane32_swap_b32 {v(G+4*c+2+d)}, {v(G+4*c+d)}" for d in range(2)] + \
               [[f"s_mov_b32 {s(R.sSO)}, {WS_KV + c*16384}", Ins(f"buffer_store_dwordx4 {v(G+4*c,4)}, {v(R.vST)}, {s(rWS,4)}, {s(R.sSO)} offen sc1", "kvst")]]
    def h_dma():
        return [[f"s_add_u32 m0, {s(R.sHBW)}, 32", f"s_lshl_b32 {s(R.sSO)}, {s(R.sCH)}, 12",
                 Ins(f"buffer_load_dwordx4 {v(R.vL16)}, {s(rH,4)}, {s(R.sSO)} offen offset:{1024*n} {cfg.nt_in} lds", "hld")] for n in range(4)]
    def h_copy():
        L = [f"v_add_u32 {v(t0)}, {s(R.sHBW)}, {v(R.vL16)}"]
        for n in range(4):
            L += [f"ds_read_b128 {v(R.HE+4*n,4)}, {v(t0)} offset:{32+1024*n}", f"ds_read_b32 {v(R.HN+n)}, {v(t0)} offset:{48+1024*n}"]
        L += lines(f"""v_lshrrev_b32 {v(t1)}, 3, v0
v_mul_u32_u24 {v(t1)}, 4160, {v(t1)}
v_and_b32 {v(t2)}, 7, v0
v_lshl_add_u32 {v(t1)}, {v(t2)}, 2, {v(t1)}
v_add_u32 {v(t1)}, {s(R.sHBW)}, {v(t1)}
v_mov_b32 {v(t2)}, 0""")
        L0 = L; L = ["s_waitcnt lgkmcnt(0)", f"v_readfirstlane_b32 {s(R.sH0)}, {v(R.HE)}"]
        L += [f"s_lshl_b32 {s(R.sH0)}, {s(R.sH0)}, 16", f"v_writelane_b32 {v(t2)}, {s(R.sH0)}, 15"]
        W = ["s_mov_b64 exec, 0xffff", f"ds_write_b32 {v(t1)}, {v(t2)}", "s_mov_b64 exec, -1"]
        for n in range(4):
            e = R.HE + 4 * n
            for i in range(4): L.append(f"v_alignbit_b32 {v(e+i)}, {v(e+i+1 if i < 3 else R.HN+n)}, {v(e+i)}, 16")
            W.append(f"ds_write_b128 {v(t0)}, {v(e,4)} offset:{4160+32+1024*n}")
        L += lines(f"v_lshlrev_b32 {v(t3)}, 3, v0\ns_add_u32 {s(sT)}, {s(R.sMH)}, {XS}\nv_add_u32 {v(t3)}, {s(sT)}, {v(t3)}\nv_mov_b32 {v(R.HN)}, 0\nv_mov_b32 {v(R.HN+1)}, 0")
        W.append(f"ds_write_b64 {v(t3)}, {v(R.HN,2)}")
        return L0, L, W

    def boosted(L): return ([f"s_setprio {cfg.boost}"] + L + ["s_setprio 0"]) if cfg.boost else L
    KL = int(cfg.KL.split(",")[rho]); HL = int(cfg.HL.split(",")[rho]); NI = cfg.NI
    fill = {c: [] for c in range(16)}; tail = {c: [] for c in range(16)}; head = {c: [] for c in range(16)}
    if cfg.gchain:
        CH = {c: chunk(c) for c in range(1, 16)}; CH[16] = ([], [])
        head = {c: (CH[c + 2][1] if c <= 13 else []) for c in range(16)}
        new = {c: (CH[c + 3][0] if c <= 13 else []) for c in range(16)}
        c0, c1 = chunk(0), CH[1][0] + CH[1][1] + CH[2][0]
        if cfg.x2e:
            w1 = CH[1][1]; c1 = CH[1][0] + [[w1[0][0]] + CH[2][0][0]] + CH[2][0][1:] + [w1[0][1:]] + w1[1:]
    else:
        new = {c: (chunk(c + 2) if 1 <= c <= 13 else []) for c in range(16)}
        c0, c1 = chunk(0), chunk(1)
    p(c0); p(mix(c1[:cfg.first0], []))
    if cfg.mini: st(p, "A.c0iss")
    s0, sP, sI, sH = setup()
    p(s0)
    if not cfg.slim: p(sP + sI + sH)
    if not cfg.defer: p(setup1() + setup2())
    p(mix(c1[cfg.first0:cfg.first], []))
    st(p, "A.iss0")
    if cfg.gchain:
        assert cfg.first >= 5
        p.wait_vm("chP"); p("s_barrier")
        p(mix(c1[cfg.first:cfg.first2], []))
    for r in range(1, 4): p(f"s_cmp_eq_u32 {s(R.sVAR)}, {r}\ns_cbranch_scc1 LA_c{r}")
    p(f"LA_c{rho}:")
    if not cfg.gchain: new[0] = c1[cfg.first:] + chunk(2)
    hc = h_copy()
    TL = int(cfg.TL.split(",")[rho]) if cfg.touch else 0
    if cfg.slim:
        fill[0] += sI; fill[KL + 1] += sP
        if TL: fill[TL - 1] = [sH] + fill[TL - 1] if TL > 1 else fill[0] + [sH]
    if not cfg.nop1:
        new[KL] = stage() + new[KL]
        comp = []
        for c in range(4):
            if cfg.p48: comp += p1_chan48(c) + ([] if cfg.stend else p1_store(c)[2:])
            else: comp += p1_chan(c) + p1_chan(c + 4) + (p1_store(c)[:2] if cfg.stend else p1_store(c))
        if cfg.stend: new[KL + 3 + NI] = [p1_store(c)[2] for c in range(4)] + new[KL + 3 + NI]
        per = (len(comp) + NI - 1) // NI
        if cfg.rdend: tail[KL + 2] = boosted(p1_reads())
        else: fill[KL + 2] += p1_reads()
        for i in range(NI): fill[KL + 3 + i] += comp[i * per:(i + 1) * per]
        assert KL >= 1 and KL + 3 + NI + (1 if cfg.stend else 0) <= cfg.KF and KL + 3 <= HL
    qld = [[Ins(f"buffer_load_dwordx4 {v(R.Qr+4*j,4)}, {v(R.vQ)}, {s(rQ,4)}, {s(R.s4096) if j >= 2 else 0} offen offset:{2048*(j&1)} {cfg.nt_in}", "qld")] for j in range(4)]
    if cfg.hend: HL = 99; new[99] = []; fill[101] = []; fill[102] = []
    new[HL] = h_dma() + (qld if cfg.qpos == "h" else []) + new[HL]
    if cfg.qpos == "e":
        QL = int(cfg.QL.split(",")[rho])
        th = [["s_mov_b64 exec, 0xffffffff", Ins(f"buffer_load_dword {v(R.TC)}, {v(R.vTH)}, {s(rH,4)}, 0 offen"), "s_mov_b64 exec, -1"]] if cfg.htouch else []
        new[QL] = qld + th + new[QL]
    if cfg.touch and int(cfg.TL.split(",")[rho]):
        TL = int(cfg.TL.split(",")[rho])
        if cfg.help: new[TL] = [[Ins(f"buffer_load_dword {v(R.TC)}, {v(R.vTC)}, {s(R.rT,4)}, 0 offen")], [Ins(f"buffer_load_dword {v(R.TC)}, {v(R.vTH)}, {s(rW,4)}, 0 offen")]] + new[TL]
        else: new[TL] = [[Ins(f"buffer_load_dword {v(R.TC)}, {v(R.vTC)}, {s(rWO,4)}, 0 offen {cfg.pol_wo}")]] + new[TL]
    HC = max(cfg.HC, HL + 2)
    fill[HC] += hc[0]; fill[HC + (0 if cfg.hone else 1)] += hc[1]; p.hc = (hc[2], qld, hc[0] + hc[1])
    if cfg.defer:
        rest = setup1() + setup2()
        free = [c for c in range(1, min(HC, 13)) if not fill[c]]
        if cfg.dlate:
            if cfg.wreg:
                a_, b_ = wo_tail_setup(cfg); rest += [a_] + b_
            free = free[-((len(rest) + cfg.defer - 1) // cfg.defer):]
        for c in free:
            if rest: fill[c] = rest[:cfg.defer]; rest = rest[cfg.defer:]
        assert not rest, len(rest)
    if cfg.wreg and not (cfg.defer and cfg.dlate):
        a_, b_ = wo_tail_setup(cfg); fill[11] += [a_] + b_
    new[13] += [flag_loads()] + (new[99] if cfg.hend else []) + (qld if cfg.qpos == "t" else []) + (wo_tail_loads(cfg) if cfg.wreg and cfg.wrpos == "t" else [])
    back = c1[cfg.first2:] if cfg.gchain else []
    for c in range(16): new[c] = head[c] + new[c]
    for c in range(15):
        p.wait_vm(f"ch{c}")
        if cfg.gchain and c == 14: p.wait_vm("ch15")
        if c == cfg.KF:
            assert not any(isinstance(y, Ins) and y.tag == "kvst" for g in back for y in g)
            p.wait_vm("kvst")
        if c == KL + 2: p.wait_vm("stg")
        if c == HC: p.wait_vm("hld")
        if c == KL + 3: p("s_waitcnt lgkmcnt(0)")
        p("s_barrier")
        if not cfg.allbar and c in (0, 1, 4, 8, 12, 14): st(p, f"A.bar{c}")
        if c == 14: break
        must = len(back)
        back += new[c]
        cap = min(cfg.cap, must + len(new[c]) - 11 + cfg.capS) if len(new[c]) > 11 and c > 0 else cfg.cap
        k = len(back) if c == 13 else max(must, min(len(back), cap))
        f = fill[c]
        if cfg.gapv and len(f) > cfg.gapv * k: p(mix(back[:k], f[:cfg.gapv * k])); p(f[cfg.gapv * k:])
        else: p(mix(back[:k], f))
        back = back[k:]
        p(tail[c])
    assert not back and not fill[14]
    p.wait_vm("fg")
    if rho < 3: p("s_branch LA_j")
    return p

def gen_A2(cfg, st, hc):
    p = Prog(); slow = Prog(); R = RA; wa = R.wa; t0, t1, t2, t3 = R.t0, R.t1, R.t2, R.t3
    vCNT, vONE, sSO, G = R.vCNT, R.vONE, R.sSO, R.G
    p("LA_j:")
    chk = f"v_cmp_ne_u32 vcc, {v(R.TG)}, {v(R.FG)}\nv_cmp_gt_u32 {s(sT+2,2)}, {s(R.s4096)}, {v(R.TG)}\ns_nop 0\ns_or_b64 vcc, vcc, {s(sT+2,2)}"
    if not cfg.gchain: lds_arrive(p, vCNT, S6, vONE)
    p("s_mov_b64 exec, 0xff\n" + chk + "\ns_cbranch_vccnz LA_slow\nLA_back:\ns_mov_b64 exec, -1")
    slow(f"LA_slow:\ns_mov_b32 {s(sT+1)}, 0\nLA_slow1:\ns_mov_b64 exec, vcc\ns_sleep {cfg.sleep}")
    slow(f"buffer_load_dword {v(R.TG)}, {v(R.vTA)}, {s(rDBG,4)}, 0 offen sc1\nbuffer_load_dword {v(R.FG)}, {v(R.vFG)}, {s(rWS,4)}, 0 offen sc1")
    slow(f"s_add_u32 {s(sT+1)}, {s(sT+1)}, 1\ns_cmp_gt_u32 {s(sT+1)}, {cfg.spin}\ns_waitcnt vmcnt(0)\ns_cbranch_scc1 LA_back")
    slow(chk + "\ns_cbranch_vccnz LA_slow1\ns_branch LA_back")
    if cfg.p4st: st(p, "A.back")
    for nn in range(4): p(dma(R.sMW, XIMG + 2048 + nn * 4096, R.vXI, rWS, (R.sGRP, WS_KV + nn * 4096), "sc1", "xi"))
    wld = wo_tail_loads(cfg)
    if cfg.wreg and cfg.wrpos == "x": p(wld)
    if cfg.qpos == "x": p(hc[1])
    if cfg.hend: p.wait_vm("hld"); p(hc[2])
    p(hc[0])
    if cfg.p4st: st(p, "A.wr")
    ACC = 36; FA = [68, 132]; FB = [100, 164]
    def conv_reads(n, which="ab"):
        k = n & 1; L = []
        def ra(nu):
            o = 16 * n + 128 * (nu & 1)
            return [f"ds_read2_b32 {v(FA[k]+4*nu,2)}, {v(R.vAB+(nu>>1))} offset0:{o} offset1:{o+1}",
                    f"ds_read2_b32 {v(FA[k]+4*nu+2,2)}, {v(R.vAB+(nu>>1))} offset0:{o+2} offset1:{o+3}"]
        def rb(ka): return [f"ds_read_b128 {v(FB[k]+4*ka,4)}, {v(R.vBB+n)} offset:{2048*ka}"]
        if cfg.cchain and which == "ab":
            for i in range(8): L += ra(i) + rb(i)
            return L
        if "a" in which: L += ra(0)
        if "b" in which:
            for i in range(8): L += rb(i)
        if "a" in which:
            for i in range(1, 8): L += ra(i)
        return L
    def conv_mfma(n):
        k = n & 1; L = []
        if cfg.cchain:
            for t in range(8):
                a = v(ACC + 4 * t, 4)
                if n == 0: L.append(f"v_mfma_f32_16x16x32_bf16 {a}, {v(R.DF,4)}, {v(FB[0]+4*t,4)}, 0")
                for nu in (range(t + 1) if (t % 2 == 0 or n == 0) else range(t, -1, -1)):
                    L.append(f"v_mfma_f32_16x16x32_bf16 {a}, {v(FA[k]+4*nu,4)}, {v(FB[k]+4*(t-nu),4)}, {a}")
            return L
        for nu in range(8):
            for ka in range(8 - nu):
                a = v(ACC + 4 * (nu + ka), 4)
                L.append(f"v_mfma_f32_16x16x32_bf16 {a}, {v(FA[k]+4*nu,4)}, {v(FB[k]+4*ka,4)}, {a}")
        if n == 0: L = [f"v_mfma_f32_16x16x32_bf16 {v(ACC+4*ka,4)}, {v(R.DF,4)}, {v(FB[0]+4*ka,4)}, 0" for ka in range(8)] + L
        return L
    p(conv_reads(0, "a"))
    p.wait_vm("xi")
    if cfg.p4st: st(p, "A.xi")
    lds_arrive(p, vCNT, S5, vONE)
    if cfg.qpos == "c": p(hc[1])
    if cfg.wreg and cfg.wrpos == "c": p(wld)
    lds_wait(p, "LA_s5", vCNT, S5, 4, t1)
    lds_arrive(p, vCNT, S2, vONE)
    p(conv_reads(0, "b"))
    st(p, "A.conv0")
    Qr = R.Qr
    extra = {n: [] for n in range(8)}
    if cfg.qpos.isdigit(): extra[int(cfg.qpos)] += [y[0] for y in hc[1]]
    qu = lambda j, c: (196 if j < 2 else 240 - 16) + 8 * j + c
    if cfg.diag: qu = lambda j, c: 2 if (j, c) == (3, 7) else (196 if j < 2 else 240 - 16) + 8 * j + c
    if cfg.wreg: qu = lambda j, c: 132 + 8 * j + c
    qun = [unp(qu(j, c), Qr + 4 * j + (c >> 1), c & 1) for j in range(4) for c in range(8)]
    if not cfg.pre and not cfg.wreg:
        a_, b_ = wo_tail_setup(cfg); extra[3] += a_; extra[4] += b_
    qn = 5 if not (cfg.qpos.isdigit() or cfg.wreg) else None
    if qn: extra[qn] += qun[:16]; extra[qn + 1] += qun[16:]
    YP = 68
    def fin(t):
        a = ACC + 4 * t; y = YP + 2 * t
        return [f"v_cvt_pk_bf16_f32 {v(y)}, {v(a+3)}, {v(a+2)}", f"v_cvt_pk_bf16_f32 {v(y+1)}, {v(a+1)}, {v(a+0)}", f"ds_write_b64 {v(R.vEP)}, {v(y,2)} offset:{2048*t}"]
    p(f"s_setprio {cfg.prioA2}")
    for n in range(8):
        M = conv_mfma(n); out = []
        if "conv" in cfg.abl and 1 <= n <= int(cfg.abl.split("conv")[1][0]): continue
        if n < 7:
            rd = conv_reads(n + 1); ri = ei = 0; E = extra[n]; nr = len(M) - 4
            for i, m in enumerate(M):
                out.append(m)
                tgt = min(len(rd), ((i + 1) * len(rd) + nr - 1) // nr)
                while ri < tgt: out.append(rd[ri]); ri += 1
                tgt = ((i + 1) * len(E) + len(M) - 1) // len(M)
                while ei < tgt: out.append(E[ei]); ei += 1
        else:
            done = [sum(8 - k for k in range(t)) for t in range(8)]; nxt = 0; pend = []
            if cfg.cchain:
                done = [(t + 1) * (t + 2) // 2 - 1 for t in range(8)]
                pend = None
            for i, m in enumerate(M):
                out.append(m)
                if pend is None:
                    if i < 7: continue
                    out.append("s_waitcnt lgkmcnt(0)"); pend = []
                while nxt < 8 and i >= done[nxt] + (6 if cfg.cchain else 8): pend += fin(nxt); nxt += 1
                out += pend[:2]; pend = pend[2:]
            out += pend
            for t in range(nxt, 8): out += fin(t)
        p(out)
        if cfg.p4st and n < 7: st(p, f"A.c{n}")
        if cfg.deep and n == cfg.dsig: lds_arrive(p, vCNT, S9, vONE)
    st(p, "A.convend")
    if cfg.notail:
        st(p, "A.end"); st(p, "A.real1", real=True); st.dump(p, t0, 0); p("s_endpgm")
        return p, slow
    lds_arrive(p, vCNT, S3, vONE)
    YR = 84
    p(f"s_add_u32 {s(sT+2)}, {s(R.sMW)}, {XIMG+2048}\nv_add_u32 {v(t0)}, {s(sT+2)}, {v(R.vL16)}")
    lds_wait(p, "LA_s3", vCNT, S3, 4, t1, extra=[f"ds_read_b128 {v(YR+4*nn,4)}, {v(t0)} offset:{4096*nn}" for nn in range(4)])
    for nn in range(4):
        p(f"s_add_u32 {s(sSO)}, {s(R.sGRP)}, {WS_Y + nn*4096}")
        if not cfg.noyst: p(f"buffer_store_dwordx4 {v(YR+4*nn,4)}, {v(R.vXI)}, {s(rWS,4)}, {s(sSO)} offen {cfg.pol_y}", "yst")
    st(p, "A.ystiss")
    if cfg.wreg:
        p(f"s_add_u32 {s(sT+2)}, {s(R.sMW)}, {HB}\nv_add_u32 {v(t0)}, {s(sT+2)}, {v(R.vL16)}")
        for stp in range(26, 32): p(f"ds_write_b128 {v(t0)}, {v(R.WR_[stp-26],4)} offset:{4096*(stp-26)}")
        lds_arrive(p, vCNT, S8, vONE)
    elif not cfg.pre:
        for stp in range(26, 32): p(dma(R.sMW, wo_loc(stp), R.vWO, rWO, ((R.sU6, R.sU7)[stp >= 28], (stp & 3) * 65536), cfg.pol_wo, "wo2"))
    p(f"s_setprio {cfg.prioA3}")
    srd(p, rOUT, pOUT, 8 << 20)
    p(f"s_lshr_b32 {s(sT+3)}, {s(R.sGRP)}, 4\ns_lshl_b32 {s(sT+4)}, {s(wa)}, 8\ns_add_u32 {s(sT+3)}, {s(sT+3)}, {s(sT+4)}\ns_add_u32 {s(sT+3)}, {s(sT+3)}, {F_Y}")
    p(f"s_lshl_b32 {s(sT+2)}, {s(sCT)}, 14\ns_and_b32 {s(sT+4)}, {s(sM)}, 3\ns_lshl_b32 {s(sT+4)}, {s(sT+4)}, 8\ns_add_u32 {s(sT+2)}, {s(sT+2)}, {s(sT+4)}\ns_add_u32 {s(sT+2)}, {s(sT+2)}, {F_Y}")
    if cfg.ally: p(f"v_mov_b32 {v(t0)}, 0\nv_lshlrev_b32 {v(t2)}, 10, v0")
    else: p(f"v_mov_b32 {v(t0)}, 0\nv_lshlrev_b32 {v(t2)}, 12, v0\nv_add_u32 {v(t2)}, {s(R.sMW)}, {v(t2)}")
    if not qn: p(qun)
    p.wait_vm("yst")
    p(f"s_mov_b64 exec, 1\nbuffer_store_dword {v(vONE)}, {v(t0)}, {s(rWS,4)}, {s(sT+3)} offen sc1\ns_mov_b64 exec, {'0xffff' if cfg.ally else '0xf'}")
    st(p, "A.yflag")
    if not cfg.pre and not cfg.wreg:
        p.wait_vm("wo2"); lds_arrive(p, vCNT, S8, vONE); p(f"s_mov_b64 exec, {'0xffff' if cfg.ally else '0xf'}")
    p("s_waitcnt vmcnt(0)")
    if cfg.nopoll: lds_wait(p, "LA_s7a", vCNT, S7, 4, t1)
    p(f"s_setprio {cfg.prioA4}")
    gpoll(p, cfg, "LA_py", rWS, t2, s(sT + 2), 1, t1)
    if cfg.ally: p("s_mov_b64 exec, -1")
    else:
        lds_arrive(p, vCNT, S7, vONE)
        lds_wait(p, "LA_s7", vCNT, S7, 8 if cfg.ysig >= 0 else 4, t1)
    st(p, "A.ypoll")
    for c in range(4):
        p(f"s_mov_b32 {s(sSO)}, {WS_Y + c*16384}")
        p(f"buffer_load_dwordx4 {v(G+4*c,4)}, {v(R.vST)}, {s(rWS,4)}, {s(sSO)} offen sc1")
    p([f"v_permlane32_swap_b32 {v(G+4*c+2+d)}, {v(G+4*c+d)}" for c in range(4) for d in range(2)])
    OR = 36; T = 68
    for j in range(4):
        for c in range(8):
            src = G + 4 * (c & 3) + (2 if c < 4 else 0) + (0 if j >= 2 else 1)
            p(unp(T + c, src, 1 - (j & 1)))
        for c in range(8): p(f"v_mul_f32 {v(T+c)}, {v(T+c)}, {v(qu(j, c))}")
        for d in range(4): p(f"v_cvt_pk_bf16_f32 {v(OR+4*j+d)}, {v(T+2*d)}, {v(T+2*d+1)}")
        p(f"s_mov_b32 {s(sSO)}, {4096*j}")
        p(f"buffer_store_dwordx4 {v(OR+4*j,4)}, {v(R.vOUT)}, {s(rOUT,4)}, {s(sSO)} offen {cfg.pol_out}")
    st(p, "A.outiss")
    if cfg.diag:
        p("s_waitcnt vmcnt(0)"); st(p, "A.end"); st(p, "A.real1", real=True); st.dump(p, t0, 0)
    p("s_endpgm")
    return p, slow

def gen_B(cfg, st):
    p = Prog(); slow = Prog()
    wb = sWV
    p("L_B:")
    p(f"s_setprio {cfg.prioB}\ns_and_b32 {s(wb)}, {s(wb)}, 3")
    if cfg.ksplit: p(KREST)
    st(p, "B.real0", real=True); st(p, "B.start")
    p(ids2(cfg))
    sTH, sHH = 86, 87
    mPar, mLe0, mLe1 = 88, 90, 92
    sOB, sSO, sFK = 94, 95, 96
    vXh, vXo, vWq, vWv = 2, 4, 6, 8
    vCNT, vONE, vL16 = 10, 11, 12
    t0, t1, t2 = 13, 14, 15
    ACC = 16
    accQ = lambda t, u: ACC + 8 * t + 4 * u
    accK = lambda t, u: ACC + 32 + 8 * t + 4 * u
    accV = lambda t, u: ACC + 64 + 8 * t + 4 * u
    accHK, accHV = ACC + 96, ACC + 100
    FS = [120, 164]
    fx = lambda k, t: FS[k] + 4 * t
    fw = lambda k, part, u: FS[k] + 20 + 8 * part + 4 * u
    SEL, NEG, vEh, vE3, vEr, vZ, vFA = 208, 212, 216, 217, 218, 220, 221
    t3, t4 = 222, 223
    p(f"s_lshr_b32 {s(sTH)}, {s(wb)}, 1\ns_and_b32 {s(sHH)}, {s(wb)}, 1")
    p(f"v_mov_b32 {v(vCNT)}, {CNT}\nv_mov_b32 {v(vONE)}, 1\nv_lshlrev_b32 {v(vL16)}, 4, v0")
    p(f"v_lshl_add_u32 {v(t0)}, v0, 2, {v(vCNT)}\nv_mov_b32 {v(t1)}, 0\nds_write_b32 {v(t0)}, {v(t1)}")
    sFO = 97
    p(f"s_lshl_b32 {s(sT)}, {s(sCT)}, 4\ns_add_u32 {s(sT)}, {s(sT)}, {s(sM)}\ns_lshl_b32 {s(sFK)}, {s(sT)}, 8\ns_add_u32 {s(sFK)}, {s(sFK)}, {F_KV}")
    p(f"s_lshl_b32 {s(sT)}, {s(sT)}, 2\ns_add_u32 {s(sT)}, {s(sT)}, {s(wb)}\ns_lshl_b32 {s(sT)}, {s(sT)}, 8\ns_add_u32 {s(sT+2)}, {s(sT)}, {F_Y}")
    p(f"s_lshl_b32 {s(sT+3)}, {s(sRB)}, 1\ns_add_u32 {s(sT+3)}, {s(sT+3)}, {s(sTH)}")
    p(f"s_lshl_b32 {s(sFO)}, {s(sT+3)}, 4\ns_add_u32 {s(sFO)}, {s(sFO)}, {s(sHG)}\ns_lshl_b32 {s(sFO)}, {s(sFO)}, 8\ns_add_u32 {s(sFO)}, {s(sFO)}, {F_O-128}")
    p(f"v_mov_b32 {v(t2)}, {s(sT+2)}\nv_mov_b32 {v(t4)}, {s(sFO)}\nv_cmp_gt_u32 vcc, 8, v0\nv_cndmask_b32 {v(t2)}, {v(t4)}, {v(t2)}, vcc\nv_add_u32 {v(vFA)}, {v(t2)}, {v(vL16)}")
    p(f"s_lshl_b32 {s(sT)}, {s(sHH)}, 2\ns_add_u32 {s(sT)}, {s(sT)}, 128\ns_add_u32 {s(sFO)}, {s(sFO)}, {s(sT)}")
    p(f"s_lshl_b32 {s(sT+4)}, {s(sHG)}, 1\ns_add_u32 {s(sT+4)}, {s(sT+4)}, {s(sHH)}")
    p(f"s_lshl_b32 {s(sT)}, {s(sT+3)}, 7\ns_add_u32 {s(sT)}, {s(sT)}, {s(sT+4)}\ns_lshl_b32 {s(sOB)}, {s(sT)}, 10\ns_add_u32 {s(sOB)}, {s(sOB)}, {WS_O}")
    for r in range(4): p(f"v_mov_b32 {v(NEG+r)}, 0")
    p(f"v_mov_b32 {v(vZ)}, 0")
    p("s_waitcnt lgkmcnt(0)")
    st.flush(p)
    srd(p, rWS, pWS, 16 << 20); srd(p, rDBG, pDBG, 256)
    sTA = 98
    p(f"s_lshl_b32 {s(sTA)}, {s(sCT)}, 4\ns_or_b32 {s(sT)}, {s(sM)}, {s(wb)}\ns_cmp_lg_u32 {s(sT)}, 0\ns_cbranch_scc1 LB_notag")
    vG = 251
    p(f"s_mov_b64 exec, 0xffff\nv_lshlrev_b32 {v(t2)}, 8, v0\nbuffer_load_dword {v(vG)}, {v(t2)}, {s(rWS,4)}, {s(sFK)} offen sc1")
    tagfin = f"""s_waitcnt vmcnt(0)
v_lshrrev_b32 {v(vG)}, v0, {v(vG)}
v_and_b32 {v(vG)}, 1, {v(vG)}
v_cmp_eq_u32 vcc, 0, {v(vG)}
s_nop 1
s_or_b32 {s(sT+5)}, vcc_lo, 0x10000
s_mov_b64 exec, 1
v_mov_b32 {v(vG)}, {s(sT+5)}
buffer_store_dword {v(vG)}, {v(vZ)}, {s(rDBG,4)}, {s(sTA)} offen sc1"""
    if not cfg.tlate: p(tagfin)
    p("LB_notag:")
    p(f"s_lshl_b32 {s(sT)}, {s(sHH)}, 3\ns_lshr_b32 exec_lo, 0xffff, {s(sT)}\ns_mov_b32 exec_hi, 0")
    p(f"buffer_store_dwordx4 {v(NEG,4)}, {v(vFA)}, {s(rWS,4)}, 0 offen sc1\ns_mov_b64 exec, -1")
    c_, g_ = t0, t1
    p(f"v_and_b32 {v(c_)}, 15, v0\nv_lshrrev_b32 {v(g_)}, 4, v0")
    p(f"v_lshrrev_b32 {v(t2)}, 1, {v(c_)}\nv_xor_b32 {v(t2)}, {v(t2)}, {v(g_)}\nv_lshlrev_b32 {v(t2)}, 4, {v(t2)}\nv_lshl_add_u32 {v(t2)}, {v(c_)}, 7, {v(t2)}")
    p(f"v_add_u32 {v(vXh)}, {XR}, {v(t2)}\nv_xor_b32 {v(vXh+1)}, 64, {v(vXh)}")
    p(f"s_lshl_b32 {s(sT)}, {s(sTH)}, 13\ns_add_u32 {s(sT)}, {s(sT)}, 2048\nv_add_u32 {v(vXo)}, {s(sT)}, {v(vXh)}\nv_add_u32 {v(vXo+1)}, {s(sT)}, {v(vXh+1)}")
    p(f"v_bfe_u32 {v(t2)}, v0, 3, 2")
    p(f"s_lshl_b32 {s(sT)}, {s(sHH)}, 1\ns_add_u32 {s(sT)}, {s(sT)}, {s(sTH)}\nv_xor_b32 {v(t2)}, {s(sT)}, {v(t2)}\nv_lshlrev_b32 {v(t2)}, 5, {v(t2)}")
    p(f"v_and_b32 {v(t4)}, 3, v0\nv_lshl_add_u32 {v(t2)}, {v(t4)}, 3, {v(t2)}\nv_bfe_u32 {v(t4)}, v0, 2, 2\nv_lshl_add_u32 {v(t2)}, {v(t4)}, 7, {v(t2)}")
    p(f"v_mul_u32_u24 {v(t4)}, 3072, {v(g_)}\nv_add_u32 {v(vWq)}, {v(t4)}, {v(t2)}\nv_xor_b32 {v(vWq+1)}, 32, {v(vWq)}")
    pmain = p
    if cfg.bdefer: p = Prog()
    srd(p, rOUT, pOUT, 8 << 20)
    p(f"v_and_b32 {v(t2)}, 1, {v(c_)}\nv_cmp_eq_u32 {s(mPar,2)}, 1, {v(t2)}")
    p(f"v_lshl_add_u32 {v(t2)}, {v(g_)}, 2, {v(t2)}\nv_cmp_le_u32 {s(mLe0,2)}, {v(t2)}, {v(c_)}\nv_add_u32 {v(t2)}, 2, {v(t2)}\nv_cmp_le_u32 {s(mLe1,2)}, {v(t2)}, {v(c_)}")
    p(f"v_mov_b32 {v(NEG)}, 0x0c0c0c0c")
    for j, m in ((0, mLe0), (1, mLe1)):
        lo = 0x0c0c0000 | ((2*j+1) << 8) | (2*j); hi = ((2*j+1) << 24) | ((2*j) << 16) | 0x0c0c
        p(f"v_mov_b32 {v(t2)}, {hex(lo)}\nv_mov_b32 {v(t4)}, {hex(hi)}\nv_cndmask_b32 {v(t2)}, {v(t2)}, {v(t4)}, {s(mPar,2)}")
        p(f"v_cndmask_b32 {v(SEL+j)}, {v(t2)}, {v(NEG)}, {s(m,2)}\nv_cndmask_b32 {v(SEL+2+j)}, {v(NEG)}, {v(t2)}, {s(m,2)}")
    p(f"s_or_b32 {s(sT)}, {s(sRB)}, {s(sTH)}\ns_cmp_eq_u32 {s(sT)}, 0\ns_cselect_b32 {s(sT)}, {hex(f2u(-1e30))}, 0")
    for r in range(4): p(f"v_mov_b32 {v(NEG+r)}, {s(sT)}")
    p(f"s_lshl_b32 {s(sT)}, {s(sHH)}, 12\ns_add_u32 {s(sT)}, {s(sT)}, {EXCH}\ns_lshl_b32 {s(sT+1)}, {s(sTH)}, 9\ns_add_u32 {s(sT+1)}, {s(sT+1)}, {s(sT)}")
    p(f"v_lshlrev_b32 {v(t2)}, 3, v0\nv_add_u32 {v(vEh)}, {s(sT+1)}, {v(t2)}")
    p(f"s_lshl_b32 {s(sT+2)}, {s(sTH)}, 11\nv_add_u32 {v(vEr)}, {s(sT+2)}, {v(vEh)}\nv_xor_b32 {v(vEr+1)}, 512, {v(vEr)}")
    p(f"s_add_u32 {s(sT)}, {s(sT)}, 2048\ns_cmp_eq_u32 {s(sTH)}, 0\ns_cselect_b32 {s(sT)}, {s(sT)}, {EXCH+8192}\nv_add_u32 {v(vE3)}, {s(sT)}, {v(t2)}")

    vW0, vWO1, vOUT, vPF = 244, 245, 246, 247
    sO0, sO1, sPF, sR4 = 28, 29, 30, 32
    p(f"v_bfe_u32 {v(t1)}, v0, 3, 2\nv_lshlrev_b32 {v(t1)}, 5, {v(t1)}\nv_and_b32 {v(t2)}, 3, v0\nv_lshl_add_u32 {v(t1)}, {v(t2)}, 3, {v(t1)}")
    p(f"v_lshrrev_b32 {v(t2)}, 2, v0\nv_lshl_add_u32 {v(t1)}, {v(t2)}, 7, {v(t1)}\ns_lshl_b32 {s(sT)}, {s(sTH)}, 11\nv_add_u32 {v(vW0)}, {s(sT)}, {v(t1)}")
    srd(p, rWO, pWO, 2 << 20)
    p(f"v_lshrrev_b32 {v(t1)}, 4, v0\nv_lshlrev_b32 {v(t1)}, 1, {v(t1)}\nv_and_b32 {v(t2)}, 7, v0\nv_xor_b32 {v(t1)}, {v(t1)}, {v(t2)}\nv_lshlrev_b32 {v(t1)}, 4, {v(t1)}")
    p(f"v_lshrrev_b32 {v(t2)}, 3, v0\nv_lshl_add_u32 {v(t1)}, {v(t2)}, 11, {v(t1)}\ns_lshl_b32 {s(sT)}, {s(sCB)}, 7\ns_lshl_b32 {s(sT+1)}, {s(wb)}, 14\ns_add_u32 {s(sT)}, {s(sT)}, {s(sT+1)}\nv_add_u32 {v(vWO1)}, {s(sT)}, {v(t1)}")
    p(f"v_and_b32 {v(t1)}, 15, v0\ns_lshl_b32 {s(sT)}, {s(sRB4)}, 2\ns_add_u32 {s(sT)}, {s(sT)}, {s(wb)}\ns_lshl_b32 {s(sT+1)}, {s(sT)}, 5\nv_add_u32 {v(t1)}, {s(sT+1)}, {v(t1)}\nv_lshlrev_b32 {v(t1)}, 12, {v(t1)}")
    p(f"v_bfe_u32 {v(t2)}, v0, 4, 1\nv_lshl_add_u32 {v(t1)}, {v(t2)}, 5, {v(t1)}\nv_lshrrev_b32 {v(t2)}, 5, v0\nv_lshl_add_u32 {v(t1)}, {v(t2)}, 4, {v(t1)}")
    p(f"s_lshl_b32 {s(sT+1)}, {s(sCB)}, 7\ns_add_u32 {s(sT+1)}, {s(sT+1)}, 2048\nv_add_u32 {v(vOUT)}, {s(sT+1)}, {v(t1)}")
    p(f"s_lshl_b32 {s(sO0)}, {s(sT)}, 16\ns_add_u32 {s(sO0)}, {s(sO0)}, {WS_O}")
    p(f"s_lshl_b32 {s(sPF)}, {s(sRB4)}, 1\ns_add_u32 {s(sPF)}, {s(sPF)}, {s(sTH)}\ns_lshl_b32 {s(sPF)}, {s(sPF)}, 12\ns_add_u32 {s(sPF)}, {s(sPF)}, {F_O}")
    p(f"v_lshrrev_b32 {v(t2)}, 1, v0\nv_lshlrev_b32 {v(t2)}, 8, {v(t2)}\nv_and_b32 {v(t1)}, 1, v0\nv_lshl_add_u32 {v(vPF)}, {v(t1)}, 2, {v(t2)}")
    sUO, sUW, sW1, sW2 = 36, 44, 34, 35
    unit_table(cfg, p, sT + 1)
    for t in range(8):
        p(f"s_bfe_u32 {s(sT)}, {s(sT+1)}, {hex((3 << 16) | (4 * t))}\ns_lshl_b32 {s(sUW+t)}, {s(sT)}, 18\ns_lshl_b32 {s(sT)}, {s(sT)}, 12\ns_add_u32 {s(sUO+t)}, {s(sT)}, {s(sO0)}")
    p(f"s_lshl_b32 {s(sW1)}, {s(wb)}, 10")
    if cfg.ldsout:
        vOW, vOR = 248, 250
        p(f"v_bfe_u32 {v(t1)}, v0, 4, 1\nv_lshrrev_b32 {v(t2)}, 5, v0\nv_lshl_add_u32 {v(t1)}, {v(t1)}, 1, {v(t2)}\nv_and_b32 {v(t2)}, 7, v0\nv_xor_b32 {v(t1)}, {v(t1)}, {v(t2)}\nv_lshlrev_b32 {v(t1)}, 4, {v(t1)}")
        p(f"v_and_b32 {v(t4)}, 15, v0\nv_lshl_add_u32 {v(t1)}, {v(t4)}, 7, {v(t1)}\ns_lshl_b32 {s(sT)}, {s(wb)}, 12\nv_add_u32 {v(vOW)}, {s(sT)}, {v(t1)}\nv_xor_b32 {v(vOW+1)}, 64, {v(vOW)}\nv_add_u32 {v(vOR)}, {s(sT)}, {v(vL16)}")
        p(f"v_lshrrev_b32 {v(t1)}, 3, v0\nv_xor_b32 {v(t2)}, {v(t2)}, {v(t1)}\nv_lshlrev_b32 {v(t2)}, 4, {v(t2)}\nv_lshl_add_u32 {v(t1)}, {v(t1)}, 12, {v(t2)}")
        p(f"s_lshl_b32 {s(sT)}, {s(sRB4)}, 2\ns_add_u32 {s(sT)}, {s(sT)}, {s(wb)}\ns_lshl_b32 {s(sT)}, {s(sT)}, 17\ns_lshl_b32 {s(sT+1)}, {s(sCB)}, 7\ns_add_u32 {s(sT)}, {s(sT)}, {s(sT+1)}\ns_add_u32 {s(sT)}, {s(sT)}, 2048\nv_add_u32 {v(vOUT)}, {s(sT)}, {v(t1)}")
    late = p.L if cfg.bdefer else []
    p = pmain
    def step(M, rd):
        out = []; ri = 0
        for i, m in enumerate(M):
            out.append(m)
            if ri < len(rd): out.append(rd[ri]); ri += 1; n = 1
            else: n = 2 if i < len(M) - 1 else 0
            for _ in range(n):
                if late: out.append(late.pop(0))
        return out + rd[ri:]

    def reads(c, ks):
        k = ks; sl = c % 3; L = []
        X = [f"ds_read_b128 {v(fx(k,t),4)}, {v(vXo+ks)} offset:{sl*XS + 2048*t}" for t in range(4)]
        if "halo" not in cfg.abl: X.append(f"ds_read_b128 {v(fx(k,4),4)}, {v(vXh+ks)} offset:{sl*XS}")
        W = []
        for part in range(3):
            for u in range(2):
                for j in range(2):
                    base = vWq + u
                    off = sl * 24576 + ks * 12288 + part * 1024 + j * 512
                    W.append(f"ds_read_b64_tr_b16 {v(fw(k,part,u)+2*j,2)}, {v(base)} offset:{off}")
        return X + W
    def mfmas(k, first, last=False):
        def mm(a, A, B): return f"v_mfma_f32_16x16x32_bf16 {v(a,4)}, {v(A,4)}, {v(B,4)}, {'0' if first else v(a,4)}"
        H = [mm(accHK, fw(k,1,0), fx(k,4)), mm(accHV, fx(k,4), fw(k,2,0))]
        Q = lambda t: [mm(accQ(t,u), fw(k,0,u), fx(k,t)) for u in range(2)]
        K = lambda t: [mm(accK(t,u), fw(k,1,u), fx(k,t)) for u in range(2)]
        V = lambda t: [mm(accV(t,u), fx(k,t), fw(k,2,u)) for u in range(2)]
        if "halo" in cfg.abl and not first and not last:
            r = lambda L: L[::-1]
            return Q(0) + r(K(0)) + K(1) + r(Q(1)) + Q(2) + r(K(2)) + K(3) + r(Q(3)) + V(3) + r(V(2)) + V(1) + r(V(0))
        if cfg.snake and not last:
            r = lambda L: L[::-1]
            return Q(0) + r(K(0)) + K(1) + r(Q(1)) + Q(2) + r(K(2)) + [H[0]] + K(3) + r(Q(3)) + V(3) + r(V(2)) + V(1) + r(V(0)) + [H[1]]
        return H + K(3) + V(3) + Q(3) + K(2) + Q(2) + K(1) + Q(1) + K(0) + Q(0) + V(2) + V(1) + V(0)

    def pk(dst, a): return [f"v_cvt_pk_bf16_f32 {v(dst)}, {v(a)}, {v(a+1)}", f"v_cvt_pk_bf16_f32 {v(dst+1)}, {v(a+2)}, {v(a+3)}"]
    def wdma(stp, tag=None):
        return [f"s_add_u32 m0, {s(sW1)}, {wo_loc(stp)}", f"s_add_u32 {s(sW2)}, {s(sUW+(stp>>2))}, {(stp&3)*65536}",
                Ins(f"buffer_load_dwordx4 {v(vWO1)}, {s(rWO,4)}, {s(sW2)} offen {cfg.pol_wo} lds", tag)]
    vP = t3
    def after_barrier(b):
        if cfg.allbar or b in (1, 4, 8, 12): st(p, f"B.bar{b}")
        if b == 1:
            p(f"s_or_b32 {s(sT)}, {s(sM)}, {s(wb)}\ns_cbranch_scc0 LB_tag\nLB_tagb:")
            slow(f"LB_tag:\ns_mov_b64 exec, 0xffff\n{tagfin}\ns_mov_b64 exec, -1\ns_branch LB_tagb")
        if b == cfg.KF:
            p(f"s_cmp_lg_u32 {s(wb)}, 0\ns_cbranch_scc1 LB_sk\ns_waitcnt vmcnt(0)\nv_cmp_eq_u32 vcc, 0, {v(vP)}\ns_cbranch_vccnz LB_slow\nLB_back:")
            p(f"s_mov_b64 exec, 1\nbuffer_store_dword {v(vP)}, {v(vZ)}, {s(rWS,4)}, {s(sFK)} offen sc1\ns_mov_b64 exec, -1\nLB_sk:")
            slow("LB_slow:"); gpoll(slow, cfg, "LB_pt", rDBG, vZ, s(sTA), 4096, vP); slow("s_branch LB_back")
    XB = lambda c, t, ks: 120 + 40 * (c & 1) + 8 * t + 4 * ks
    GR = [(1, 0), (1, 1), (0, 0), (0, 1), (2, 0), (2, 1)]
    WBf = lambda c, g: 120 + 8 * (g - 2) if (c == 15 and g >= 2) else (200, 224, 232)[g % 3]
    def xr(c):
        sl = c % 3
        return [f"ds_read_b128 {v(XB(c,t,ks),4)}, {v((vXh if t == 4 else vXo)+ks)} offset:{sl*XS + (0 if t == 4 else 2048*t)}" for t in (4, 3, 2, 1, 0) for ks in range(2)]
    def wr_(c, g):
        part, u = GR[g]; sl = c % 3
        return [Ins(f"ds_read_b64_tr_b16 {v(WBf(c,g)+4*ks+2*j,2)}, {v(vWq+u)} offset:{sl*24576 + ks*12288 + part*1024 + j*512}", f"w{c}_{g}") for ks in range(2) for j in range(2)]
    kstate = [0]
    def gm(c, g):
        part, u = GR[g]; L = []
        T = ([4, 3, 2, 1, 0] if part else [3, 2, 1, 0]) if u == 0 else ([3, 2, 1, 0] if c == 15 else [0, 1, 2, 3])
        for t in T:
            a = (accHK if part == 1 else accHV) if t == 4 else (accQ, accK, accV)[part](t, u)
            for i in range(2):
                ks = kstate[0] ^ i; w, x = WBf(c, g) + 4 * ks, XB(c, t, ks)
                A_, B_ = (x, w) if part == 2 else (w, x)
                L.append(f"v_mfma_f32_16x16x32_bf16 {v(a,4)}, {v(A_,4)}, {v(B_,4)}, {'0' if (c == 0 and i == 0) else v(a,4)}")
            kstate[0] ^= 1
        return L
    if cfg.mini: st(p, "B.ready")
    p("s_waitcnt lgkmcnt(0)\ns_barrier")
    st(p, "B.bar0")
    p(wr_(0, 0) + xr(0) + wr_(0, 1))
    for c in range(15):
        X = xr(c + 1); nx = (0, 0, 5, 5) if c == 0 else (4, 3, 3, 0)
        for g in range(6):
            if c == 0 and g == 2: p("s_barrier")
            M = gm(c, g)
            if not (c == 0 and g == 0): p.wait_ds(f"w{c}_{g}")
            W = wr_(c, g + 2) if g < 4 else wr_(c + 1, g - 4)
            if g < 4:
                f = W + X[:nx[g]]; X = X[nx[g]:]
                if g == 3 and c == cfg.KF - 3: f.append(f"buffer_load_dword {v(vP)}, {v(vZ)}, {s(rDBG,4)}, {s(sTA)} offen sc1")
                p(weave(M, f, per_gap=2 if len(f) > len(M) - 1 else 1))
            elif g == 4 and c < 14:
                p(M[:cfg.bpos])
                p("s_waitcnt vmcnt(0) lgkmcnt(0)" if c == 0 else "s_waitcnt lgkmcnt(0)")
                p("s_barrier"); after_barrier(c + 1)
                p(weave(M[cfg.bpos:], W, per_gap=1))
            else: p(weave(M, W, per_gap=1))
    st(p, "B.bar16")
    Qp = lambda t: accQ(t, 0)
    Kp = lambda t: 204 if t < 0 else accK(t, 0)
    Vp = lambda u, t: 224 + 10 * u + 2 * (t + 1)
    Hp = 200
    Sp = lambda t: accK(t, 1); Sc = lambda t: accQ(t, 1)
    Xv = lambda t, j: 152 + 2 * t + j
    Mx = lambda t: 120 + t
    def smm(d, kt, qt, c="0"): return f"v_mfma_f32_16x16x32_bf16 {v(d,4)}, {v(Kp(kt),4)}, {v(Qp(qt),4)}, {c}"
    def arrive(off): return Item(["s_mov_b64 exec, 1", f"ds_add_u32 {v(vCNT)}, {v(vONE)} offset:{off}", "s_mov_b64 exec, -1"])
    def fetch(off, rds, name, after=0):
        regs = set().union(*[Ins(y).wr for y in rds])
        slow(f"LB_w{name}:"); lds_wait(slow, f"LB_s{name}", vCNT, off, 4, t4, extra=rds); slow(f"s_branch LB_g{name}")
        return ([Item(f"ds_read_b32 {v(t4)}, {v(vCNT)} offset:{off}", after=after)] + rds,
                Item([f"v_cmp_gt_u32 vcc, 4, {v(t4)}", f"s_cbranch_vccnz LB_w{name}", f"LB_g{name}:"], rd=regs, wr=regs))
    def sel(t):
        L = []
        for j, m in ((0, mLe0), (1, mLe1)):
            L += [f"v_cndmask_b32 {v(124+2*j)}, {v(Sc(t)+2*j)}, {v(Sc(t)+2*j+1)}, {s(mPar,2)}", f"v_cndmask_b32 {v(125+2*j)}, {v(Sp(t)+2*j)}, {v(Sp(t)+2*j+1)}, {s(mPar,2)}",
                  f"v_cndmask_b32 {v(Xv(t,j))}, {v(125+2*j)}, {v(124+2*j)}, {s(m,2)}"]
        return L + [f"v_max_f32 {v(Mx(t))}, {v(Xv(t,0))}, {v(Xv(t,1))}"]
    ref = []
    for g in range(2, 6): ref += wr_(15, g)
    ref += gm(15, 0)
    for t in (3, 2, 1): ref += pk(Kp(t), accK(t, 0))
    ref += pk(Hp, accHK) + [f"ds_write_b64 {v(vEh)}, {v(Hp,2)}", f"ds_write_b64 {v(vE3)}, {v(Kp(3),2)}"] + pk(Kp(0), accK(0, 0))
    ref += gm(15, 1)
    ref += pk(Kp(3) + 2, accK(3, 1)) + [f"ds_write_b64 {v(vE3)}, {v(Kp(3)+2,2)} offset:512", arrive(S1)]
    for t in (2, 1, 0): ref += pk(Kp(t) + 2, accK(t, 1))
    ref += gm(15, 2)
    for t in (3, 2, 1, 0): ref += pk(Qp(t), accQ(t, 0))
    ref += gm(15, 3)
    fk, ck = fetch(S1, [f"ds_read_b64 {v(Kp(-1)+2*u,2)}, {v(vEr+u)}" for u in range(2)], "1")
    for t in (3,): ref += pk(Qp(t) + 2, accQ(t, 1))
    ref += fk
    for t in (2, 1, 0): ref += pk(Qp(t) + 2, accQ(t, 1))
    V0, V1 = gm(15, 4), gm(15, 5)
    ref += V0[:4] + [smm(Sc(3), 3, 3), smm(Sp(3), 2, 3), smm(Sc(2), 2, 2), smm(Sp(2), 1, 2)] + V0[4:6] + [smm(Sc(1), 1, 1), smm(Sp(1), 0, 1), smm(Sc(0), 0, 0)]
    ref += pk(Hp + 2, accHV) + pk(Vp(0, 3), accV(3, 0)) + [f"ds_write_b64 {v(vEh)}, {v(Hp+2,2)} offset:1024", f"ds_write_b64 {v(vE3)}, {v(Vp(0,3),2)} offset:1024"]
    ref += [ck] + V0[6:8] + [smm(Sp(0), -1, 0, v(NEG, 4))] + V0[8:] + V1
    ref += sel(3) + sel(2) + sel(1)
    ref += pk(Vp(1, 3), accV(3, 1)) + [f"ds_write_b64 {v(vE3)}, {v(Vp(1,3),2)} offset:1536", arrive(S6)]
    ref += sel(0)
    p(sched(ref))
    st(p, "B.T0")
    pmain = p; p = Prog()
    vpk = []
    for t in (2, 1, 0):
        for u in range(2): vpk += pk(Vp(u, t), accV(t, u))
    fv, cv = fetch(S6, [f"ds_read_b64 {v(Vp(u,-1),2)}, {v(vEr+u)} offset:1024" for u in range(2)], "6")
    def allred(op, mid, f):
        m0, m1, m2, m3 = (Mx(t) for t in range(4))
        g = lambda n: [f.pop(0) for _ in range(min(n, len(f)))]
        p(g(1)); p(f"v_permlane32_swap_b32 {v(m2)}, {v(m3)}\nv_permlane32_swap_b32 {v(m0)}, {v(m1)}")
        p(f"{op} {v(m2)}, {v(m2)}, {v(m3)}\n{op} {v(m0)}, {v(m0)}, {v(m1)}")
        p(g(2)); p(f"v_permlane16_swap_b32 {v(m0)}, {v(m2)}\n{op} {v(m0)}, {v(m0)}, {v(m2)}")
        p(mid(m0)); p(mid(m0, m2))
        p(g(2)); p(f"v_permlane16_swap_b32 {v(m0)}, {v(m2)}")
        p(f"v_mov_b32 {v(m1)}, {v(m0)}\nv_mov_b32 {v(m3)}, {v(m2)}")
        p(g(1)); p(f"v_permlane32_swap_b32 {v(m0)}, {v(m1)}\nv_permlane32_swap_b32 {v(m2)}, {v(m3)}")
    cs = (32 ** -0.5) * math.log2(math.e)
    p(f"s_mov_b32 {s(sT+2)}, {hex(f2u(cs))}")
    allred("v_max_f32", lambda m, d=None: f"v_mul_f32 {v(m)}, {s(sT+2)}, {v(m)}" if d is None else f"v_mov_b32 {v(d)}, {v(m)}", vpk)
    for t in range(4):
        for j in range(2): p(f"v_fma_f32 {v(Xv(t,j))}, {v(Xv(t,j))}, {s(sT+2)}, -{v(Mx(t))}")
    p([y.ins if isinstance(y, Item) else y for y in fv])
    for t in range(4):
        for j in range(2): p(f"v_exp_f32 {v(Xv(t,j))}, {v(Xv(t,j))}")
    for t in range(4): p(f"v_add_f32 {v(Mx(t))}, {v(Xv(t,0))}, {v(Xv(t,1))}")
    allred("v_add_f32", lambda m, d=None: f"v_rcp_f32 {v(m)}, {v(m)}" if d is None else f"v_mov_b32 {v(d)}, {v(m)}", vpk)
    p(vpk); p.L.append(cv.ins)
    Pf = lambda t: 160 + 4 * t
    Oa = lambda t, u: ACC + 8 * t + 4 * u
    Of = lambda t: ACC + 64 + 4 * t
    for t in range(4):
        for j in range(2): p(f"v_mul_f32 {v(Xv(t,j))}, {v(Xv(t,j))}, {v(Mx(t))}")
        p(f"v_cvt_pk_bf16_f32 {v(Xv(t,0))}, {v(Xv(t,0))}, {v(Xv(t,1))}")
        for k in range(4): p(f"v_perm_b32 {v(Pf(t)+k)}, {v(Xv(t,0))}, {v(Xv(t,0))}, {v(SEL+k)}")
        if t > 0:
            for u in range(2): p(f"v_mfma_f32_16x16x32_bf16 {v(Oa(t-1,u),4)}, {v(Vp(u,t-2),4)}, {v(Pf(t-1),4)}, 0")
    for u in range(2): p(f"v_mfma_f32_16x16x32_bf16 {v(Oa(3,u),4)}, {v(Vp(u,2),4)}, {v(Pf(3),4)}, 0")
    body = p.L; p = pmain
    p(spread(body, [wdma(x, "wB" if x < NPRE else None) for x in range(cfg.nat)]))
    for t in range(4):
        for u in range(2): p(pk(Of(t) + 2 * u, Oa(t, u)))
        p(f"s_add_u32 {s(sSO)}, {s(sOB)}, {32768*t}")
        p(f"buffer_store_dwordx4 {v(Of(t),4)}, {v(vL16)}, {s(rWS,4)}, {s(sSO)} offen sc1", "ost")
    st(p, "B.ostiss")
    vWA, vWB, vWC = 2, 224, 232
    A4 = 16; WF = 48; NW = NPRE if cfg.pre else cfg.WD + 1; OF = WF + 16 * NW; NR = cfg.NR; assert OF + 8 * max(NR, cfg.deep) <= 220
    p([wdma(x, "wB") for x in range(cfg.nat, NPRE)])
    n0 = max(cfg.nat, NPRE); n1 = min(23, n0 + cfg.ndma)
    p(mix([wdma(x) for x in range(n0, n0 + 2)], [f"v_xor_b32 {v(vWA+4*j+u)}, {2048*j + 32*u}, {v(vW0)}" for j in range(2) for u in range(4)]))
    p.wait_vm("wB"); lds_arrive(p, vCNT, S2, vONE)
    p(mix([wdma(x) for x in range(n0 + 2, n1)], [f"v_add_u32 {v(vWB+i)}, 65536, {v(vWA+i)}" for i in range(8)] + [f"v_add_u32 {v(t2)}, 32768, {v(vL16)}"] + ([f"v_add_u32 {v(vWC+i)}, {HB}, {v(vWA+i)}" for i in range(8)] if cfg.pchain else [])))
    def wreads(stp):
        k = stp % NW; loc = wo_loc(stp); hi = loc >= 65536
        if loc >= HB:
            L = []
            for u in range(4):
                for j in range(2):
                    if stp == 26: L.append(f"v_add_u32 {v(vWA+4*j+u)}, {HB}, {v(vWA+4*j+u)}")
                    L.append(Ins(f"ds_read_b64_tr_b16 {v(WF+16*k+4*u+2*j,2)}, {v(vWA+4*j+u)} offset:{loc - HB}", f"w{stp}"))
            return L
        return [Ins(f"ds_read_b64_tr_b16 {v(WF+16*k+4*u+2*j,2)}, {v((vWB if hi else vWA)+4*j+u)} offset:{loc & 65535}", f"w{stp}") for u in range(4) for j in range(2)]
    pre = []
    for stp in range(NPRE): pre += wreads(stp)
    p.wait_vm("ost")
    p(f"s_mov_b64 exec, 1\nbuffer_store_dword {v(vONE)}, {v(vZ)}, {s(rWS,4)}, {s(sFO)} offen sc1\ns_mov_b64 exec, -1")
    st(p, "B.oflag")
    lds_wait(p, "LB_s2", vCNT, S2, 8, t1)
    if cfg.pre:
        p(mix([wdma(x) for x in range(n1, 32 - NPRE)], pre))
        p("s_waitcnt lgkmcnt(0)")
        lds_arrive(p, vCNT, S8, vONE)
        if cfg.epoll: p(f"s_mov_b64 exec, 0xffffffff\nbuffer_load_dword {v(t0)}, {v(vPF)}, {s(rWS,4)}, {s(sPF)} offen sc1\ns_mov_b64 exec, -1", "pl")
        lds_wait(p, "LB_s8", vCNT, S8, 4, t1)
        for stp in range(32 - NPRE, 32): p(wdma(stp, "wC"))
    else:
        if cfg.pchain:
            pre = []
            for g in range(2):
                for i in range(4): pre += [Ins(f"ds_read_b64_tr_b16 {v(WF+16*g+4*i+2*j,2)}, {v(vWA+4*j+g)} offset:{wo_loc(i)}", f"w{g}") for j in range(2)]
        p(mix([wdma(x, "wC") for x in range(n1, 32 - NPRE)], pre[:8 * cfg.WD]))
        if cfg.epoll: p(f"s_mov_b64 exec, 0xffffffff\nbuffer_load_dword {v(t0)}, {v(vPF)}, {s(rWS,4)}, {s(sPF)} offen sc1\ns_mov_b64 exec, -1", "pl")
    def oload(stp, NR):
        L = []
        for tt in range(2):
            r = OF + 8 * (stp % NR) + 4 * tt
            L.append(Ins(f"buffer_load_dwordx4 {v(r,4)}, {v(t2 if tt else vL16)}, {s(rWS,4)}, {s(sUO+(stp>>2))} offen offset:{1024*(stp%4)} {cfg.pol_o}", f"o{stp}"))
        return L
    if cfg.epoll:
        p.wait_vm("pl")
        p(f"s_mov_b64 exec, 0xffffffff\nv_cmp_ne_u32 vcc, 1, {v(t0)}\ns_cbranch_vccnz LB_pw\nLB_pg:\ns_mov_b64 exec, -1")
        slow(f"LB_pw:\ns_mov_b64 exec, vcc"); gpoll(slow, cfg, "LB_po", rWS, vPF, s(sPF), 1, t1); slow("s_branch LB_pg")
    else:
        p("s_waitcnt vmcnt(0)")
        if cfg.s4e: lds_arrive(p, vCNT, S4, vONE)
        p("s_mov_b64 exec, 0xffffffff")
        gpoll(p, cfg, "LB_po", rWS, vPF, s(sPF), 1, t1, sleep=cfg.osleep)
        p("s_mov_b64 exec, -1")
        if cfg.s4e: p(f"ds_read_b32 {v(t3)}, {v(vCNT)} offset:{S4}")
    st(p, "B.opoll")
    SF = S7 if cfg.ysig > 16 else S10
    def p4_body(p, NR, sfx):
        for stp in range(NR - 1): p(oload(stp, NR))
        p(f"s_setprio {cfg.prioB2}")
        if cfg.s4e:
            p(f"v_cmp_gt_u32 vcc, 4, {v(t3)}\ns_cbranch_vccnz LB_w4{sfx}\nLB_g4{sfx}:")
            slow(f"LB_w4{sfx}:"); lds_wait(slow, "LB_s4" + sfx, vCNT, S4, 4, t3); slow(f"s_branch LB_g4{sfx}")
        else:
            p.wait_vm("wC"); lds_arrive(p, vCNT, S4, vONE)
            lds_wait(p, "LB_s4" + sfx, vCNT, S4, 4, t1)
        for stp in range(32):
            k = stp % NW
            if stp == 1: st(p, "B.p4s1")
            if cfg.p4st and stp % 4 == 0 and stp: st(p, f"B.s{stp}")
            p.wait_both(f"o{stp}", f"w{stp}")
            if stp == cfg.ysig: lds_arrive(p, vCNT, S7, vONE)
            if cfg.ldsout and cfg.ysig <= 16 and stp == 20: lds_arrive(p, vCNT, S10, vONE)
            fill = []
            if stp - 1 + NR < 32 and not cfg.noo: fill += oload(stp - 1 + NR, NR)
            if not cfg.pre and stp + cfg.WD == 25: fill += [f"ds_read_b32 {v(t4)}, {v(vCNT)} offset:{S8}"]
            if not cfg.pre and stp + cfg.WD == 26:
                p(f"v_cmp_gt_u32 vcc, 4, {v(t4)}\ns_cbranch_vccnz LB_w8{sfx}\nLB_g8{sfx}:")
                slow(f"LB_w8{sfx}:"); lds_wait(slow, "LB_s8" + sfx, vCNT, S8, 4, t4); slow(f"s_branch LB_g8{sfx}")
            if (NPRE if cfg.pre else cfg.WD) <= stp + cfg.WD < 32: fill += wreads(stp + cfg.WD)
            if cfg.ldsout and stp == 30: fill += [f"ds_read_b32 {v(t4)}, {v(vCNT)} offset:{SF}"]
            M = [f"v_mfma_f32_16x16x32_bf16 {v(A4+16*tt+4*u,4)}, {v(WF+16*k+4*u,4)}, {v(OF+8*(stp%NR)+4*tt,4)}, {'0' if stp == 0 else v(A4+16*tt+4*u,4)}" for tt in range(2) for u in range(4)]
            if "p4" in cfg.abl and stp: M = M[::2]
            p(spread(M, fill))
    def p4_chain(p):
        WB = lambda g: WF + 16 * (g % 3)
        OB = lambda un, tt, i: 96 + 32 * (un % 3) + 16 * tt + 4 * i
        def wr(g):
            un, u = g >> 2, g & 3; L = []
            for i in range(4):
                stp = 4 * un + i; loc = wo_loc(stp)
                base, off = (vWC, loc - HB) if loc >= HB else ((vWB, loc & 65535) if loc >= 65536 else (vWA, loc))
                L += [Ins(f"ds_read_b64_tr_b16 {v(WB(g)+4*i+2*j,2)}, {v(base+4*j+u)} offset:{off}", f"w{g}") for j in range(2)]
            return L
        def ol(un): return [Ins(f"buffer_load_dwordx4 {v(OB(un,tt,i),4)}, {v(t2 if tt else vL16)}, {s(rWS,4)}, {s(sUO+un)} offen offset:{1024*i} {cfg.pol_o}", f"o{un}_{tt}") for tt in range(2) for i in range(4)]
        q = []
        for un in range(8): q += ol(un)
        p(q[:cfg.oini]); qi = cfg.oini
        p(f"s_setprio {cfg.prioB2}")
        p(f"v_cmp_gt_u32 vcc, 4, {v(t3)}\ns_cbranch_vccnz LB_w4\nLB_g4:")
        slow("LB_w4:"); lds_wait(slow, "LB_s4", vCNT, S4, 4, t3); slow("s_branch LB_g4")
        for g in range(32):
            un, u = g >> 2, g & 3
            if g == 1: st(p, "B.p4s1")
            if cfg.p4st and g % 4 == 0 and g: st(p, f"B.s{g}")
            if g == cfg.ysig: lds_arrive(p, vCNT, S7, vONE)
            if g == 21: lds_arrive(p, vCNT, S10, vONE)
            fill = []
            tgt = min(len(q), 8 * (un + 3), cfg.olead + 2 * (g + 1), qi + 4)
            fill += q[qi:tgt]; qi = tgt
            if g + 2 == 23: fill += [f"ds_read_b32 {v(t4)}, {v(vCNT)} offset:{S8}"]
            if g + 2 == 24:
                p(f"v_cmp_gt_u32 vcc, 4, {v(t4)}\ns_cbranch_vccnz LB_w8\nLB_g8:")
                slow("LB_w8:"); lds_wait(slow, "LB_s8", vCNT, S8, 4, t4); slow("s_branch LB_g8")
            if g == 28: fill += [f"ds_read_b32 {v(t4)}, {v(vCNT)} offset:{S10}"]
            if g + 2 < 32: fill += wr(g + 2)
            M = []
            tts = (0, 1) if u % 2 == 0 else (1, 0)
            for k_, tt in enumerate(tts):
                a = v(A4 + 16 * tt + 4 * u, 4)
                for n_, i in enumerate(range(4) if k_ == 0 else range(3, -1, -1)):
                    M.append(f"v_mfma_f32_16x16x32_bf16 {a}, {v(WB(g)+4*i,4)}, {v(OB(un,tt,i),4)}, {'0' if (un == 0 and n_ == 0) else a}")
            if g >= 4: p.wait_both(f"o{un}_1" if u == 0 else None, f"w{g}")
            if g == 30:
                p(f"v_cmp_gt_u32 vcc, 4, {v(t4)}\ns_cbranch_vccnz LB_w7\nLB_g7:")
                slow("LB_w7:"); lds_wait(slow, "LB_s7", vCNT, S10, 4, t4); slow("s_branch LB_g7")
                fill = [None] * 4 + outp(1, 0)
            if g == 31: fill = outp(0, 0)
            p([y for y in spread(M, fill) if y is not None])
    PK = 192
    def outp(tt, pr):
        d = PK + 8 * tt + 4 * pr
        return pk(d, A4 + 16 * tt + 8 * pr) + pk(d + 2, A4 + 16 * tt + 8 * pr + 4) + [f"v_permlane16_swap_b32 {v(d)}, {v(d+2)}", f"v_permlane16_swap_b32 {v(d+1)}, {v(d+3)}", f"ds_write_b128 {v(vOW+pr)}, {v(d,4)} offset:{2048*tt}"]
    p.alt = None
    if cfg.pchain:
        assert cfg.ldsout and cfg.s4e and not cfg.pre and not cfg.epoll and not cfg.deep
        p4_chain(p)
        st(p, "B.p4end")
        for tt in (1, 0):
            p(outp(tt, 1))
            for n in (2 * tt, 2 * tt + 1): p(f"ds_read_b128 {v(48+4*n,4)}, {v(vOR)} offset:{1024*n}")
        for n in (2, 3, 0, 1):
            p(f"s_mov_b32 {s(sSO)}, {32768*n}")
            p(f"buffer_store_dwordx4 {v(48+4*n,4)}, {v(vOUT)}, {s(rOUT,4)}, {s(sSO)} offen {cfg.pol_out}")
        st(p, "B.outiss")
        if cfg.diag:
            p("s_waitcnt vmcnt(0)"); st(p, "B.end"); st(p, "B.real1", real=True); st.dump(p, t1, 1)
        p("s_endpgm")
        return p, slow
    if cfg.deep:
        p(f"ds_read_b32 {v(t4)}, {v(vCNT)} offset:{S9}\nv_cmp_gt_u32 vcc, 1, {v(t4)}\ns_cbranch_vccnz LB_deep")
        n0_, names0 = st.n, list(st.names)
        alt = Prog(); alt("LB_deep:"); p4_body(alt, cfg.deep, "d"); alt("s_waitcnt lgkmcnt(0)\ns_branch LB_p4j")
        p.alt = (list(p.L), alt)
        st.n, st.names = n0_, names0
    p4_body(p, NR, "")
    if cfg.deep: p("s_waitcnt lgkmcnt(0)\nLB_p4j:")
    st(p, "B.p4end")
    PK = 176
    if cfg.ldsout:
        assert cfg.ysig < 30 and cfg.ally
        p(f"v_cmp_gt_u32 vcc, 4, {v(t4)}\ns_cbranch_vccnz LB_w7\nLB_g7:")
        slow("LB_w7:"); lds_wait(slow, "LB_s7", vCNT, SF, 4, t4); slow("s_branch LB_g7")
    for tt in range(2):
        for pr in range(2):
            d = PK + 8 * tt + 4 * pr
            p(pk(d, A4 + 16 * tt + 8 * pr) + pk(d + 2, A4 + 16 * tt + 8 * pr + 4))
            p(f"v_permlane16_swap_b32 {v(d)}, {v(d+2)}\nv_permlane16_swap_b32 {v(d+1)}, {v(d+3)}")
            if cfg.ldsout: p(f"ds_write_b128 {v(vOW+pr)}, {v(d,4)} offset:{2048*tt}")
            else:
                p(f"s_mov_b32 {s(sSO)}, {65536*tt}")
                p(f"buffer_store_dwordx4 {v(d,4)}, {v(vOUT)}, {s(rOUT,4)}, {s(sSO)} offen offset:{64*pr} {cfg.pol_out}")
        if cfg.ldsout:
            for n in (2 * tt, 2 * tt + 1): p(f"ds_read_b128 {v(PK+16+4*n,4)}, {v(vOR)} offset:{1024*n}")
    if cfg.ldsout:
        for n in range(4):
            p(f"s_mov_b32 {s(sSO)}, {32768*n}")
            p(f"buffer_store_dwordx4 {v(PK+16+4*n,4)}, {v(vOUT)}, {s(rOUT,4)}, {s(sSO)} offen {cfg.pol_out}")
    st(p, "B.outiss")
    if cfg.diag:
        p("s_waitcnt vmcnt(0)"); st(p, "B.end"); st(p, "B.real1", real=True); st.dump(p, t1, 1)
    p("s_endpgm")
    return p, slow

HEAD = open(__file__.rsplit("/", 1)[0] + "/head.txt").read() if "/" in __file__ else open("head.txt").read()

def generate(cfg, verbose=False):
    LSLEEP[0] = cfg.lsleep; PRE[0] = cfg.pre
    stA = Stamper(cfg, 255); stB = Stamper(cfg, 255)
    c = gen_common(cfg); a0 = gen_A0(cfg, stA)
    def fin(prefix, body, label):
        q = Prog(); q.L = prefix + body; q.finalize(verbose)
        i = 0 if label is None else next(k for k, y in enumerate(q.out) if y.text == label)
        return "\n".join(("" if y.kind == "label" else "    ") + y.text for y in q.out[i:])
    n0, names0 = stA.n, list(stA.names)
    parts = []
    for rho in range(4):
        stA.n, stA.names = n0, list(names0)
        a1 = gen_A1(cfg, stA, rho, a0.rest)
        parts.append(fin(c.L + a0.L, a1.L, None if rho == 0 else f"LA_c{rho}:"))
    a2, slowA = gen_A2(cfg, stA, a1.hc)
    parts.append(fin(c.L + a0.L + a1.L, a2.L, "LA_j:"))
    ta = "\n".join(parts)
    b, slow = gen_B(cfg, stB)
    tb = fin(c.L, b.L, "L_B:")
    if b.alt: tb += "\n" + fin(c.L + b.alt[0], b.alt[1].L, "LB_deep:")
    ts = slowA.finalize() + "\n" + slow.finalize()
    txt = HEAD + f"; @launch grid=(256,1,1) block=(512,1,1) lds={LDS_BYTES}\n"
    txt += f""".amdgcn_target "amdgcn-amd-amdhsa--gfx950"
.text
.globl {NAME}_kernel
.p2align 8
.type {NAME}_kernel,@function
{NAME}_kernel:
{ta}
{tb}
{ts}
L_end:
    s_endpgm
.section .rodata,"a"
.p2align 6
.amdhsa_kernel {NAME}_kernel
  .amdhsa_next_free_vgpr 256
  .amdhsa_next_free_sgpr 102
  .amdhsa_accum_offset 256
  .amdhsa_group_segment_fixed_size 0
  .amdhsa_kernarg_size 96
  .amdhsa_user_sgpr_count 2
  .amdhsa_user_sgpr_kernarg_segment_ptr 1
  .amdhsa_system_sgpr_workgroup_id_x 1
.end_amdhsa_kernel
"""
    return txt, (stA.names, stB.names)

def build(args, verbose=False):
    cfg = Cfg()
    for arg in args:
        k, val = arg.split("=", 1)
        cur = getattr(cfg, k)
        setattr(cfg, k, (val not in ("0", "False")) if isinstance(cur, bool) else (int(val, 0) if isinstance(cur, int) else type(cur)(val.replace("+", " "))))
    txt, names = generate(cfg, verbose)
    if cfg.diag: txt = txt.replace(".amdgcn_target", f"; map {cfg.xtab} {cfg.jx} {cfg.ctx} {cfg.cmap} {cfg.radd}\n; cfg {' '.join(a for a in args if a not in ('diag=1', 'mini=1'))}\n; stamps A {' '.join(names[0])}\n; stamps B {' '.join(names[1])}\n.amdgcn_target", 1)
    return txt

if __name__ == "__main__":
    out = [a for a in sys.argv[1:] if "=" not in a]
    open(out[0] if out else f"/code/{NAME}.s", "w").write(build([a for a in sys.argv[1:] if "=" in a], True))
```
